```python
import torch

def _softmax(x, axis=-1):
    return torch.softmax(x, dim=axis)

def _gelu(x):
    return torch.nn.functional.gelu(x, approximate='tanh')

def _silu(x):
    return torch.nn.functional.silu(x)

def _sigmoid(x):
    return torch.sigmoid(x)

def _layernorm(x, axis=-1, eps=1e-05):
    m = x.mean(dim=axis, keepdim=True)
    v = x.var(dim=axis, keepdim=True, unbiased=False)
    return (x - m) / torch.sqrt(v + eps)

def _scatter_add(tgt, idx, src, axis=0):
    return tgt.clone().index_add_(axis, idx, src)

def _segment_sum(src, seg, n):
    out = torch.zeros((n,) + src.shape[1:], dtype=src.dtype)
    return out.index_add_(0, seg, src)

def _pad(x, pw):
    flat = tuple((v for pair in reversed(pw) for v in pair))
    return torch.nn.functional.pad(x, flat)
kernel_name = 'parallel_sum__memory_aug_recurrent_mem_tr__dense_activation_mish__prompt'

def setup_inputs():

    _w = lambda a: (lambda t: t.to(torch.bfloat16) if t.is_floating_point() else t)(torch.as_tensor(a))

    def _A_setup():
        B, S, Dm = (1, 2048, 512)
        H, Dh = (32, 128)
        M, seg = (8, 32)
        seg = min(seg, S)
        S = S // seg * seg
        return {'x': _w((lambda *s: torch.randn(*s, dtype=torch.bfloat16) * 0.05)(B, S, Dm)), 'mem0': _w((lambda *s: torch.randn(*s, dtype=torch.bfloat16) * 0.2)(B, M, Dm)), 'Wq': _w((lambda *s: torch.randn(*s, dtype=torch.bfloat16) * 1.6)(Dm, H, Dh) * Dm ** (-0.5)), 'Wk': _w((lambda *s: torch.randn(*s, dtype=torch.bfloat16) * 1.6)(Dm, H, Dh) * Dm ** (-0.5)), 'Wv': _w((lambda *s: torch.randn(*s, dtype=torch.bfloat16) * 0.2)(Dm, H, Dh) * Dm ** (-0.5)), 'Wo': _w((lambda *s: torch.randn(*s, dtype=torch.bfloat16) * 0.2)(H, Dh, Dm) * (H * Dh) ** (-0.5)), 'seg_len': seg}
    _A_in = _A_setup()

    def _B_setup():
        B, S, D, F = (1, 2048, 512, 1792)
        return {'x': _w((lambda *s: torch.randn(*s, dtype=torch.bfloat16) * 0.05)(B, S, D)), 'w1': _w((lambda *s: torch.randn(*s, dtype=torch.bfloat16) * 0.8)(D, F) * D ** (-0.5)), 'b1': _w((lambda *s: torch.randn(*s, dtype=torch.bfloat16) * 0.2)(F)), 'w2': _w((lambda *s: torch.randn(*s, dtype=torch.bfloat16) * 0.1)(F, D) * F ** (-0.5))}
    _B_in = _B_setup()
    return {'A_x': _A_in['x'], 'A_mem0': _A_in['mem0'], 'A_Wq': _A_in['Wq'], 'A_Wk': _A_in['Wk'], 'A_Wv': _A_in['Wv'], 'A_Wo': _A_in['Wo'], 'A_seg_len': _A_in['seg_len'], 'B_x': _B_in['x'], 'B_w1': _B_in['w1'], 'B_b1': _B_in['b1'], 'B_w2': _B_in['w2']}

def reference(A_x, A_mem0, A_Wq, A_Wk, A_Wv, A_Wo, A_seg_len, B_x, B_w1, B_b1, B_w2):

    def _A_ref(x, mem0, Wq, Wk, Wv, Wo, seg_len):
        B, S, Dm = x.shape
        H, Dh = (Wq.shape[1], Wq.shape[2])
        M = mem0.shape[1]
        scale = Dh ** (-0.5)
        n_seg = S // seg_len
        L = M + seg_len
        idx = torch.arange(L)
        mask = (idx[:, None] < M) | (idx[:, None] >= idx[None, :])
        mem = mem0
        outs = []
        for s in range(n_seg):
            xs = x[:, s * seg_len:(s + 1) * seg_len, :].clone()
            h = torch.concatenate([mem, xs], axis=1)
            q = torch.einsum('btd,dhe->bhte', h, Wq)
            k = torch.einsum('btd,dhe->bhte', h, Wk)
            v = torch.einsum('btd,dhe->bhte', h, Wv)
            scores = torch.einsum('bhqe,bhke->bhqk', q, k) * scale
            scores = torch.where(mask[None, None], scores, -1000000000.0)
            p = _softmax(scores, axis=-1)
            o = torch.einsum('bhqk,bhke->bhqe', p, v)
            o = torch.einsum('bhte,hed->btd', o, Wo)
            mem = o[:, :M, :].clone()
            outs.append(o[:, M:, :])
        return torch.concatenate(outs, axis=1)

    def _B_ref(x, w1, b1, w2):
        h = torch.einsum('bsd,df->bsf', x, w1) + b1
        sp = torch.log1p(torch.exp(-torch.abs(h))) + torch.where(h > 0, h, torch.zeros_like(h))
        act = h * torch.tanh(sp)
        return torch.einsum('bsf,fd->bsd', act, w2)
    x = A_x
    xn = _layernorm(x, axis=-1)
    return x + _A_ref(xn, A_mem0, A_Wq, A_Wk, A_Wv, A_Wo, A_seg_len) + _B_ref(xn, B_w1, B_b1, B_w2)
```

```python
import re

def R(p, n, c=1):
    return f"{p}{n}" if c == 1 else f"{p}[{n}:{n+c-1}]"
def V(n, c=1): return R("v", n, c)
def A(n, c=1): return R("a", n, c)
def S(n, c=1): return R("s", n, c)

class Asm:
    def __init__(self):
        self.lines = []
        self.uid = 0
    def __call__(self, s):
        for l in s.split("\n"):
            l = l.strip()
            if l: self.lines.append(l)
        return self
    def label(self, name): self.lines.append(name + ":")
    def newlabel(self, base):
        self.uid += 1
        return f"{base}_{self.uid}"
    def nop(self, states):
        while states > 0:
            k = min(states, 16)
            self.lines.append(f"s_nop {k-1}")
            states -= k
    def extend(self, lines):
        for l in lines: self(l)
    def text(self):
        out = []
        for l in self.lines:
            if l.endswith(":") or l.startswith("."):
                out.append(l)
            else:
                out.append("    " + l)
        return "\n".join(out) + "\n"

REG_RE = re.compile(r"^(-?\|?)([vas])(?:(\d+)|\[(\d+):(\d+)\])\|?$")
def regs_of(tok):
    tok = tok.strip()
    if tok in ("vcc",): return {("s", 106), ("s", 107)}
    if tok == "exec": return {("s", 126), ("s", 127)}
    if tok == "m0": return {("s", 124)}
    m = REG_RE.match(tok)
    if not m: return set()
    p = m.group(2)
    if m.group(3) is not None: return {(p, int(m.group(3)))}
    return {(p, i) for i in range(int(m.group(4)), int(m.group(5)) + 1)}

def split_ops(rest):
    ops, cur, depth = [], "", 0
    for ch in rest:
        if ch == "[": depth += 1
        if ch == "]": depth -= 1
        if ch == "," and depth == 0:
            ops.append(cur.strip()); cur = ""
        else: cur += ch
    if cur.strip(): ops.append(cur.strip())
    res = []
    mods = []
    for o in ops:
        parts = o.split()
        res.append(parts[0]); mods += parts[1:]
    return res, mods

TRANS = ("v_exp_f32", "v_log_f32", "v_rcp_f32", "v_rsq_f32", "v_sqrt_f32", "v_sin_f32", "v_cos_f32")

class Ins:
    def __init__(self, text):
        self.text = text
        t = text.split(";")[0].strip()
        sp = t.split(None, 1)
        self.mn = sp[0]
        self.ops, self.mods = split_ops(sp[1]) if len(sp) > 1 else ([], [])
        mn, ops = self.mn, self.ops
        self.w = set(); self.r = set()
        self.kind = "other"
        self.passes = 0
        self.srcC = set(); self.srcAB = set()
        allr = lambda lst: set().union(*[regs_of(o) for o in lst]) if lst else set()
        if mn.startswith("v_mfma") or mn.startswith("v_smfmac"):
            self.kind = "mfma"
            self.passes = 16 if "32x32x1_2b" in mn else (8 if "32x32" in mn else 4)
            self.w = regs_of(ops[0])
            if mn.startswith("v_smfmac"):
                self.srcC = regs_of(ops[0]); self.srcAB = allr(ops[1:])
            else:
                self.srcC = regs_of(ops[3]); self.srcAB = allr(ops[1:3])
            self.r = self.srcC | self.srcAB
        elif mn.startswith("v_cmp"):
            self.kind = "valu"; self.w = regs_of(ops[0]); self.r = allr(ops[1:])
            if mn.startswith("v_cmpx"): self.w |= regs_of("exec")
        elif mn.startswith("v_readfirstlane") or mn.startswith("v_readlane"):
            self.kind = "valu"; self.w = regs_of(ops[0]); self.r = allr(ops[1:])
        elif mn.startswith("v_permlane"):
            self.kind = "valu"; self.w = allr(ops[:2]); self.r = allr(ops[:2])
        elif mn.startswith("v_"):
            self.kind = "valu"; self.w = regs_of(ops[0]); self.r = allr(ops[1:])
            if "_co_" in mn:
                self.w |= regs_of(ops[1]); self.r = allr(ops[2:])
            if mn.startswith("v_fmac") or mn.startswith("v_pk_fmac") or mn.startswith("v_dot2c"):
                self.r |= self.w
            if mn.startswith("v_cndmask") and len(ops) == 3: self.r |= regs_of("vcc")
            if "dpp" in mn or any(m.startswith("row_") or m.startswith("quad_perm") for m in self.mods):
                self.dpp = True
                self.r |= self.w
        elif mn.startswith("ds_"):
            self.kind = "ds"
            if mn.startswith("ds_read") or mn.startswith("ds_bpermute") or mn.startswith("ds_swizzle"):
                self.w = regs_of(ops[0]); self.r = allr(ops[1:])
            else:
                self.r = allr(ops)
        elif mn.startswith("buffer_") or mn.startswith("global_"):
            self.kind = "vmem"
            lds = "lds" in self.mods or "_lds_" in mn
            self.lds = lds
            if mn.startswith("buffer_inv") or mn.startswith("buffer_wbl2"):
                pass
            elif "load" in mn and not lds:
                self.w = regs_of(ops[0]); self.r = allr(ops[1:])
            elif "load" in mn and lds:
                self.r = allr(ops) | regs_of("m0")
            elif "atomic" in mn:
                self.r = allr(ops)
                if "sc0" in self.mods: self.w = regs_of(ops[0])
            else:
                self.r = allr(ops)
        elif mn.startswith("s_"):
            self.kind = "salu"
            if mn in ("s_waitcnt", "s_barrier", "s_nop", "s_endpgm", "s_branch", "s_sleep", "s_setprio") or mn.startswith("s_cbranch"):
                self.kind = "ctl"
            elif mn.startswith("s_cmp") or mn.startswith("s_bitcmp"):
                self.r = allr(ops)
            elif mn.startswith("s_load") or mn.startswith("s_memtime") or mn.startswith("s_memrealtime"):
                self.kind = "smem"; self.w = regs_of(ops[0]); self.r = allr(ops[1:])
            else:
                self.w = regs_of(ops[0]); self.r = allr(ops[1:])
                if "saveexec" in mn: self.w |= regs_of("exec"); self.r |= regs_of("exec")
        self.dpp = getattr(self, "dpp", False)
    def is_trans(self): return self.mn.split("_e")[0] in TRANS or any(self.mn.startswith(t) for t in TRANS)

def vregs(s): return {r for r in s if r[0] in "va"}
def sregs(s): return {r for r in s if r[0] == "s"}

def check(lines, name="", verbose=True):
    ins = []
    for l in lines:
        t = l.split(";")[0].strip()
        if not t or t.endswith(":") or t.startswith("."): continue
        ins.append(Ins(t))
    errs = []
    t = 0; last_mfma_t = -1000; last_mfma_len = 0
    times = []
    for i in ins:
        if i.kind == "mfma":
            t = max(t, last_mfma_t + last_mfma_len)
            last_mfma_t = t; last_mfma_len = 4 * i.passes
        times.append(t)
        if i.mn == "s_nop": t += 4 * (int(i.ops[0], 0) + 1)
        else: t += 4
    def need(j, k, states, why):
        if times[k] - times[j] < 4 * (states + 1):
            errs.append(f"{name}: hazard [{why}] need {states} states: '{ins[j].text}' -> '{ins[k].text}' (have {(times[k]-times[j])//4 - 1})")
    W = 40
    for k, c in enumerate(ins):
        for j in range(max(0, k - W), k):
            p = ins[j]
            if times[k] - times[j] > 4 * 26: continue
            pw = p.w
            if p.kind == "valu":
                if c.kind == "mfma" and vregs(pw) & c.r: need(j, k, 2, "valu->mfma")
                if c.kind == "valu" and c.mn.startswith("v_permlane") and vregs(pw) & c.r: need(j, k, 2, "valu->permlane")
                if c.kind == "valu" and c.dpp and vregs(pw) & c.r: need(j, k, 2, "valu->dpp")
                if c.kind == "valu" and (c.mn.startswith("v_readfirstlane") or c.mn.startswith("v_readlane")) and vregs(pw) & c.r: need(j, k, 1, "valu->readlane")
                if p.is_trans() and c.kind == "valu" and vregs(pw) & c.r: need(j, k, 1, "trans->valu")
                if c.kind == "valu" and sregs(pw) & c.r: need(j, k, 2, "valu sgpr->valu")
                if c.kind == "vmem" and sregs(pw) & c.r: need(j, k, 5, "valu sgpr->vmem")
                if ("s", 126) in pw and c.kind == "mfma": need(j, k, 4, "valu exec->mfma")
            if p.kind == "mfma":
                n_rw = {4: 8, 8: 12, 16: 20}[p.passes]
                if c.kind == "mfma":
                    if pw & c.srcAB: need(j, k, n_rw, "mfma D->mfma AB")
                    if pw & c.srcC and (pw != c.srcC): need(j, k, {4: 6, 8: 10, 16: 18}[p.passes], "mfma D->mfma C partial")
                    if pw & c.srcC and pw == c.srcC and p.passes != c.passes: need(j, k, {4: 6, 8: 10, 16: 18}[p.passes], "mfma D->mfma C diff pass")
                    if (pw & c.w) and not (pw & c.srcC): need(j, k, n_rw, "mfma D WAW mfma")
                elif c.kind in ("valu", "ds", "vmem"):
                    if pw & (c.r | c.w): need(j, k, n_rw, "mfma D->valu/mem")
                if c.kind == "valu" and (p.srcC & c.w) and not (pw & c.w): need(j, k, {4: 3, 8: 7, 16: 15}[p.passes], "mfma C WAR valu")
            if p.kind == "vmem" and "store" in p.mn and ("x4" in p.mn or "x3" in p.mn):
                data = regs_of(p.ops[0])
                if c.kind == "valu" and data & c.w: need(j, k, 2, "wide store WAR")
                elif c.kind in ("ds", "vmem", "mfma") and data & c.w: need(j, k, 1, "wide store WAR")
            if p.kind == "salu" and ("s", 124) in pw and c.kind == "vmem" and getattr(c, "lds", False): need(j, k, 1, "m0->lds dma")
    vm = []
    lg = []
    smem_out = set()
    for k, c in enumerate(ins):
        if c.mn == "s_waitcnt":
            txt = c.text
            m = re.search(r"vmcnt\((\d+)\)", txt)
            if m:
                n = int(m.group(1))
                while len(vm) > n: vm.pop(0)
            m = re.search(r"lgkmcnt\((\d+)\)", txt)
            if m:
                n = int(m.group(1))
                while len(lg) > n: lg.pop(0)
                if n == 0: smem_out = set()
            continue
        pend = set()
        for d in vm: pend |= d
        for d in lg: pend |= d
        pend |= smem_out
        bad = pend & (c.r | c.w)
        if bad and c.kind != "ctl":
            errs.append(f"{name}: uses pending load dest {sorted(bad)[:4]} in '{c.text}'")
        if c.kind == "vmem": vm.append(set(c.w))
        if c.kind == "ds": lg.append(set(c.w))
        if c.kind == "smem": smem_out |= c.w
        if len(vm) > 63: errs.append(f"{name}: vmcnt overflow at '{c.text}'")
    if verbose:
        for e in errs[:60]: print("CHECK:", e)
        print(f"check {name}: {len(ins)} insns, est lower-bound cycles {t}, {len(errs)} problems")
    return errs


import subprocess, tempfile, os
_size_cache = {}
def insn_sizes(lines):
    todo = []
    for l in lines:
        t = l.split(";")[0].strip()
        if not t or t.endswith(":") or t.startswith("."): continue
        if t not in _size_cache and t not in todo: todo.append(t)
    if todo:
        src = []
        for t in todo:
            if t.startswith("s_cbranch") or t.startswith("s_branch"):
                _size_cache[t] = 4
            elif "L_" in t:
                _size_cache[t] = 8
            else:
                src.append(t)
        p = subprocess.run(["llvm-mc", "-arch=amdgcn", "-mcpu=gfx950", "-show-encoding"],
                           input="\n".join(src) + "\n", capture_output=True, text=True)
        encs = re.findall(r"encoding: \[([^\]]*)\]", p.stdout)
        assert len(encs) == len(src), (len(encs), len(src), p.stderr[:2000])
        for t, e in zip(src, encs):
            _size_cache[t] = len(e.split(","))
    return _size_cache

_NOWIDE = ("v_readfirstlane", "v_readlane", "v_writelane", "v_accvgpr", "v_nop", "v_add_co", "v_addc_co", "v_sub_co", "v_fmac")
def can_widen(t):
    mn = t.split()[0]
    if not mn.startswith("v_") or mn.endswith("_e64") or mn.endswith("_dpp") or "dpp" in t or "row_" in t: return False
    if any(mn.startswith(x) for x in _NOWIDE): return False
    if mn.startswith("v_mfma") or mn.startswith("v_smfmac"): return False
    return True
def widen(t):
    sp = t.split(None, 1)
    mn = sp[0]
    if mn.endswith("_e32"): mn = mn[:-4]
    return mn + "_e64 " + sp[1]

def align_pass(lines, min_run=2):
    sizes = insn_sizes(lines)
    out = []
    off = 0
    last8 = 0
    idx_ins = [i for i, l in enumerate(lines) if l.split(";")[0].strip() and not l.split(";")[0].strip().endswith(":") and not l.strip().startswith(".")]
    nfix = nnop = nleft = 0
    for i, l in enumerate(lines):
        t = l.split(";")[0].strip()
        if not t or t.endswith(":"):
            out.append(l); continue
        if t.startswith("."):
            out.append(l)
            m = re.match(r"\.p2align\s+(\d+)", t)
            if m and int(m.group(1)) >= 3: off = 0; last8 = len(out)
            continue
        sz = sizes[t]
        if sz >= 8 and off % 8 == 4:
            fixed = False
            for j in range(len(out) - 1, last8 - 1, -1):
                u = out[j].split(";")[0].strip()
                if not u or u.endswith(":") or u.startswith("."): continue
                if sizes.get(u, 0) == 4 and can_widen(u):
                    w = widen(u)
                    insn_sizes([w])
                    if sizes.get(w, 0) == 8:
                        out[j] = w; off += 4; fixed = True; nfix += 1
                        break
            if not fixed:
                run = 0
                for k in range(i, len(lines)):
                    u = lines[k].split(";")[0].strip()
                    if not u or u.endswith(":") or u.startswith("."): continue
                    if sizes[u] >= 8: run += 1
                    else: break
                prev = next((u for u in (o.split(";")[0].strip() for o in reversed(out)) if u and not u.endswith(":")), "")
                shadow = prev.startswith("v_smfmac") or prev.startswith("v_mfma")
                if run >= min_run or (shadow and run >= 2):
                    out.append("s_nop 0"); off += 4; nnop += 1
                else:
                    nleft += 1
        out.append(l)
        off += sz
        if sz >= 8: last8 = len(out)
    return out, (nfix, nnop, nleft)
```

```python
from asm import *
from layout import *
NAME = "parallel_sum__memory_aug_recurrent_mem_tr__dense_activation_mish__prompt_kernel"

HEADER = """; Kernarg layout (112 bytes): A_x, A_mem0, A_Wq, A_Wk, A_Wv, A_Wo, A_seg_len, B_x, B_w1, B_b1, B_w2, out, debug, ws
; @launch grid=(256,1,1) block=(256,1,1) lds=163840
.amdgcn_target "amdgcn-amd-amdhsa--gfx950"
.text
.globl {name}
.p2align 8
.type {name},@function
{name}:
"""
FOOTER = """
.section .rodata,"a"
.p2align 6
.amdhsa_kernel {name}
  .amdhsa_next_free_vgpr 512
  .amdhsa_next_free_sgpr 96
  .amdhsa_accum_offset 256
  .amdhsa_group_segment_fixed_size 0
  .amdhsa_kernarg_size 112
  .amdhsa_user_sgpr_count 2
  .amdhsa_user_sgpr_kernarg_segment_ptr 1
  .amdhsa_system_sgpr_workgroup_id_x 1
  .amdhsa_float_denorm_mode_32 3
.end_amdhsa_kernel
"""

def entry(a):
    a("s_cmp_ge_u32 s2, 256")
    a("s_cbranch_scc1 L_end")
    a("s_load_dwordx2 s[52:53], s[0:1], 96")
    a("s_load_dwordx2 s[8:9], s[0:1], 104")
    a("s_getreg_b32 s6, hwreg(HW_REG_XCC_ID, 0, 4)")
    a("s_and_b32 s6, s6, 7")
    a("v_lshrrev_b32 v1, 6, v0")
    a("s_nop 0")
    a("v_readfirstlane_b32 s5, v1")
    a("s_waitcnt lgkmcnt(0)")
    a("s_and_b32 s9, s9, 0xffff")
    a(f"s_mov_b32 s10, {WS_BYTES}")
    a("s_mov_b32 s11, 0x20000")
    a("s_and_b32 s53, s53, 0xffff")
    a("s_mov_b32 s54, 256")
    a("s_mov_b32 s55, 0x20000")
    a("s_cmp_eq_u32 s5, 0")
    a("s_cbranch_scc0 L_ticket")
    a("v_mov_b32 v1, 1")
    a("v_mov_b32 v2, 0")
    a("s_lshl_b32 s3, s6, 2")
    a("s_mov_b64 exec, 1")
    a("buffer_atomic_add v1, off, s[52:55], s3 sc0 sc1")
    a("s_waitcnt vmcnt(0)")
    a("ds_write_b32 v2, v1")
    a("s_waitcnt lgkmcnt(0)")
    a("s_mov_b64 exec, -1")
    a.label("L_ticket")
    a("s_barrier")
    a("v_mov_b32 v2, 0")
    a("ds_read_b32 v1, v2")
    a("s_waitcnt lgkmcnt(0)")
    a("v_readfirstlane_b32 s4, v1")
    a("s_nop 3")
    a("s_barrier")
    a("s_cmp_ge_u32 s4, 32")
    a("s_cbranch_scc1 L_end")
```

```python
XN_OFF   = 0x0000000
QF_OFF   = 0x0200000
KF_OFF   = 0x1200000
VF_OFF   = 0x2200000
KVM_OFF  = 0x3200000
P_OFF    = 0x3A00000
M_OFF    = 0x3A80000
FLAG_OFF = 0x3A90000
KVMF_OFF = 0x3A92000
W2F_OFF  = 0x3A94000
QFL_OFF  = 0x3A95000
W2P_OFF  = 0x3B00000
DBG_OFF  = 0x5000000
WS_BYTES = 0x10000000

HI = 131072
KX_O = 0
R_O  = (8192, 16384)
QT_O = 24576
O_O  = 26624
KT_O = 28672
```

```python
from asm import *
from layout import *

IDX, A_MF, A_WQ0, A_WQ1, HI16, A_VX, A_QW, A_KW, A_TRQ, A_TRK, A_OW, G_PST = range(12)
G_PUB, V_FL = 12, 13
ZERO = 14
SV1 = 15
MF = 16
RING = 48
ACCQ, ACCK, ACCV = 104, 112, 120
WO = 128
KXF = 64
QF = (96, 100, 48, 52)
KV4 = 56
SENT = 60
PT = 116
OACC = 96
OF = 48

S_H, S_W = 4, 5
SRD_WS = 8
S_STEP = 16
S_FAIL = 17
S_CNT = 18
S_C = 20
S_ODD = 22
S_PST = 24
S_PLD = 28
S_MLD = 30
S_PUB = 32
S_KVM = 34
S_KD = 35
S_VD = 36
S_FLG = 37
S_KVMF = 38
S_SEL = 56
S_T0, S_T1, S_T2 = 41, 42, 43
S_FLG0 = 19
S_TM = 44
SRD_W = 48
SRD_DBG = 52
SPIN_MAX = 1 << 19
FAST = False
OPT = set()

C_SCALE = (128 ** -0.5) * 1.4426950408889634


def f2u(x):
    import struct
    return struct.unpack("<I", struct.pack("<f", x))[0]


def weave(a, mf, fill, per=1):
    fill = list(fill)
    for m in mf:
        a(m)
        for _ in range(per):
            if fill:
                x = fill.pop(0)
                if x is not None:
                    a(x)
    for x in fill:
        if x is not None:
            a(x)


def wq_read(phi, half):
    T, tile = phi >> 1, phi & 1
    slot = phi % 7
    r = RING + 8 * slot + 4 * half
    base = A_WQ0 if T < 4 else A_WQ1
    off = (T & 3) * 16384 + tile * 2048 + half * 1024
    return f"ds_read_b128 {V(r,4)}, {V(base)} offset:{off}"


def lane_setup(a, l):
    a(f"v_and_b32 {V(l)}, 63, v0")


def emit_spin_check(a, lab_retry, lab_done):
    a(f"s_add_u32 {S(S_CNT)}, {S(S_CNT)}, 1")
    a(f"s_cmp_lt_u32 {S(S_CNT)}, {SPIN_MAX}")
    a(f"s_cbranch_scc1 {lab_retry}")
    a(f"s_mov_b32 {S(S_FAIL)}, 1")


def poll_word(a, srd, soff_text, cond_text, vtmp, name):
    L = a.newlabel("L_pw_" + name)
    D = L + "_d"
    a(f"s_mov_b32 {S(S_CNT)}, 0")
    a.label(L)
    a(f"s_cmp_eq_u32 {S(S_FAIL)}, 1")
    a(f"s_cbranch_scc1 {D}")
    a(f"buffer_load_dword {V(vtmp)}, off, {S(srd,4)}, {soff_text} sc1")
    a("s_waitcnt vmcnt(0)")
    a(f"v_readfirstlane_b32 {S(S_T0)}, {V(vtmp)}")
    a("s_nop 3")
    a(cond_text)
    a(f"s_cbranch_scc1 {D}")
    a("s_sleep 2")
    emit_spin_check(a, L, D)
    a.label(D)


def prologue(a, dbg=False):
    L, N, G, T1, T2, T3 = 100, 101, 102, 103, 104, 105
    a(f"s_mov_b32 {S(S_FAIL)}, 0")
    a(f"v_and_b32 {V(L)}, 63, v0")
    a(f"v_and_b32 {V(N)}, 15, {V(L)}")
    a(f"v_lshrrev_b32 {V(G)}, 4, {V(L)}")
    for i in range(4):
        a(f"v_mov_b32 {V(20+i)}, -1")
    a(f"s_lshl_b32 {S(S_T0)}, {S(S_H)}, 13")
    a(f"s_lshl_b32 {S(S_T1)}, {S(S_W)}, 11")
    a(f"s_add_u32 {S(S_T0)}, {S(S_T0)}, {S(S_T1)}")
    a(f"s_add_u32 {S(S_T0)}, {S(S_T0)}, {P_OFF}")
    a(f"s_add_u32 {S(S_T1)}, {S(S_T0)}, 262144")
    a(f"v_lshlrev_b32 {V(T1)}, 4, {V(L)}")
    for i in range(2):
        a(f"buffer_store_dwordx4 {V(20,4)}, {V(T1)}, {S(SRD_WS,4)}, {S(S_T0)} offen offset:{i*1024}")
    a(f"v_lshlrev_b32 {V(T1)}, 13, {V(G)}")
    a(f"v_lshlrev_b32 {V(T2)}, 4, {V(N)}")
    a(f"v_add_u32 {V(T1)}, {V(T1)}, {V(T2)}")
    a(f"v_mov_b32 {V(T2)}, 0x7ff00000")
    a(f"v_cmp_gt_u32 vcc, 32, {V(L)}")
    a("s_nop 1")
    a(f"v_cndmask_b32 {V(T1)}, {V(T2)}, {V(T1)}, vcc")
    a(f"s_lshl_b32 {S(S_T0)}, {S(S_H)}, 8")
    a(f"s_add_u32 {S(S_T0)}, {S(S_T0)}, {M_OFF}")
    a(f"buffer_store_dwordx4 {V(20,4)}, {V(T1)}, {S(SRD_WS,4)}, {S(S_T0)} offen")
    a("s_load_dwordx2 s[56:57], s[0:1], 8")
    a("s_load_dwordx2 s[58:59], s[0:1], 16")
    a("s_load_dwordx2 s[60:61], s[0:1], 24")
    a("s_load_dwordx2 s[62:63], s[0:1], 32")
    a("s_load_dwordx2 s[64:65], s[0:1], 40")
    a(f"v_and_b32 {V(T1)}, 3, v0")
    a(f"v_lshlrev_b32 {V(T1)}, 11, {V(T1)}")
    a(f"v_bfe_u32 {V(T2)}, v0, 2, 1")
    a(f"v_lshlrev_b32 {V(T2)}, 6, {V(T2)}")
    a(f"v_add_u32 {V(T1)}, {V(T1)}, {V(T2)}")
    a(f"v_bfe_u32 {V(T2)}, v0, 3, 4")
    a(f"v_lshlrev_b32 {V(T2)}, 1, {V(T2)}")
    a(f"v_add_u32 {V(T1)}, {V(T1)}, {V(T2)}")
    a(f"v_lshrrev_b32 {V(T2)}, 7, v0")
    a(f"v_lshlrev_b32 {V(T2)}, 7, {V(T2)}")
    a(f"v_add_u32 {V(T1)}, {V(T1)}, {V(T2)}")
    a("s_waitcnt lgkmcnt(0)")
    a(f"s_mov_b32 {S(SRD_W)}, s56")
    a(f"s_and_b32 {S(SRD_W+1)}, s57, 0xffff")
    a(f"s_mov_b32 {S(SRD_W+2)}, 8192")
    a(f"s_mov_b32 {S(SRD_W+3)}, 0x20000")
    for k in range(4):
        for e, off in enumerate((0, 32, 1024, 1024 + 32)):
            a(f"buffer_load_ushort {V(64+4*k+e)}, {V(T1)}, {S(SRD_W,4)}, 0 offen offset:{k*256+off}")
    for dst, src in ((68, 60), (72, 62), (76, 64), (80, 58)):
        a(f"s_mov_b32 {S(dst)}, {S(src)}")
        a(f"s_and_b32 {S(dst+1)}, {S(src+1)}, 0xffff")
        a(f"s_mov_b32 {S(dst+2)}, 0x400000")
        a(f"s_mov_b32 {S(dst+3)}, 0x20000")
    a(f"s_and_b32 {S(S_T0)}, {S(S_W)}, 1")
    a(f"s_lshl_b32 {S(S_T0)}, {S(S_T0)}, 3")
    a(f"v_and_b32 {V(T1)}, 1, {V(G)}")
    a(f"v_lshlrev_b32 {V(T1)}, 1, {V(T1)}")
    a(f"v_or_b32 {V(T1)}, {S(S_T0)}, {V(T1)}")
    a(f"v_xor_b32 {V(T1)}, {V(T1)}, {V(N)}")
    a(f"s_lshl_b32 {S(S_T1)}, {S(S_W)}, 4")
    a(f"s_lshl_b32 {S(S_T2)}, {S(S_H)}, 8")
    for i in range(4):
        a(f"v_xor_b32 {V(T2)}, {4*(i&1)}, {V(T1)}")
        a(f"v_lshlrev_b32 {V(T2)}, 4, {V(T2)}")
        a(f"v_add_u32 {V(T3)}, {S(S_T1)}, {V(G)}")
        a(f"v_add_u32 {V(T3)}, {4*i}, {V(T3)}")
        a(f"v_lshlrev_b32 {V(24+i)}, 13, {V(T3)}")
        a(f"v_add_u32 {V(24+i)}, {V(24+i)}, {V(T2)}")
        a(f"v_add_u32 {V(24+i)}, {S(S_T2)}, {V(24+i)}")
        a(f"v_lshlrev_b32 {V(28+i)}, 10, {V(T3)}")
        a(f"v_add_u32 {V(28+i)}, {V(28+i)}, {V(T2)}")
    a(f"v_lshrrev_b32 {V(T1)}, 2, {V(N)}")
    a(f"v_and_b32 {V(T2)}, 3, {V(N)}")
    a(f"v_lshrrev_b32 {V(T3)}, 1, {V(G)}")
    a(f"v_lshlrev_b32 {V(32)}, 5, {V(T3)}")
    a(f"v_and_b32 {V(T3)}, 1, {V(G)}")
    a(f"v_lshlrev_b32 {V(33)}, 2, {V(T3)}")
    a(f"v_add_u32 {V(32)}, {V(32)}, {V(33)}")
    a(f"v_lshrrev_b32 {V(T3)}, 1, {V(T1)}")
    a(f"v_lshlrev_b32 {V(34)}, 4, {V(T3)}")
    a(f"v_add_u32 {V(32)}, {V(32)}, {V(34)}")
    a(f"v_lshlrev_b32 {V(34)}, 3, {V(T3)}")
    a(f"v_add_u32 {V(33)}, {V(33)}, {V(34)}")
    a(f"v_and_b32 {V(T3)}, 1, {V(T1)}")
    a(f"v_add_u32 {V(32)}, {V(32)}, {V(T3)}")
    a(f"v_lshlrev_b32 {V(34)}, 1, {V(T3)}")
    a(f"v_add_u32 {V(33)}, {V(33)}, {V(34)}")
    a(f"v_lshlrev_b32 {V(32)}, 8, {V(32)}")
    a(f"v_lshlrev_b32 {V(34)}, 3, {V(T2)}")
    a(f"v_add_u32 {V(32)}, {V(32)}, {V(34)}")
    a(f"v_lshlrev_b32 {V(33)}, 4, {V(33)}")
    for fp in range(2):
        a(f"s_lshl_b32 {S(S_T0)}, {S(S_W)}, 6")
        a(f"s_add_u32 {S(S_T0)}, {S(S_T0)}, {32*fp}")
        a(f"v_xor_b32 {V(35+fp)}, {S(S_T0)}, {V(33)}")
        a(f"v_add_u32 {V(35+fp)}, {V(35+fp)}, {V(32)}")
    a(f"s_lshl_b32 {S(S_T0)}, {S(S_W)}, 12")
    a(f"v_lshlrev_b32 {V(T1)}, 4, {V(L)}")
    a(f"v_add_u32 {V(A_WQ0)}, {S(S_T0)}, {V(T1)}")
    a(f"v_add_u32 {V(A_WQ1)}, 0x10000, {V(A_WQ0)}")
    a(f"v_add_u32 {V(HI16)}, {HI}, {V(T1)}")

    def dma_chunk(i):
        slot = i & 7
        mat, j = i >> 3, i & 7
        for k in range(4):
            a(f"s_lshl_b32 {S(S_T0)}, {S(S_W)}, 12")
            a(f"s_add_u32 m0, {S(S_T0)}, {slot*16384 + k*1024}")
            if mat == 2:
                a(f"s_lshl_b32 {S(S_T1)}, {S(S_H)}, 17")
                a(f"s_add_u32 {S(S_T1)}, {S(S_T1)}, {(j>>2)*65536 + (j&3)*256}")
                a(f"buffer_load_dwordx4 {V(28+k)}, {S(76,4)}, {S(S_T1)} offen lds")
            else:
                srd = {0: 68, 1: 72, 3: 80}[mat]
                a(f"s_mov_b32 {S(S_T1)}, {j*524288}")
                a(f"buffer_load_dwordx4 {V(24+k)}, {S(srd,4)}, {S(S_T1)} offen lds")

    for i in range(8):
        dma_chunk(i)
    for i in range(32):
        slot = i & 7
        mat, j = i >> 3, i & 7
        later = min(i + 7, 31) - i
        a(f"s_waitcnt vmcnt({4*later})")
        a("s_barrier")
        if i == 0:
            Ls = a.newlabel("L_arr")
            a(f"s_cmp_eq_u32 {S(S_W)}, 0")
            a(f"s_cbranch_scc0 {Ls}")
            a(f"v_mov_b32 {V(T1)}, 1")
            a(f"s_mov_b64 s[56:57], exec")
            a(f"s_mov_b64 exec, 1")
            a(f"s_mov_b32 {S(S_T0)}, 36")
            a(f"buffer_atomic_add {V(T1)}, off, {S(SRD_DBG,4)}, {S(S_T0)} sc1")
            a(f"s_mov_b64 exec, s[56:57]")
            a.label(Ls)
            a(f"v_lshlrev_b32 {V(T1)}, 3, v0")
            a(f"v_add_u32 {V(T1)}, {HI + R_O[0]}, {V(T1)}")
            for k in range(4):
                a(f"v_lshl_or_b32 {V(64+4*k)}, {V(65+4*k)}, 16, {V(64+4*k)}")
                a(f"v_lshl_or_b32 {V(65+4*k)}, {V(67+4*k)}, 16, {V(66+4*k)}")
                a(f"ds_write_b64 {V(T1)}, {V(64+4*k,2)} offset:{k*2048}")
        if mat != 2:
            for fp in range(2):
                a(f"v_add_u32 {V(37+fp)}, {slot*16384}, {V(35+fp)}")
            for fp in range(2):
                for q in range(4):
                    off = (8 * (q >> 1) + 2 * (q & 1)) * 256
                    if mat == 0: dst = A((fp * 8 + j) * 8 + 2 * q, 2)
                    elif mat == 1: dst = A(128 + (fp * 8 + j) * 8 + 2 * q, 2)
                    else: dst = V(40 + 8 * fp + 2 * q, 2)
                    a(f"ds_read_b64_tr_b16 {dst}, {V(37+fp)} offset:{off}")
        else:
            Ls = a.newlabel("L_wo")
            T, wp = j >> 2, j & 3
            a(f"s_cmp_eq_u32 {S(S_W)}, {wp}")
            a(f"s_cbranch_scc0 {Ls}")
            for tau in range(8):
                a(f"v_xor_b32 {V(37)}, {32*tau}, {V(33)}")
                a(f"v_add_u32 {V(37)}, {V(37)}, {V(32)}")
                a(f"v_add_u32 {V(37)}, {slot*16384}, {V(37)}")
                for q in range(4):
                    off = (8 * (q >> 1) + 2 * (q & 1)) * 256
                    a(f"ds_read_b64_tr_b16 {V(WO + (tau*2+T)*8 + 2*q, 2)}, {V(37)} offset:{off}")
                if tau & 1:
                    a("s_waitcnt lgkmcnt(0)")
            a.label(Ls)
        a("s_waitcnt lgkmcnt(0)")
        a("s_barrier")
        if mat == 3:
            base = A_WQ0 if j < 4 else A_WQ1
            for fp in range(2):
                for half in range(2):
                    a(f"ds_write_b128 {V(base)}, {V(40+8*fp+4*half,4)} offset:{(j&3)*16384 + fp*2048 + half*1024}")
            a("s_waitcnt lgkmcnt(0)")
        if i + 8 < 32:
            dma_chunk(i + 8)

    R_, C_ = T1, T2
    a(f"v_and_b32 {V(L)}, 63, v0")
    a(f"v_lshrrev_b32 {V(R_)}, 2, {V(N)}")
    a(f"v_and_b32 {V(C_)}, 3, {V(N)}")
    a(f"v_and_b32 {V(T3)}, 1, {V(L)}")
    a(f"v_cmp_eq_u32 vcc, 1, {V(T3)}")
    a(f"v_mov_b32 {V(IDX)}, 0x44444444")
    a(f"v_mov_b32 {V(T3)}, 0xeeeeeeee")
    a(f"v_cndmask_b32 {V(IDX)}, {V(IDX)}, {V(T3)}, vcc")
    a(f"v_lshrrev_b32 {V(T3)}, 1, {V(G)}")
    a(f"v_lshlrev_b32 {V(T3)}, 3, {V(T3)}")
    a(f"v_add_u32 {V(T3)}, {V(T3)}, {V(R_)}")
    a(f"v_lshlrev_b32 {V(A_MF)}, 6, {V(T3)}")
    a(f"v_and_b32 {V(T3)}, 1, {V(G)}")
    a(f"v_lshlrev_b32 {V(T3)}, 5, {V(T3)}")
    a(f"v_add_u32 {V(A_MF)}, {V(A_MF)}, {V(T3)}")
    a(f"v_lshlrev_b32 {V(T3)}, 3, {V(C_)}")
    a(f"v_add_u32 {V(A_MF)}, {V(A_MF)}, {V(T3)}")
    a(f"v_add_u32 {V(A_MF)}, {HI}, {V(A_MF)}")
    a(f"s_lshl_b32 {S(S_T0)}, {S(S_W)}, 11")
    a(f"v_add_u32 {V(A_VX)}, {S(S_T0)}, {V(HI16)}")
    a(f"s_lshl_b32 {S(S_T0)}, {S(S_W)}, 5")
    a(f"v_add_u32 {V(T3)}, {S(S_T0)}, {V(N)}")
    a(f"v_lshlrev_b32 {V(A_QW)}, 4, {V(T3)}")
    a(f"v_lshl_add_u32 {V(A_QW)}, {V(G)}, 2, {V(A_QW)}")
    a(f"v_add_u32 {V(A_QW)}, {HI}, {V(A_QW)}")
    a(f"v_lshlrev_b32 {V(A_KW)}, 5, {V(T3)}")
    a(f"v_add_u32 {V(T3)}, {V(G)}, {V(R_)}")
    a(f"v_and_b32 {V(T3)}, 3, {V(T3)}")
    a(f"v_lshl_add_u32 {V(A_KW)}, {V(T3)}, 3, {V(A_KW)}")
    a(f"v_add_u32 {V(A_KW)}, {HI}, {V(A_KW)}")
    a(f"v_lshl_add_u32 {V(T3)}, {V(G)}, 2, {V(R_)}")
    a(f"v_lshlrev_b32 {V(A_TRQ)}, 4, {V(T3)}")
    a(f"v_lshlrev_b32 {V(A_TRK)}, 5, {V(T3)}")
    a(f"v_and_b32 {V(T3)}, 1, {V(C_)}")
    a(f"v_lshl_add_u32 {V(A_TRQ)}, {V(T3)}, 3, {V(A_TRQ)}")
    a(f"v_add_u32 {V(A_TRQ)}, {HI}, {V(A_TRQ)}")
    a(f"v_add_u32 {V(T3)}, {V(C_)}, {V(G)}")
    a(f"v_and_b32 {V(T3)}, 3, {V(T3)}")
    a(f"v_lshl_add_u32 {V(A_TRK)}, {V(T3)}, 3, {V(A_TRK)}")
    a(f"v_add_u32 {V(A_TRK)}, {HI}, {V(A_TRK)}")
    a(f"v_lshrrev_b32 {V(T3)}, 1, {V(G)}")
    a(f"v_lshlrev_b32 {V(A_OW)}, 9, {V(T3)}")
    a(f"v_and_b32 {V(T3)}, 1, {V(G)}")
    a(f"v_lshl_add_u32 {V(A_OW)}, {V(T3)}, 3, {V(A_OW)}")
    a(f"v_and_b32 {V(T3)}, 7, {V(N)}")
    a(f"v_lshl_add_u32 {V(A_OW)}, {V(T3)}, 5, {V(A_OW)}")
    a(f"v_lshrrev_b32 {V(T3)}, 3, {V(N)}")
    a(f"v_lshl_add_u32 {V(A_OW)}, {V(T3)}, 4, {V(A_OW)}")
    a(f"s_lshr_b32 {S(S_T0)}, {S(S_W)}, 1")
    a(f"s_lshl_b32 {S(S_T0)}, {S(S_T0)}, 10")
    a(f"s_and_b32 {S(S_T1)}, {S(S_W)}, 1")
    a(f"s_lshl_b32 {S(S_T1)}, {S(S_T1)}, 8")
    a(f"s_add_u32 {S(S_T0)}, {S(S_T0)}, {S(S_T1)}")
    a(f"s_add_u32 {S(S_T0)}, {S(S_T0)}, {HI + O_O}")
    a(f"v_add_u32 {V(A_OW)}, {S(S_T0)}, {V(A_OW)}")
    a(f"s_lshl_b32 {S(S_T0)}, {S(S_W)}, 3")
    a(f"v_add_u32 {V(T3)}, {S(S_T0)}, {V(R_)}")
    a(f"v_lshlrev_b32 {V(G_PST)}, 13, {V(T3)}")
    a(f"v_bfe_u32 {V(T3)}, {V(N)}, 1, 1")
    a(f"v_lshl_add_u32 {V(G_PST)}, {V(T3)}, 12, {V(G_PST)}")
    a(f"v_and_b32 {V(T3)}, 1, {V(N)}")
    a(f"v_lshl_add_u32 {V(G_PST)}, {V(T3)}, 6, {V(G_PST)}")
    a(f"v_lshl_add_u32 {V(G_PST)}, {V(G)}, 4, {V(G_PST)}")
    a(f"s_lshl_b32 {S(S_T0)}, {S(S_H)}, 7")
    a(f"v_add_u32 {V(G_PST)}, {S(S_T0)}, {V(G_PST)}")
    a(f"v_mov_b32 {V(ZERO)}, 0")
    a(f"v_and_b32 {V(T3)}, 8, {V(L)}")
    a(f"v_cmp_ne_u32 {S(S_ODD,2)}, 0, {V(T3)}")
    a(f"s_mov_b32 {S(S_C)}, {f2u(C_SCALE):#x}")
    a(f"s_mov_b32 {S(S_C+1)}, {f2u(C_SCALE):#x}")
    for par in range(2):
        for i in range(2):
            a(f"s_mov_b32 {S(S_PST+2*par+i)}, {P_OFF + i*32768}")
        a(f"s_mov_b32 {S(S_PUB+par)}, {M_OFF + par*8192}")
    a(f"s_lshl_b32 {S(S_T0)}, {S(S_H)}, 13")
    a(f"s_and_b32 {S(S_T1)}, {S(S_W)}, 1")
    a(f"s_lshl_b32 {S(S_T1)}, {S(S_T1)}, 12")
    a(f"s_add_u32 {S(S_T0)}, {S(S_T0)}, {S(S_T1)}")
    a(f"s_add_u32 {S(S_PLD)}, {S(S_T0)}, {P_OFF - HI}")
    a(f"s_add_u32 {S(S_KD)}, {S(S_T0)}, {KF_OFF - HI}")
    a(f"s_add_u32 {S(S_VD)}, {S(S_T0)}, {VF_OFF - HI}")
    a(f"s_lshl_b32 {S(S_T2)}, {S(S_W)}, 11")
    for par in range(2):
        a(f"s_add_u32 {S(S_MLD+par)}, {S(S_T2)}, {M_OFF + par*8192 - HI}")
    a(f"s_lshl_b32 {S(S_T0)}, {S(S_H)}, 12")
    a(f"s_lshl_b32 {S(S_T2)}, {S(S_W)}, 10")
    a(f"s_add_u32 {S(S_T0)}, {S(S_T0)}, {S(S_T2)}")
    a(f"s_add_u32 {S(S_KVM)}, {S(S_T0)}, {KVM_OFF - HI}")
    a(f"s_lshl_b32 {S(S_T0)}, {S(S_H)}, 2")
    a(f"s_add_u32 {S(S_FLG)}, {S(S_T0)}, {FLAG_OFF}")
    a(f"s_add_u32 {S(S_KVMF)}, {S(S_T0)}, {KVMF_OFF}")
    a(f"s_mov_b32 {S(S_STEP)}, 0")
    a(f"v_lshrrev_b32 {V(T3)}, 1, {V(G)}")
    a(f"v_lshlrev_b32 {V(G_PUB)}, 5, {V(T3)}")
    a(f"v_lshl_add_u32 {V(G_PUB)}, {V(C_)}, 3, {V(G_PUB)}")
    a(f"v_and_b32 {V(T3)}, 1, {V(G)}")
    a(f"v_lshl_add_u32 {V(G_PUB)}, {V(T3)}, 2, {V(G_PUB)}")
    a(f"v_bfe_u32 {V(T3)}, {V(N)}, 2, 1")
    a(f"v_lshl_add_u32 {V(G_PUB)}, {V(T3)}, 6, {V(G_PUB)}")
    a(f"s_lshl_b32 {S(S_T0)}, {S(S_H)}, 8")
    a(f"s_and_b32 {S(S_T2)}, {S(S_W)}, 1")
    a(f"s_lshl_b32 {S(S_T2)}, {S(S_T2)}, 7")
    a(f"s_add_u32 {S(S_T0)}, {S(S_T0)}, {S(S_T2)}")
    a(f"v_add_u32 {V(G_PUB)}, {S(S_T0)}, {V(G_PUB)}")
    a(f"v_and_b32 {V(T3)}, 8, {V(L)}")
    a(f"v_cmp_ne_u32 vcc, 0, {V(T3)}")
    a(f"v_mov_b32 {V(T3)}, 0x7ff00000")
    a("s_nop 0")
    a(f"v_cndmask_b32 {V(G_PUB)}, {V(G_PUB)}, {V(T3)}, vcc")
    a(f"v_bfe_u32 {V(T3)}, {V(N)}, 2, 1")
    a(f"v_lshlrev_b32 {V(T3)}, 4, {V(T3)}")
    a(f"v_mov_b32 {V(SV1)}, 0x3f80")
    a(f"v_lshlrev_b32 {V(SV1)}, {V(T3)}, {V(SV1)}")
    a(f"v_lshrrev_b32 {V(T3)}, 3, {V(N)}")
    a(f"v_lshlrev_b32 {V(T3)}, 1, {V(T3)}")
    a(f"v_and_b32 {V(106)}, 3, {V(N)}")
    a(f"v_add_u32 {V(T3)}, {V(T3)}, {V(106)}")
    a(f"v_bfe_u32 {V(106)}, {V(N)}, 1, 1")
    a(f"v_lshlrev_b32 {V(106)}, 4, {V(106)}")
    a(f"v_add_u32 {V(T3)}, {V(T3)}, {V(106)}")
    for rho in range(4):
        a(f"v_cmp_eq_u32 {S(S_SEL+2*rho,2)}, {rho}, {V(T3)}")
    Lp = a.newlabel("L_nof")
    a(f"s_cmp_lt_u32 {S(S_W)}, 2")
    a(f"s_cbranch_scc1 {Lp}")
    poll_word(a, SRD_DBG, "32", f"s_cmp_ge_u32 {S(S_T0)}, 224", T3, "c0")
    poll_word(a, SRD_WS, S(S_FLG), f"s_cmp_eq_u32 {S(S_T0)}, 1", T3, "kv0")
    for x in kv_dma_list(KX_O, R_O[1]): a(x)
    a(f"s_add_u32 {S(S_FLG)}, {S(S_FLG)}, 128")
    a(f"buffer_load_dword {V(V_FL)}, off, {S(SRD_WS,4)}, {S(S_FLG)} sc1")
    a.label(Lp)
    poll_word(a, SRD_DBG, "36", f"s_cmp_ge_u32 {S(S_T0)}, 32", T3, "team")
    a("s_barrier")
    emit_idle_prep(a)
    a("s_waitcnt vmcnt(0) lgkmcnt(0)")


PARAM = dict(pre1=0, pre2=0)

def dma_list(lds_off, sreg):
    out = [f"s_and_b32 {S(S_T1)}, {S(S_W)}, 1",
           f"s_lshl_b32 {S(S_T1)}, {S(S_T1)}, 12",
           f"s_add_u32 m0, {S(S_T1)}, {HI + lds_off}",
           "s_nop 0"]
    for i in range(4):
        out.append(f"buffer_load_dwordx4 {V(HI16)}, {S(SRD_WS,4)}, {S(sreg)} offen offset:{i*1024} {PARAM.get('dmaf','')} lds")
    out.append(f"s_add_u32 {S(sreg)}, {S(sreg)}, 262144")
    return out

def kv_dma_list(kx_off, vx_off):
    return dma_list(kx_off, S_KD) + dma_list(vx_off, S_VD)


def idle_prep_list():
    out = []
    for phi in range(7):
        for half in range(2):
            out.append(wq_read(phi, half))
    for r in range(ACCQ, ACCV + 8, 2):
        out.append(f"v_mov_b64 {V(r,2)}, 0")
    return out

def emit_idle_prep(a):
    for x in idle_prep_list(): a(x)


TS = 64
TACC = 84
def stamp(a, k, timing):
    if timing: a(f"s_memtime {S(TS+2*k,2)}")
def stamp_acc(a, n, timing):
    if not timing: return
    for k in range(n - 1):
        a(f"s_sub_u32 {S(S_T0)}, {S(TS+2*(k+1))}, {S(TS+2*k)}")
        a(f"s_add_u32 {S(TACC+k)}, {S(TACC+k)}, {S(S_T0)}")


def smf(d, aa, b):
    return f"v_smfmac_f32_16x16x64_bf16 {V(d,4)}, {V(aa,4)}, {b}, {V(IDX)}"

def delay(a, cyc):
    n = cyc // 64
    for _ in range(n): a("s_nop 15")
    r = (cyc % 64) // 4
    if r: a(f"s_nop {r-1}")


def step(a, par, role, dbg=False, timing=False):
    P = role == "P"
    MR, VR = R_O[par], R_O[par ^ 1]
    LEND = a.newlabel("L_stepend")
    def tp(k):
        if f"trunc{k}" in OPT:
            if par == 1:
                a(f"s_cmp_eq_u32 {S(S_STEP)}, 63")
                a(f"s_cbranch_scc1 L_rec_fin")
            a(f"s_branch {LEND}")
    for T in range(8):
        for hf in range(2):
            a(f"ds_read_b64_tr_b16 {V(MF+4*T+2*hf,2)}, {V(A_MF)} offset:{MR + T*1024 + hf*256}")
    if P and "nokvm" not in OPT:
        Ls = a.newlabel("L_kvmf")
        a(f"s_cmp_eq_u32 {S(S_KVMF+1)}, 0")
        a(f"s_cbranch_scc1 {Ls}")
        a(f"buffer_store_dword {V(IDX)}, off, {S(SRD_WS,4)}, {S(S_KVMF)} sc1")
        a(f"s_add_u32 {S(S_KVMF)}, {S(S_KVMF)}, 128")
        a.label(Ls)
        a(f"s_mov_b32 {S(S_KVMF+1)}, {S(S_KVMF+2)}")
    tp(0)
    order = []
    for T in range(8):
        if T < 7:
            order += [("q", 0, T), ("k", 0, T), ("q", 1, T), ("k", 1, T)]
        else:
            order += [("q", 0, T), ("q", 1, T), ("k", 0, T), ("k", 1, T)]
    mf = []
    for kind, tile, T in order:
        if kind == "q":
            mf.append(smf(ACCQ + 4 * tile, MF + 4 * T, V(RING + 8 * ((2 * T + tile) % 7), 8)))
        else:
            mf.append(smf(ACCK + 4 * tile, MF + 4 * T, A((tile * 8 + T) * 8, 8)))
    qpos = {2 * T + tile: mu for mu, (kind, tile, T) in enumerate(order) if kind == "q"}
    fillers = {}
    for phi in range(9):
        mu = qpos[phi]
        fillers[mu] = (wq_read(phi + 7, 0), ("wq", phi + 7))
        fillers[mu + 1] = (wq_read(phi + 7, 1), ("wq", phi + 7))
    kx = [(u, tt) for u in range(4) for tt in range(2)]
    for n_, (u, tt) in enumerate(kx):
        mu = qpos[9 + (n_ >> 1)] + (n_ & 1)
        fillers[mu] = (f"ds_read_b128 {V(KXF + 4*(2*u+tt), 4)}, {V(HI16)} offset:{KX_O + (tt*4+u)*1024}", ("kx", n_))
    tags = [("mf", T) for T in range(8) for _ in range(2)]
    waited = -1
    BM = PARAM.get("bm", 8)
    vx = []
    fx = (not P) and "nofx" not in OPT
    if fx:
        Lok = a.newlabel("L_kvok")
        a(f"v_readfirstlane_b32 {S(S_T0)}, {V(V_FL)}")
        a("s_nop 3")
        a(f"s_cmp_eq_u32 {S(S_T0)}, 1")
        a(f"s_cbranch_scc1 {Lok}")
        if not FAST:
            poll_word(a, SRD_WS, S(S_FLG), f"s_cmp_eq_u32 {S(S_T0)}, 1", V_FL, "kv")
        a.label(Lok)
        vx = dma_list(MR, S_VD)
    for mu, (kind, tile, T) in enumerate(order):
        if mu == BM:
            n_after = min(len(tags) - 16, 15)
            a(f"s_waitcnt lgkmcnt({n_after})")
            waited = max(waited, len(tags) - 1 - n_after)
            a("s_barrier")
        need = [("mf", T)]
        if kind == "q" and 2 * T + tile >= 7: need.append(("wq", 2 * T + tile))
        idxs = [k for k, tg in enumerate(tags) if tg in need]
        last = max(idxs)
        if last > waited:
            n_after = min(len(tags) - 1 - last, 15)
            a(f"s_waitcnt lgkmcnt({n_after})")
            waited = len(tags) - 1 - n_after
        a(mf[mu])
        if mu in fillers:
            a(fillers[mu][0]); tags.append(fillers[mu][1])
        if mu >= BM and vx and (mu - BM) % PARAM.get("vsp", 4) == 0:
            while vx:
                x = vx.pop(0); a(x)
                if x.startswith("buffer"): break
    for x in vx: a(x)
    tp(1)
    vm = []
    for T in range(8):
        for tile in range(2):
            vm.append(smf(ACCV + 4 * tile, MF + 4 * T, A(128 + (tile * 8 + T) * 8, 8)))
    def vmf(n=1):
        for _ in range(n):
            if vm: a(vm.pop(0))
    for tile in range(2):
        a(f"v_add_f32 {V(ACCQ+4*tile)}, {V(ACCQ+4*tile)}, {V(ACCQ+4*tile+1)}")
        a(f"v_add_f32 {V(ACCQ+4*tile+2)}, {V(ACCQ+4*tile+2)}, {V(ACCQ+4*tile+3)}")
    for tile in range(2):
        a(f"v_cvt_pk_bf16_f32 {V(ACCQ+4*tile+1)}, {V(ACCQ+4*tile)}, {V(ACCQ+4*tile+2)}")
    a(f"ds_write_b32 {V(A_QW)}, {V(ACCQ+1)} offset:{QT_O}")
    a(f"ds_write_b32 {V(A_QW)}, {V(ACCQ+5)} offset:{QT_O+256}")
    for tile in range(2):
        a(f"v_add_f32 {V(ACCK+4*tile)}, {V(ACCK+4*tile)}, {V(ACCK+4*tile+1)}")
        a(f"v_add_f32 {V(ACCK+4*tile+2)}, {V(ACCK+4*tile+2)}, {V(ACCK+4*tile+3)}")
    for tile in range(2):
        a(f"v_cvt_pk_bf16_f32 {V(KV4+tile)}, {V(ACCK+4*tile)}, {V(ACCK+4*tile+2)}")
    a(f"ds_write_b32 {V(A_KW)}, {V(KV4)} offset:{KT_O}")
    a(f"ds_write_b32 {V(A_KW)}, {V(KV4+1)} offset:{KT_O+512}")
    vmf(4)
    stamp(a, 1, timing)
    a("s_waitcnt lgkmcnt(0)")
    tp(2)
    a("s_barrier")
    KM = (SENT, PT, KXF, KXF + 8)
    lds = []
    for u in range(4):
        for f in range(2):
            a(f"ds_read_b64_tr_b16 {V(QF[u]+2*f,2)}, {V(A_TRQ)} offset:{QT_O + u*512 + f*256}")
        lds += [("q", u)] * 2
        if u < 2:
            for f in range(2):
                a(f"ds_read_b64_tr_b16 {V(KM[u]+2*f,2)}, {V(A_TRK)} offset:{KT_O + u*1024 + f*512}")
            lds += [("km", u)] * 2
    ex = []
    if fx:
        ex = dma_list(KX_O, S_KD) + [f"s_min_u32 {S(S_T0)}, {S(S_STEP)}, 61", f"s_add_u32 {S(S_T0)}, {S(S_T0)}, 2",
                       f"s_lshl_b32 {S(S_T0)}, {S(S_T0)}, 7", f"s_add_u32 {S(S_FLG)}, {S(S_T0)}, {S(S_FLG0)}",
                       f"buffer_load_dword {V(V_FL)}, off, {S(SRD_WS,4)}, {S(S_FLG)} sc1"]
        for _ in range(4):
            vmf(1)
            while ex:
                x = ex.pop(0); a(x)
                if x.startswith("buffer"): break
    else:
        vmf(4)
    def exf():
        while ex:
            x = ex.pop(0); a(x)
            if x.startswith("buffer"): break
    ST0, ST1, SM = ACCQ, ACCQ + 4, ACCK
    seq = [("t0", 0), ("t1", 0), ("m", 0), ("t0", 1), ("t1", 1), ("m", 1), ("t0", 2), ("t1", 2), ("t0", 3), ("t1", 3), ("m", 2), ("m", 3)]
    waited = -1
    for n_, (kind, u) in enumerate(seq):
        need = [("q", u)] + ([("km", u)] if kind == "m" else [])
        last = max(k for k, tg in enumerate(lds) if tg in need)
        if last > waited:
            n_after = len(lds) - 1 - last
            a(f"s_waitcnt lgkmcnt({n_after})")
            waited = last
        if kind == "t0":
            a(f"v_mfma_f32_16x16x32_bf16 {V(ST0,4)}, {V(KXF+8*u,4)}, {V(QF[u],4)}, {'0' if u == 0 else V(ST0,4)}")
        elif kind == "t1":
            a(f"v_mfma_f32_16x16x32_bf16 {V(ST1,4)}, {V(KXF+8*u+4,4)}, {V(QF[u],4)}, {'0' if u == 0 else V(ST1,4)}")
            if u < 2:
                for f in range(2):
                    a(f"ds_read_b64_tr_b16 {V(KM[u+2]+2*f,2)}, {V(A_TRK)} offset:{KT_O + (u+2)*1024 + f*512}")
                lds += [("km", u + 2)] * 2
        else:
            a(f"v_mfma_f32_16x16x32_bf16 {V(SM,4)}, {V(KM[u],4)}, {V(QF[u],4)}, {'0' if u == 0 else V(SM,4)}")
        if n_ % 2 == 1: exf()
    VXF = (76, 84)
    for f in range(2):
        a(f"ds_read_b128 {V(VXF[f],4)}, {V(A_VX)} offset:{VR + f*1024}")
    while ex: exf()
    tp(3)
    SN = 92
    if P and "nohop" not in OPT:
        a(f"v_mov_b32 {V(SN)}, -1")
        a(f"buffer_store_dword {V(SN)}, {V(G_PUB)}, {S(SRD_WS,4)}, {S(S_PUB+par)} offen")
    vmf(2)
    MX, MX2, LS, LS2 = 68, 69, 70, 71
    SV = [ST0, ST0+1, ST0+2, ST0+3, ST1, ST1+1, ST1+2, ST1+3, SM, SM+1]
    a(f"v_max3_f32 {V(MX)}, {V(SV[0])}, {V(SV[1])}, {V(SV[2])}")
    a(f"v_max3_f32 {V(MX2)}, {V(SV[3])}, {V(SV[4])}, {V(SV[5])}")
    a(f"v_max3_f32 {V(MX)}, {V(MX)}, {V(SV[6])}, {V(SV[7])}")
    a(f"v_max3_f32 {V(MX2)}, {V(MX2)}, {V(SV[8])}, {V(SV[9])}")
    a(f"v_max_f32 {V(LS)}, {V(MX)}, {V(MX2)}")
    a(f"v_max_f32 {V(MX)}, {V(MX)}, {V(MX2)}")
    vmf(1)
    a("s_nop 0")
    a(f"v_permlane32_swap_b32 {V(MX)}, {V(LS)}")
    a(f"v_max_f32 {V(MX2)}, {V(MX)}, {V(LS)}")
    a(f"v_max_f32 {V(MX)}, {V(MX)}, {V(LS)}")
    vmf(1)
    a("s_nop 0")
    a(f"v_permlane16_swap_b32 {V(MX)}, {V(MX2)}")
    a(f"v_max_f32 {V(MX)}, {V(MX)}, {V(MX2)}")
    a(f"v_mul_f32 {V(MX)}, {S(S_C)}, {V(MX)}")
    for k in range(10):
        a(f"v_fma_f32 {V(SV[k])}, {V(SV[k])}, {S(S_C)}, -{V(MX)}")
    for k in range(10):
        a(f"v_exp_f32 {V(SV[k])}, {V(SV[k])}")
        if k in (1, 3, 5, 7): vmf(1)
    vmf(16)
    tp(4)
    PM0, PM1 = 114, 64
    PTt = 72
    for k in range(4):
        a(f"v_cvt_pk_bf16_f32 {V(PTt+k)}, {V(SV[2*k])}, {V(SV[2*k+1])}")
    a(f"v_cvt_pk_bf16_f32 {V(PM0)}, {V(SV[8])}, {V(SV[9])}")
    a(f"v_cvt_pk_bf16_f32 {V(PM1+1)}, {V(SV[8])}, {V(SV[9])}")
    a("s_waitcnt lgkmcnt(0)")
    stamp(a, 2, timing)
    if timing: a("s_waitcnt lgkmcnt(0)")
    a(f"v_mfma_f32_16x16x32_bf16 {V(OACC,4)}, {V(VXF[0],4)}, {V(PTt,4)}, 0")
    a(f"v_mov_b32 {V(PM0+1)}, 0")
    a(f"v_mov_b32 {V(PM1)}, 0")
    a(f"v_mfma_f32_16x16x32_bf16 {V(OACC+4,4)}, {V(VXF[1],4)}, {V(PTt,4)}, 0")
    for tile in range(2):
        a(f"v_add_f32 {V(ACCV+4*tile)}, {V(ACCV+4*tile)}, {V(ACCV+4*tile+1)}")
        a(f"v_add_f32 {V(ACCV+4*tile+2)}, {V(ACCV+4*tile+2)}, {V(ACCV+4*tile+3)}")
    for tile in range(2):
        a(f"v_cvt_pk_bf16_f32 {V(KV4+2+tile)}, {V(ACCV+4*tile)}, {V(ACCV+4*tile+2)}")
    a(f"v_add_f32 {V(SV[0])}, {V(SV[0])}, {V(SV[1])}")
    a(f"v_add_f32 {V(SV[2])}, {V(SV[2])}, {V(SV[3])}")
    a(f"v_mfma_f32_16x16x16_bf16 {V(OACC,4)}, {V(KV4+2,2)}, {V(PM0,2)}, {V(OACC,4)}")
    a(f"v_add_f32 {V(SV[4])}, {V(SV[4])}, {V(SV[5])}")
    a(f"v_add_f32 {V(SV[6])}, {V(SV[6])}, {V(SV[7])}")
    a(f"v_mfma_f32_16x16x16_bf16 {V(OACC+4,4)}, {V(KV4+2,2)}, {V(PM1,2)}, {V(OACC+4,4)}")
    a(f"v_add_f32 {V(SV[8])}, {V(SV[8])}, {V(SV[9])}")
    a(f"v_add_f32 {V(SV[0])}, {V(SV[0])}, {V(SV[2])}")
    a(f"v_mfma_f32_32x32x1_2b_f32 {V(MF,32)}, {V(ZERO)}, {V(ZERO)}, 0")
    if "nokvm" not in OPT:
        a(f"buffer_store_dwordx4 {V(KV4,4)}, {V(HI16)}, {S(SRD_WS,4)}, {S(S_KVM)} offen sc1")
    if par == 1:
        a(f"s_cmp_eq_u32 {S(S_STEP)}, 63")
        a(f"s_cbranch_scc1 L_rec_fin")
    tp(5)
    a(f"v_add_f32 {V(SV[4])}, {V(SV[4])}, {V(SV[6])}")
    a(f"v_add_f32 {V(SV[0])}, {V(SV[0])}, {V(SV[8])}")
    a(f"v_add_f32 {V(LS)}, {V(SV[0])}, {V(SV[4])}")
    a(f"v_add_f32 {V(LS2)}, {V(SV[0])}, {V(SV[4])}")
    a(f"s_add_u32 {S(S_KVM)}, {S(S_KVM)}, 131072")
    a("s_nop 0")
    a(f"v_permlane32_swap_b32 {V(LS)}, {V(LS2)}")
    a(f"v_add_f32 {V(MX)}, {V(LS)}, {V(LS2)}")
    a(f"v_add_f32 {V(LS)}, {V(LS)}, {V(LS2)}")
    a("s_nop 1")
    a(f"v_permlane16_swap_b32 {V(LS)}, {V(MX)}")
    a(f"v_add_f32 {V(LS)}, {V(LS)}, {V(MX)}")
    a(f"v_rcp_f32 {V(LS)}, {V(LS)}")
    for r in range(4):
        a(f"v_cndmask_b32 {V(OACC+r)}, {V(OACC+r)}, {V(OACC+4+r)}, {S(S_ODD,2)}")
    for r in range(4):
        a(f"v_mul_f32 {V(OACC+r)}, {V(OACC+r)}, {V(LS)}")
    a(f"v_cvt_pk_bf16_f32 {V(OACC)}, {V(OACC)}, {V(OACC+1)}")
    a(f"v_cvt_pk_bf16_f32 {V(OACC+1)}, {V(OACC+2)}, {V(OACC+3)}")
    a(f"ds_write_b64 {V(A_OW)}, {V(OACC,2)}")
    stamp(a, 3, timing)
    if P and "nohop" not in OPT:
        a(f"s_waitcnt vmcnt({0 if 'nokvm' in OPT else 1}) lgkmcnt(0)")
    else:
        a("s_waitcnt lgkmcnt(0)")
    tp(6)
    a("s_barrier")
    for T in range(2):
        a(f"ds_read_b128 {V(OF+4*T,4)}, {V(HI16)} offset:{O_O + T*1024}")
    a("s_waitcnt lgkmcnt(0)")
    tp(7)
    PK = ACCQ
    mf = []
    for tau in range(8):
        for T in range(2):
            mf.append(smf(MF + 4 * tau, OF + 4 * T, V(WO + (tau * 2 + T) * 8, 8)))
    def post(tau):
        d = MF + 4 * tau
        r = [f"v_add_f32 {V(d)}, {V(d)}, {V(d+1)}",
             f"v_add_f32 {V(d+2)}, {V(d+2)}, {V(d+3)}",
             f"v_cvt_pk_bf16_f32 {V(PK+tau)}, {V(d)}, {V(d+2)}"]
        if tau % 4 == 0:
            r.append(f"v_or_b32 {V(PK+tau)}, 1, {V(PK+tau)}" if par else f"v_and_b32 {V(PK+tau)}, -2, {V(PK+tau)}")
        return r
    fl = []
    st = [f"buffer_store_dwordx4 {V(PK,4)}, {V(G_PST)}, {S(SRD_WS,4)}, {S(S_PST)} offen",
          f"buffer_store_dwordx4 {V(PK+4,4)}, {V(G_PST)}, {S(SRD_WS,4)}, {S(S_PST+1)} offen"]
    popped = 0
    for mu in range(16):
        a(mf[mu])
        if mu >= 3 and (mu - 3) % 2 == 0:
            fl += post((mu - 3) // 2)
        k = 2 if (mu >= 4 and mu % 2 == 0) else 1
        for _ in range(k):
            if fl:
                a(fl.pop(0)); popped += 1
                if popped == 13: a(st[0])
    while fl:
        a(fl.pop(0)); popped += 1
        if popped == 13: a(st[0])
    a("s_nop 3")
    for x in post(7): a(x)
    if "wo_nost" in OPT: st[1] = "s_nop 0"
    a(st[1])
    stamp(a, 4, timing)
    a.label(LEND)
    if "nohop" in OPT:
        emit_idle_prep(a)
        stamp(a, 5, timing); stamp(a, 6, timing)
        a("s_waitcnt vmcnt(0) lgkmcnt(0)")
    else:
        ip = idle_prep_list()
        if P:
            hop1(a, par, ip[:14], timing)
            if timing: a(f"s_add_u32 {S(TACC+6)}, {S(TACC+6)}, {S(S_CNT)}")
            stamp(a, 5, timing)
            if dbg:
                a(f"s_lshl_b32 {S(S_T0)}, {S(S_STEP)}, 13")
                a(f"s_add_u32 {S(S_T0)}, {S(S_T0)}, {DBG_OFF}")
                a(f"buffer_store_dword {V(MF+16)}, {V(G_PUB)}, {S(SRD_WS,4)}, {S(S_T0)} offen")
            a("s_barrier")
            for x in ip[14:]: a(x)
        else:
            for x in ip: a(x)
            stamp(a, 5, timing)
            a("s_barrier")
        hop2(a, par, VR)
        if timing: a(f"s_add_u32 {S(TACC+7)}, {S(TACC+7)}, {S(S_CNT)}")
        stamp(a, 6, timing)
        a("s_waitcnt lgkmcnt(0)")
    stamp_acc(a, 7, timing)
    if timing:
        a(f"s_mov_b32 {S(TS)}, {S(TS+12)}")
    a(f"s_add_u32 {S(S_STEP)}, {S(S_STEP)}, 1")
    a("s_barrier")


def hop1(a, par, pre, timing):
    X = MF
    RA = MF + 16
    SEL = MF + 20
    t0 = MF + 24
    for x in pre: a(x)
    for rr in range(4):
        a(f"v_cndmask_b32 {V(SEL+rr)}, {V(ZERO)}, {V(SV1)}, {S(S_SEL+2*rr,2)}")
    delay(a, PARAM["pre1"])
    L = a.newlabel("L_h1"); D = L + "_d"; RT = L + "_r"
    a(f"s_mov_b32 {S(S_CNT)}, 0")
    for i in range(4):
        a(f"buffer_load_dwordx4 {V(X+4*i,4)}, {V(HI16)}, {S(SRD_WS,4)}, {S(S_PLD)} offen offset:{i*1024} sc1")
    a.label(RT)
    a("s_waitcnt vmcnt(0)")
    a("s_mov_b64 exec, -1")
    if par == 0:
        a(f"v_or3_b32 {V(t0)}, {V(X)}, {V(X+4)}, {V(X+8)}")
    else:
        a(f"v_bitop3_b32 {V(t0)}, {V(X)}, {V(X+4)}, {V(X+8)} bitop3:0x80")
    a(f"v_mfma_f32_16x16x32_bf16 {V(RA,4)}, {V(SEL,4)}, {V(X,4)}, 0")
    a(f"v_or_b32 {V(t0)}, {V(t0)}, {V(X+12)}" if par == 0 else f"v_and_b32 {V(t0)}, {V(t0)}, {V(X+12)}")
    a(f"v_mfma_f32_16x16x32_bf16 {V(RA,4)}, {V(SEL,4)}, {V(X+4,4)}, {V(RA,4)}")
    a(f"v_and_b32 {V(t0)}, 1, {V(t0)}")
    a(f"v_mfma_f32_16x16x32_bf16 {V(RA,4)}, {V(SEL,4)}, {V(X+8,4)}, {V(RA,4)}")
    a(f"v_cmp_ne_u32 vcc, {par}, {V(t0)}")
    a(f"v_mfma_f32_16x16x32_bf16 {V(RA,4)}, {V(SEL,4)}, {V(X+12,4)}, {V(RA,4)}")
    a(f"s_cbranch_vccz {D}")
    if not FAST:
        a(f"s_cmp_eq_u32 {S(S_FAIL)}, 1")
        a(f"s_cbranch_scc1 {D}")
        a("s_mov_b64 exec, vcc")
        for i in range(4):
            a(f"buffer_load_dwordx4 {V(X+4*i,4)}, {V(HI16)}, {S(SRD_WS,4)}, {S(S_PLD)} offen offset:{i*1024} sc1")
        emit_spin_check(a, RT, D)
        a("s_waitcnt vmcnt(0)")
        a("s_mov_b64 exec, -1")
    a.label(D)
    a("s_nop 6")
    for r in range(2):
        a(f"v_add_f32_dpp {V(RA+r)}, {V(RA+r)}, {V(RA+r)} row_ror:8 row_mask:0xf bank_mask:0xf")
    a(f"v_cvt_pk_bf16_f32 {V(RA)}, {V(RA)}, {V(RA+1)}")
    a(f"buffer_store_dword {V(RA)}, {V(G_PUB)}, {S(SRD_WS,4)}, {S(S_PUB+par)} offen")


def hop2(a, par, region):
    X = MF
    t0, t1 = MF + 24, MF + 25
    delay(a, PARAM["pre2"])
    L = a.newlabel("L_h2"); D = L + "_d"; RT = L + "_r"
    a(f"s_mov_b32 {S(S_CNT)}, 0")
    for i in range(2):
        a(f"buffer_load_dwordx4 {V(X+4*i,4)}, {V(HI16)}, {S(SRD_WS,4)}, {S(S_MLD+par)} offen offset:{i*1024} sc1")
    a.label(RT)
    a("s_waitcnt vmcnt(0)")
    a("s_mov_b64 exec, -1")
    a(f"v_max3_u32 {V(t0)}, {V(X)}, {V(X+1)}, {V(X+2)}")
    a(f"v_max3_u32 {V(t1)}, {V(X+3)}, {V(X+4)}, {V(X+5)}")
    a(f"v_max3_u32 {V(t0)}, {V(t0)}, {V(X+6)}, {V(X+7)}")
    a(f"v_max_u32 {V(t0)}, {V(t0)}, {V(t1)}")
    a(f"v_cmp_eq_u32 vcc, -1, {V(t0)}")
    a(f"s_cbranch_vccz {D}")
    if not FAST:
        a(f"s_cmp_eq_u32 {S(S_FAIL)}, 1")
        a(f"s_cbranch_scc1 {D}")
        a("s_mov_b64 exec, vcc")
        for i in range(2):
            a(f"buffer_load_dwordx4 {V(X+4*i,4)}, {V(HI16)}, {S(SRD_WS,4)}, {S(S_MLD+par)} offen offset:{i*1024} sc1")
        emit_spin_check(a, RT, D)
        a("s_waitcnt vmcnt(0)")
        a("s_mov_b64 exec, -1")
    a.label(D)
    for i in range(2):
        a(f"ds_write_b128 {V(A_VX)}, {V(X+4*i,4)} offset:{region + i*1024}")


def loop(a, dbg=False, timing=False):
    if timing:
        for k in range(8): a(f"s_mov_b32 {S(TACC+k)}, 0")
        a(f"s_memtime {S(TS,2)}")
        a("s_waitcnt lgkmcnt(0)")
    a(f"s_cmp_eq_u32 {S(S_W)}, 0")
    a(f"s_cselect_b32 {S(S_KVMF+2)}, 1, 0")
    a(f"s_mov_b32 {S(S_KVMF+1)}, 0")
    a(f"s_sub_u32 {S(S_FLG0)}, {S(S_FLG)}, 128")
    a("s_barrier")
    a(f"s_cmp_ge_u32 {S(S_W)}, 2")
    a("s_cbranch_scc1 L_recF_loop")
    for role in "PF":
        a(".p2align 3")
        a.label(f"L_rec{role}_loop")
        for par in range(2):
            step(a, par, role, dbg, timing)
        a(f"s_branch L_rec{role}_loop")
    a.label("L_rec_fin")
    a("s_waitcnt vmcnt(0) lgkmcnt(0)")
    a("s_barrier")
    Ls = a.newlabel("L_fin")
    a(f"s_cmp_eq_u32 {S(S_W)}, 0")
    a(f"s_cbranch_scc0 {Ls}")
    a(f"v_mov_b32 {V(16)}, 1")
    a(f"buffer_store_dword {V(16)}, off, {S(SRD_WS,4)}, {S(S_KVMF)} sc1")
    a("s_waitcnt vmcnt(0)")
    a.label(Ls)
```

```python
from asm import *
from layout import *
import struct

def f2u(x): return struct.unpack("<I", struct.pack("<f", x))[0]

S_IDX, S_W, S_XCC = 4, 5, 6
SRD_WS, SRD_DBG = 8, 52
S_WK = 16
S_H1, S_SUB = 17, 18
S_FAIL, S_CNT = 19, 20
S_J, S_SEG = 21, 22
S_T0, S_T1, S_T2, S_T3 = 24, 25, 26, 27
SRD_A, SRD_B, SRD_C = 28, 32, 36
S_TEAM = 40
S_NSEG = 41
SPIN_MAX = 1 << 19
FAST = False
OPT = set()
W1_STRIDE = 3
W1_AHEAD = 9
STF = 'sc1'

def srd(a, dst, karg_off, nbytes, tmp=56):
    a(f"s_load_dwordx2 {S(tmp,2)}, s[0:1], {karg_off}")
    a("s_waitcnt lgkmcnt(0)")
    a(f"s_mov_b32 {S(dst)}, {S(tmp)}")
    a(f"s_and_b32 {S(dst+1)}, {S(tmp+1)}, 0xffff")
    a(f"s_mov_b32 {S(dst+2)}, {nbytes}")
    a(f"s_mov_b32 {S(dst+3)}, 0x20000")

def poll_word(a, srdn, soff_text, cond_text, vtmp, name):
    L = a.newlabel("L_wpw_" + name)
    D = L + "_d"
    a(f"s_mov_b32 {S(S_CNT)}, 0")
    a.label(L)
    a(f"s_cmp_eq_u32 {S(S_FAIL)}, 1")
    a(f"s_cbranch_scc1 {D}")
    a(f"buffer_load_dword {V(vtmp)}, off, {S(srdn,4)}, {soff_text} sc1")
    a("s_waitcnt vmcnt(0)")
    a(f"v_readfirstlane_b32 {S(S_T0)}, {V(vtmp)}")
    a("s_nop 3")
    a(cond_text)
    a(f"s_cbranch_scc1 {D}")
    a("s_sleep 4")
    a(f"s_add_u32 {S(S_CNT)}, {S(S_CNT)}, 1")
    a(f"s_cmp_lt_u32 {S(S_CNT)}, {SPIN_MAX}")
    a(f"s_cbranch_scc1 {L}")
    a(f"s_mov_b32 {S(S_FAIL)}, 1")
    a.label(D)

def bf16_round(a, dst, src):
    a(f"v_cvt_pk_bf16_f32 {V(dst)}, {V(src)}, {V(src)}")
    a(f"v_lshlrev_b32 {V(dst)}, 16, {V(dst)}")

def wave_sum(a, regs, tmp):
    for sh in (1, 2, 4, 8):
        a("s_nop 1")
        for r in regs:
            a(f"v_add_f32_dpp {V(r)}, {V(r)}, {V(r)} row_ror:{sh} row_mask:0xf bank_mask:0xf")
    for sw in ("v_permlane16_swap_b32", "v_permlane32_swap_b32"):
        for k, r in enumerate(regs):
            a(f"v_mov_b32 {V(tmp+k)}, {V(r)}")
        a("s_nop 1")
        for k, r in enumerate(regs):
            a(f"{sw} {V(r)}, {V(tmp+k)}")
        for k, r in enumerate(regs):
            a(f"v_add_f32 {V(r)}, {V(r)}, {V(tmp+k)}")

def w0(a):
    a("; ===== W0: init + LayerNorm =====")
    a(f"s_mov_b32 {S(S_FAIL)}, 0")
    a(f"s_sub_u32 {S(S_TEAM)}, {S(S_XCC)}, 1")
    a(f"s_lshl_b32 {S(S_WK)}, {S(S_TEAM)}, 5")
    a(f"s_add_u32 {S(S_WK)}, {S(S_WK)}, {S(S_IDX)}")
    a(f"s_mul_i32 {S(S_H1)}, {S(S_WK)}, 21846")
    a(f"s_lshr_b32 {S(S_H1)}, {S(S_H1)}, 16")
    a(f"s_mul_i32 {S(S_T0)}, {S(S_H1)}, 3")
    a(f"s_sub_u32 {S(S_SUB)}, {S(S_WK)}, {S(S_T0)}")
    L = 100
    a(f"v_and_b32 {V(L)}, 63, v0")
    Ls = a.newlabel("L_fz")
    a(f"s_cmp_eq_u32 {S(S_W)}, 0")
    a(f"s_cbranch_scc0 {Ls}")
    for i in range(4): a(f"v_mov_b32 {V(20+i)}, 0")
    a(f"v_lshlrev_b32 {V(24)}, 4, {V(L)}")
    a(f"v_mov_b32 {V(25)}, 0x7ff00000")
    a(f"v_cmp_gt_u32 vcc, 8, {V(L)}")
    a("s_nop 1")
    a(f"v_cndmask_b32 {V(24)}, {V(25)}, {V(24)}, vcc")
    a(f"s_lshl_b32 {S(S_T0)}, {S(S_WK)}, 7")
    a(f"s_add_u32 {S(S_T0)}, {S(S_T0)}, {FLAG_OFF}")
    a(f"buffer_store_dwordx4 {V(20,4)}, {V(24)}, {S(SRD_WS,4)}, {S(S_T0)} offen sc1")
    a.label(Ls)
    srd(a, SRD_A, 0, 2048 * 512 * 2)
    a(f"s_lshl_b32 {S(S_T0)}, {S(S_WK)}, 2")
    a(f"s_add_u32 {S(S_T0)}, {S(S_T0)}, {S(S_W)}")
    a(f"v_lshlrev_b32 {V(24)}, 4, {V(L)}")
    NR = 3
    X = [32 + 4 * k for k in range(NR)]
    F = [48 + 8 * k for k in range(NR)]
    for k in range(NR):
        a(f"s_add_u32 {S(S_T1)}, {S(S_T0)}, {896*k}")
        a(f"s_min_u32 {S(S_T1)}, {S(S_T1)}, 2047")
        a(f"s_lshl_b32 {S(S_T1)}, {S(S_T1)}, 10")
        a(f"buffer_load_dwordx4 {V(X[k],4)}, {V(24)}, {S(SRD_A,4)}, {S(S_T1)} offen")
    a("s_waitcnt vmcnt(0)")
    SUM = [80 + k for k in range(NR)]
    TMP = 84
    for k in range(NR):
        for d in range(4):
            a(f"v_lshlrev_b32 {V(F[k]+2*d)}, 16, {V(X[k]+d)}")
            a(f"v_and_b32 {V(F[k]+2*d+1)}, 0xffff0000, {V(X[k]+d)}")
        a(f"v_add_f32 {V(SUM[k])}, {V(F[k])}, {V(F[k]+1)}")
        for d in range(2, 8):
            a(f"v_add_f32 {V(SUM[k])}, {V(SUM[k])}, {V(F[k]+d)}")
    wave_sum(a, SUM, TMP)
    MEAN = [88 + k for k in range(NR)]
    VAR = [92 + k for k in range(NR)]
    for k in range(NR):
        a(f"v_mul_f32 {V(MEAN[k])}, {f2u(1/512):#x}, {V(SUM[k])}")
        a(f"v_sub_f32 {V(TMP)}, {V(F[k])}, {V(MEAN[k])}")
        a(f"v_mul_f32 {V(VAR[k])}, {V(TMP)}, {V(TMP)}")
        for d in range(1, 8):
            a(f"v_sub_f32 {V(TMP)}, {V(F[k]+d)}, {V(MEAN[k])}")
            a(f"v_fmac_f32 {V(VAR[k])}, {V(TMP)}, {V(TMP)}")
    wave_sum(a, VAR, TMP)
    for k in range(NR):
        a(f"v_mul_f32 {V(VAR[k])}, {f2u(1/512):#x}, {V(VAR[k])}")
        bf16_round(a, VAR[k], VAR[k])
        a(f"v_add_f32 {V(VAR[k])}, {f2u(1e-5):#x}, {V(VAR[k])}")
        bf16_round(a, VAR[k], VAR[k])
        a(f"v_sqrt_f32 {V(VAR[k])}, {V(VAR[k])}")
        a("s_nop 0")
        bf16_round(a, VAR[k], VAR[k])
        a(f"v_rcp_f32 {V(96+k)}, {V(VAR[k])}")
        bf16_round(a, MEAN[k], MEAN[k])
        for d in range(8):
            a(f"v_sub_f32 {V(F[k]+d)}, {V(F[k]+d)}, {V(MEAN[k])}")
        for d in range(0, 8, 2):
            a(f"v_cvt_pk_bf16_f32 {V(TMP)}, {V(F[k]+d)}, {V(F[k]+d+1)}")
            a(f"v_lshlrev_b32 {V(F[k]+d)}, 16, {V(TMP)}")
            a(f"v_and_b32 {V(F[k]+d+1)}, 0xffff0000, {V(TMP)}")
        for d in range(8):
            a(f"v_mul_f32 {V(TMP)}, {V(F[k]+d)}, {V(96+k)}")
            a(f"v_fma_f32 {V(TMP+1)}, -{V(TMP)}, {V(VAR[k])}, {V(F[k]+d)}")
            a(f"v_fma_f32 {V(F[k]+d)}, {V(TMP+1)}, {V(96+k)}, {V(TMP)}")
        for d in range(4):
            a(f"v_cvt_pk_bf16_f32 {V(X[k]+d)}, {V(F[k]+2*d)}, {V(F[k]+2*d+1)}")
        Lk = a.newlabel("L_lnrow")
        a(f"s_add_u32 {S(S_T1)}, {S(S_T0)}, {896*k}")
        a(f"s_cmp_ge_u32 {S(S_T1)}, 2048")
        a(f"s_cbranch_scc1 {Lk}")
        a(f"s_lshl_b32 {S(S_T1)}, {S(S_T1)}, 10")
        a(f"s_add_u32 {S(S_T1)}, {S(S_T1)}, {XN_OFF}")
        a(f"buffer_store_dwordx4 {V(X[k],4)}, {V(24)}, {S(SRD_WS,4)}, {S(S_T1)} offen sc1")
        a.label(Lk)
    a("s_waitcnt vmcnt(0)")
    a("s_barrier")
    Ls = a.newlabel("L_c0")
    a(f"s_cmp_eq_u32 {S(S_W)}, 0")
    a(f"s_cbranch_scc0 {Ls}")
    a("v_mov_b32 v20, 1")
    a("s_mov_b64 exec, 1")
    a(f"s_mov_b32 {S(S_T0)}, 32")
    a(f"buffer_atomic_add v20, off, {S(SRD_DBG,4)}, {S(S_T0)} sc1")
    a("s_mov_b64 exec, -1")
    a.label(Ls)


class Stager:
    def __init__(self, a, L=100, N=101, G=102):
        self.a = a; self.L, self.N, self.G = L, N, G
    def lane_ids(self):
        a = self.a
        a(f"v_and_b32 {V(self.L)}, 63, v0")
        a(f"v_and_b32 {V(self.N)}, 15, {V(self.L)}")
        a(f"v_lshrrev_b32 {V(self.G)}, 4, {V(self.L)}")
    def dma_voffsets(self, dst, stride, swz, t1=103, t2=104, t3=105):
        a = self.a
        a(f"v_and_b32 {V(t1)}, 3, {V(self.G)}")
        a(f"v_lshlrev_b32 {V(t1)}, 1, {V(t1)}")
        a(f"v_xor_b32 {V(t1)}, {V(t1)}, {V(self.N)}")
        a(f"s_lshl_b32 {S(S_T2)}, {S(S_W)}, 4")
        a(f"s_mov_b32 {S(S_T3)}, {stride}")
        for i in range(4):
            bit = ((i >> 1) & 1) if swz == "B" else (i & 1)
            a(f"v_xor_b32 {V(t2)}, {8*bit}, {V(t1)}")
            a(f"v_lshlrev_b32 {V(t2)}, 4, {V(t2)}")
            a(f"v_add_u32 {V(t3)}, {S(S_T2)}, {V(self.G)}")
            a(f"v_add_u32 {V(t3)}, {4*i}, {V(t3)}")
            a(f"v_mul_lo_u32 {V(dst+i)}, {S(S_T3)}, {V(t3)}")
            a(f"v_add_u32 {V(dst+i)}, {V(dst+i)}, {V(t2)}")
    def tr_base(self, dbase, dfs, swz, t1=103, t2=104, t3=105):
        a = self.a
        a(f"v_lshrrev_b32 {V(t1)}, 2, {V(self.N)}")
        a(f"v_and_b32 {V(t2)}, 3, {V(self.N)}")
        sh = 3 if swz == "B" else 2
        a(f"v_lshl_add_u32 {V(t3)}, {V(self.G)}, {sh}, {V(t1)}")
        a(f"v_lshlrev_b32 {V(dbase)}, 8, {V(t3)}")
        a(f"v_lshl_add_u32 {V(dbase)}, {V(t2)}, 3, {V(dbase)}")
        a(f"v_and_b32 {V(t3)}, 1, {V(self.G)}")
        a(f"v_lshlrev_b32 {V(t3)}, 2, {V(t3)}")
        a(f"v_add_u32 {V(t3)}, {V(t3)}, {V(t1)}")
        a(f"v_lshlrev_b32 {V(dfs)}, 5, {V(t3)}")
    def run(self, chunks):
        a = self.a
        n = len(chunks)
        def dma(i):
            c = chunks[i]
            slot = i & 7
            for k in range(4):
                a(f"s_lshl_b32 {S(S_T0)}, {S(S_W)}, 12")
                a(f"s_add_u32 m0, {S(S_T0)}, {slot*16384 + k*1024}")
                for x in c["soff"]: a(x)
                a(f"buffer_load_dwordx4 {V(c['voff']+k)}, {S(c['srd'],4)}, {S(S_T1)} offen lds")
        for i in range(min(8, n)): dma(i)
        for i in range(n):
            later = min(i + 7, n - 1) - i
            a(f"s_waitcnt vmcnt({4*later})")
            a("s_barrier")
            chunks[i]["consume"]((i & 7) * 16384)
            a("s_waitcnt lgkmcnt(0)")
            a("s_barrier")
            if i + 8 < n: dma(i + 8)


XN_LDS = (0, 32768)

def xn_dma(a, buf, vsrc, sseg):
    a(f"s_lshl_b32 {S(S_T1)}, {S(sseg)}, 15")
    a(f"s_lshr_b32 {S(S_T2)}, {S(S_W)}, 1")
    a(f"s_lshl_b32 {S(S_T2)}, {S(S_T2)}, 14")
    a(f"s_add_u32 {S(S_T1)}, {S(S_T1)}, {S(S_T2)}")
    a(f"s_and_b32 {S(S_T2)}, {S(S_W)}, 1")
    a(f"s_lshl_b32 {S(S_T2)}, {S(S_T2)}, 9")
    a(f"s_add_u32 {S(S_T1)}, {S(S_T1)}, {S(S_T2)}")
    a(f"s_add_u32 {S(S_T1)}, {S(S_T1)}, {XN_OFF}")
    a(f"s_lshl_b32 {S(S_T0)}, {S(S_W)}, 13")
    a(f"s_add_u32 m0, {S(S_T0)}, {buf}")
    for k in range(8):
        a("s_nop 0")
        a(f"buffer_load_dwordx4 {V(vsrc)}, {S(SRD_WS,4)}, {S(S_T1)} offen lds")
        if k < 7:
            a(f"s_add_u32 m0, m0, 1024")
            a(f"s_add_u32 {S(S_T1)}, {S(S_T1)}, 64")


def w1_flag(a, sseg):
    Lf = a.newlabel("L_w1_noflag")
    a(f"s_cmp_ge_u32 {S(sseg)}, 64")
    a(f"s_cbranch_scc1 {Lf}")
    a(f"s_cmp_eq_u32 {S(S_W)}, 0")
    a(f"s_cbranch_scc0 {Lf}")
    a(f"s_lshl_b32 {S(S_T0)}, {S(sseg)}, 5")
    a(f"s_add_u32 {S(S_T0)}, {S(S_T0)}, {S(S_H1)}")
    a(f"s_lshl_b32 {S(S_T0)}, {S(S_T0)}, 2")
    a(f"s_add_u32 {S(S_T0)}, {S(S_T0)}, {FLAG_OFF}")
    a("v_mov_b32 v26, 1")
    a(f"buffer_store_dword v26, off, {S(SRD_WS,4)}, {S(S_T0)} sc1")
    a.label(Lf)


def w1(a):
    a("; ===== W1: Q,K,V projections, head stationary =====")
    st = Stager(a)
    st.lane_ids()
    L, N, G = st.L, st.N, st.G
    srd(a, SRD_A, 24, 0x400000)
    srd(a, SRD_B, 32, 0x400000)
    srd(a, SRD_C, 16, 0x400000)
    VOFF = 24
    st.dma_voffsets(VOFF, 8192, "B")
    a(f"s_lshl_b32 {S(S_T2)}, {S(S_H1)}, 8")
    for i in range(4):
        a(f"v_add_u32 {V(VOFF+i)}, {S(S_T2)}, {V(VOFF+i)}")
    TB, FS = 32, 33
    st.tr_base(TB, FS, "B")
    TA = (34, 35)
    for f in range(2):
        a(f"s_lshl_b32 {S(S_T0)}, {S(S_W)}, 6")
        a(f"s_add_u32 {S(S_T0)}, {S(S_T0)}, {32*f}")
        a(f"v_xor_b32 {V(TA[f])}, {S(S_T0)}, {V(FS)}")
        a(f"v_add_u32 {V(TA[f])}, {V(TA[f])}, {V(TB)}")
    def frag(mat, f, u):
        k = (f * 16 + u) * 4
        return {"q": lambda c: A(k + c[0], c[1]), "k": lambda c: A(128 + k + c[0], c[1]), "v": lambda c: V(128 + k + c[0], c[1])}[mat]
    chunks = []
    for mat, sr in (("k", SRD_A), ("v", SRD_B), ("q", SRD_C)):
        for T in range(8):
            def consume(slot, mat=mat, T=T):
                for f in range(2):
                    a(f"v_add_u32 {V(36+f)}, {slot}, {V(TA[f])}")
                for f in range(2):
                    for uu in range(2):
                        for hh in range(2):
                            a(f"ds_read_b64_tr_b16 {frag(mat, f, 2*T+uu)((2*hh, 2))}, {V(36+f)} offset:{(32*uu + 4*hh)*256}")
            chunks.append(dict(srd=sr, voff=VOFF, soff=[f"s_mov_b32 {S(S_T1)}, {T*524288}"], consume=consume))
    st.run(chunks)
    if "time" in OPT:
        a("s_memrealtime s[60:61]")
        a("s_waitcnt lgkmcnt(0)")
    poll_word(a, SRD_DBG, "32", f"s_cmp_ge_u32 {S(S_T0)}, 224", 103, "c0")
    if "time" in OPT:
        a("s_memrealtime s[62:63]")
        a("s_waitcnt lgkmcnt(0)")
    XS = 24
    L16 = 25
    a(f"v_lshlrev_b32 {V(XS)}, 10, {V(N)}")
    a(f"v_lshl_add_u32 {V(XS)}, {V(G)}, 4, {V(XS)}")
    a(f"v_lshlrev_b32 {V(L16)}, 4, {V(L)}")
    a(f"s_mov_b32 {S(S_SEG)}, {S(S_SUB)}")
    a(f"s_mov_b32 {S(S_J)}, 0")
    S_PREV = 42
    S_NEXT = 43
    a(f"s_mov_b32 {S(S_PREV)}, 64")
    xn_dma(a, XN_LDS[0], XS, S_SEG)
    a("s_waitcnt vmcnt(0)")
    ACC = 32
    XF = 80
    OUT = 96
    a.label("L_w1_loop")
    for par in range(2):
        a("s_waitcnt vmcnt(0)")
        a("s_barrier")
        w1_flag(a, S_PREV)
        if "noflow" not in OPT:
            Lfc = a.newlabel("L_w1_fc")
            a(f"s_cmp_lt_u32 {S(S_SEG)}, {W1_AHEAD}")
            a(f"s_cbranch_scc1 {Lfc}")
            a(f"s_sub_u32 {S(S_T1)}, {S(S_SEG)}, {W1_AHEAD}")
            a(f"s_lshl_b32 {S(S_T1)}, {S(S_T1)}, 5")
            a(f"s_add_u32 {S(S_T1)}, {S(S_T1)}, {S(S_H1)}")
            a(f"s_lshl_b32 {S(S_T1)}, {S(S_T1)}, 2")
            a(f"s_add_u32 {S(45)}, {S(S_T1)}, {KVMF_OFF}")
            poll_word(a, SRD_WS, S(45), f"s_cmp_lg_u32 {S(S_T0)}, 0", 26, "fc")
            a.label(Lfc)
        Ln = a.newlabel("L_w1_nopf")
        a(f"s_add_u32 {S(S_NEXT)}, {S(S_SEG)}, {W1_STRIDE}")
        a(f"s_min_u32 {S(S_T3)}, {S(S_NEXT)}, 63")
        a(f"s_mov_b32 {S(44)}, {S(S_T3)}")
        xn_dma(a, XN_LDS[par ^ 1], XS, 44)
        for r in range(ACC, ACC + 48, 2):
            a(f"v_mov_b64 {V(r,2)}, 0")
        def rd(u):
            b = XF + 8 * (u & 1)
            for tt in range(2):
                a(f"ds_read_b128 {V(b+4*tt,4)}, {V(L16)} offset:{XN_LDS[par] + (tt*16+u)*1024}")
        rd(0)
        for u in range(16):
            if u + 1 < 16:
                rd(u + 1)
                a("s_waitcnt lgkmcnt(2)")
            else:
                a("s_waitcnt lgkmcnt(0)")
            b = XF + 8 * (u & 1)
            for mi, mat in enumerate(("q", "k", "v")):
                for f in range(2):
                    for tt in range(2):
                        acc = V(ACC + ((mi * 2 + f) * 2 + tt) * 4, 4)
                        wf = frag(mat, f, u)((0, 4))
                        xf = V(b + 4 * tt, 4)
                        if mat == "v":
                            a(f"v_mfma_f32_16x16x32_bf16 {acc}, {xf}, {wf}, {acc}")
                        else:
                            a(f"v_mfma_f32_16x16x32_bf16 {acc}, {wf}, {xf}, {acc}")
        a("s_nop 7")
        def acc(mi, f, tt): return ACC + ((mi * 2 + f) * 2 + tt) * 4
        for mi in range(2):
            for tt in range(2):
                o = OUT + (mi * 2 + tt) * 4
                for f in range(2):
                    for hp in range(2):
                        a(f"v_cvt_pk_bf16_f32 {V(o+2*f+hp)}, {V(acc(mi,f,tt)+2*hp)}, {V(acc(mi,f,tt)+2*hp+1)}")
        for f in range(2):
            o = OUT + 16 + f * 4
            for tt in range(2):
                for hp in range(2):
                    a(f"v_cvt_pk_bf16_f32 {V(o+2*tt+hp)}, {V(acc(2,f,tt)+2*hp)}, {V(acc(2,f,tt)+2*hp+1)}")
        a(f"s_lshl_b32 {S(S_T0)}, {S(S_SEG)}, 5")
        a(f"s_add_u32 {S(S_T0)}, {S(S_T0)}, {S(S_H1)}")
        a(f"s_lshl_b32 {S(S_T0)}, {S(S_T0)}, 13")
        a(f"s_lshl_b32 {S(S_T1)}, {S(S_W)}, 10")
        a(f"s_add_u32 {S(S_T1)}, {S(S_T1)}, {S(S_T0)}")
        for mi, base in ((0, QF_OFF), (1, KF_OFF)):
            for tt in range(2):
                a(f"s_add_u32 {S(S_T2)}, {S(S_T1)}, {base + tt*4096}")
                a(f"buffer_store_dwordx4 {V(OUT+(mi*2+tt)*4,4)}, {V(L16)}, {S(SRD_WS,4)}, {S(S_T2)} offen {STF}")
        a(f"s_lshl_b32 {S(S_T1)}, {S(S_W)}, 11")
        a(f"s_add_u32 {S(S_T1)}, {S(S_T1)}, {S(S_T0)}")
        for f in range(2):
            a(f"s_add_u32 {S(S_T2)}, {S(S_T1)}, {VF_OFF + f*1024}")
            a(f"buffer_store_dwordx4 {V(OUT+16+f*4,4)}, {V(L16)}, {S(SRD_WS,4)}, {S(S_T2)} offen {STF}")
        a(f"s_mov_b32 {S(S_PREV)}, {S(S_SEG)}")
        a(f"s_mov_b32 {S(S_SEG)}, {S(S_NEXT)}")
        a(f"s_cmp_ge_u32 {S(S_SEG)}, 64")
        a("s_cbranch_scc1 L_w1_done")
    a("s_branch L_w1_loop")
    a.label("L_w1_done")
    a("s_waitcnt vmcnt(0)")
    a("s_barrier")
    w1_flag(a, S_PREV)


NTEAM = 4
ACT_O, O_LDS, KT_LDS = 32768, 36864, 45056
C_SCALE = (128 ** -0.5) * 1.4426950408889634
LOG2E = 1.4426950408889634

def w2(a):
    a("; ===== W2: FFN + token attention + output projection, one team per XCD =====")
    st = Stager(a)
    st.lane_ids()
    L, N, G = st.L, st.N, st.G
    S_H = S_IDX
    a(f"s_sub_u32 {S(S_TEAM)}, {S(S_XCC)}, 4")
    srd(a, SRD_A, 40, 0x400000)
    srd(a, SRD_B, 80, 1792 * 512 * 2)
    srd(a, SRD_C, 64, 512 * 1792 * 2)
    VO_C, VO_B = 24, 28
    st.dma_voffsets(VO_C, 1024, "C")
    st.dma_voffsets(VO_B, 3584, "B")
    TBC, FSC, TBB, FSB = 32, 33, 34, 35
    st.tr_base(TBC, FSC, "C")
    st.tr_base(TBB, FSB, "B")
    a(f"s_lshl_b32 {S(S_T0)}, {S(S_W)}, 5")
    a(f"v_xor_b32 {V(36)}, {S(S_T0)}, {V(FSB)}")
    a(f"v_add_u32 {V(36)}, {V(36)}, {V(TBB)}")
    S_FFN = 41
    a(f"s_cmp_lt_u32 {S(S_H)}, 28")
    a(f"s_cselect_b32 {S(S_FFN)}, 1, 0")
    S_HC = 42
    a(f"s_min_u32 {S(S_HC)}, {S(S_H)}, 27")
    chunks = []
    def own_wave(wp, body):
        Ls = a.newlabel("L_own")
        a(f"s_cmp_eq_u32 {S(S_W)}, {wp}")
        a(f"s_cbranch_scc0 {Ls}")
        body()
        a.label(Ls)
    for T in range(2):
        for wp in range(4):
            def consume(slot, T=T, wp=wp):
                def body():
                    for tau in range(8):
                        a(f"v_xor_b32 {V(37)}, {32*tau}, {V(FSC)}")
                        a(f"v_add_u32 {V(37)}, {V(37)}, {V(TBC)}")
                        a(f"v_add_u32 {V(37)}, {slot}, {V(37)}")
                        for uu in range(2):
                            for f in range(2):
                                a(f"ds_read_b64_tr_b16 {A((tau*4 + 2*T+uu)*4 + 2*f, 2)}, {V(37)} offset:{(32*uu + 16*f)*256}")
                        if tau & 1: a("s_waitcnt lgkmcnt(0)")
                own_wave(wp, body)
            chunks.append(dict(srd=SRD_A, voff=VO_C, consume=consume,
                               soff=[f"s_lshl_b32 {S(S_T1)}, {S(S_H)}, 17", f"s_add_u32 {S(S_T1)}, {S(S_T1)}, {T*65536 + wp*256}"]))
    for wp in range(4):
        def consume(slot, wp=wp):
            def body():
                for tau in range(8):
                    a(f"v_xor_b32 {V(37)}, {32*tau}, {V(FSC)}")
                    a(f"v_add_u32 {V(37)}, {V(37)}, {V(TBC)}")
                    a(f"v_add_u32 {V(37)}, {slot}, {V(37)}")
                    for uu in range(2):
                        for f in range(2):
                            a(f"ds_read_b64_tr_b16 {A(128 + (tau*2 + uu)*4 + 2*f, 2)}, {V(37)} offset:{(32*uu + 16*f)*256}")
                    if tau & 1: a("s_waitcnt lgkmcnt(0)")
            own_wave(wp, body)
        chunks.append(dict(srd=SRD_B, voff=VO_C, consume=consume,
                           soff=[f"s_lshl_b32 {S(S_T1)}, {S(S_HC)}, 16", f"s_add_u32 {S(S_T1)}, {S(S_T1)}, {wp*256}"]))
    for T in range(8):
        def consume(slot, T=T):
            a(f"v_add_u32 {V(37)}, {slot}, {V(36)}")
            for uu in range(2):
                for hh in range(2):
                    a(f"ds_read_b64_tr_b16 {A(192 + (2*T+uu)*4 + 2*hh, 2)}, {V(37)} offset:{(32*uu + 4*hh)*256}")
        chunks.append(dict(srd=SRD_C, voff=VO_B, consume=consume,
                           soff=[f"s_lshl_b32 {S(S_T1)}, {S(S_HC)}, 7", f"s_add_u32 {S(S_T1)}, {S(S_T1)}, {T*64*3584}"]))
    st.run(chunks)
    L16, XS, A_KW, A_TRK, G_PST, G_PLD, G_OUT = 0, 1, 2, 3, 4, 5, 6
    B1 = 8
    SEL = 12
    T1, T2, T3 = 103, 104, 105
    R_, C_ = 106, 107
    a(f"v_lshrrev_b32 {V(R_)}, 2, {V(N)}")
    a(f"v_and_b32 {V(C_)}, 3, {V(N)}")
    a(f"v_lshlrev_b32 {V(XS)}, 10, {V(N)}")
    a(f"v_lshl_add_u32 {V(XS)}, {V(G)}, 4, {V(XS)}")
    a(f"s_lshl_b32 {S(S_T0)}, {S(S_W)}, 5")
    a(f"v_add_u32 {V(T3)}, {S(S_T0)}, {V(N)}")
    a(f"v_lshlrev_b32 {V(A_KW)}, 5, {V(T3)}")
    a(f"v_add_u32 {V(T3)}, {V(G)}, {V(R_)}")
    a(f"v_and_b32 {V(T3)}, 3, {V(T3)}")
    a(f"v_lshl_add_u32 {V(A_KW)}, {V(T3)}, 3, {V(A_KW)}")
    a(f"v_add_u32 {V(A_KW)}, {KT_LDS}, {V(A_KW)}")
    a(f"v_lshl_add_u32 {V(T3)}, {V(G)}, 2, {V(R_)}")
    a(f"v_lshlrev_b32 {V(A_TRK)}, 5, {V(T3)}")
    a(f"v_add_u32 {V(T3)}, {V(C_)}, {V(G)}")
    a(f"v_and_b32 {V(T3)}, 3, {V(T3)}")
    a(f"v_lshl_add_u32 {V(A_TRK)}, {V(T3)}, 3, {V(A_TRK)}")
    a(f"v_add_u32 {V(A_TRK)}, {KT_LDS}, {V(A_TRK)}")
    a(f"v_lshlrev_b32 {V(G_PST)}, 15, {V(N)}")
    a(f"v_lshl_add_u32 {V(G_PST)}, {V(G)}, 4, {V(G_PST)}")
    a(f"v_lshlrev_b32 {V(G_PLD)}, 10, {V(G)}")
    a(f"v_lshl_add_u32 {V(G_PLD)}, {V(N)}, 4, {V(G_PLD)}")
    a(f"v_lshlrev_b32 {V(G_OUT)}, 6, {V(R_)}")
    a(f"v_lshl_add_u32 {V(G_OUT)}, {V(G)}, 5, {V(G_OUT)}")
    a(f"v_lshl_add_u32 {V(G_OUT)}, {V(C_)}, 3, {V(G_OUT)}")
    a(f"s_lshl_b32 {S(S_T0)}, {S(S_W)}, 8")
    a(f"v_add_u32 {V(G_OUT)}, {S(S_T0)}, {V(G_OUT)}")
    a(f"v_cmp_lt_u32 vcc, 1, {V(G)}")
    a(f"v_mov_b32 {V(T3)}, 0x7ff00000")
    a("s_nop 0")
    a(f"v_cndmask_b32 {V(G_OUT)}, {V(G_OUT)}, {V(T3)}, vcc")
    a(f"v_and_b32 {V(T1)}, 1, {V(N)}")
    a(f"v_lshlrev_b32 {V(T1)}, 4, {V(T1)}")
    a(f"v_mov_b32 {V(T2)}, 0x3f80")
    a(f"v_lshlrev_b32 {V(T2)}, {V(T1)}, {V(T2)}")
    a(f"v_bfe_u32 {V(T1)}, {V(N)}, 1, 2")
    for rr in range(4):
        a(f"v_cmp_eq_u32 vcc, {rr}, {V(T1)}")
        a(f"v_mov_b32 {V(SEL+rr)}, 0")
        a("s_nop 0")
        a(f"v_cndmask_b32 {V(SEL+rr)}, {V(SEL+rr)}, {V(T2)}, vcc")
    srd(a, SRD_C, 72, 1792 * 2)
    a(f"s_lshl_b32 {S(S_T0)}, {S(S_HC)}, 7")
    a(f"s_lshl_b32 {S(S_T1)}, {S(S_W)}, 5")
    a(f"s_add_u32 {S(S_T0)}, {S(S_T0)}, {S(S_T1)}")
    a(f"v_lshlrev_b32 {V(T1)}, 3, {V(G)}")
    a(f"buffer_load_dwordx2 {V(T2,2)}, {V(T1)}, {S(SRD_C,4)}, {S(S_T0)} offen")
    a("s_waitcnt vmcnt(0)")
    a(f"v_lshlrev_b32 {V(B1)}, 16, {V(T2)}")
    a(f"v_and_b32 {V(B1+1)}, 0xffff0000, {V(T2)}")
    a(f"v_lshlrev_b32 {V(B1+2)}, 16, {V(T3)}")
    a(f"v_and_b32 {V(B1+3)}, 0xffff0000, {V(T3)}")
    S_M0, S_M1 = 64, 72
    for r in range(4):
        a(f"v_lshl_add_u32 {V(T1)}, {V(G)}, 2, {r}")
        a(f"v_cmp_le_u32 {S(S_M1+2*r,2)}, {V(T1)}, {V(N)}")
    a("s_nop 3")
    a(f"s_cmp_ge_u32 {S(S_W)}, 2")
    for r in range(4):
        a(f"s_cselect_b64 {S(S_M0+2*r,2)}, -1, {S(S_M1+2*r,2)}")
        a(f"s_cselect_b64 {S(S_M1+2*r,2)}, {S(S_M1+2*r,2)}, 0")
    a(f"v_lshlrev_b32 {V(L16)}, 4, {V(L)}")
    a(f"v_and_b32 {V(7)}, 31, {V(L)}")
    a(f"v_lshlrev_b32 {V(7)}, 2, {V(7)}")
    srd(a, SRD_A, 0, 2048 * 512 * 2)
    srd(a, SRD_B, 88, 2048 * 512 * 2)
    S_C = 80
    a(f"s_mov_b32 {S(S_C)}, {f2u(C_SCALE):#x}")
    S_L2E = 81
    a(f"s_mov_b32 {S(S_L2E)}, {f2u(LOG2E):#x}")
    A_ACTW, A_OW = 16, 17
    a(f"s_lshr_b32 {S(S_T0)}, {S(S_W)}, 1")
    a(f"s_lshl_b32 {S(S_T0)}, {S(S_T0)}, 10")
    a(f"s_and_b32 {S(S_T1)}, {S(S_W)}, 1")
    a(f"s_lshl_b32 {S(S_T2)}, {S(S_T1)}, 3")
    a(f"s_add_u32 {S(S_T0)}, {S(S_T0)}, {S(S_T2)}")
    a(f"s_add_u32 {S(S_T0)}, {S(S_T0)}, {ACT_O}")
    a(f"v_add_u32 {V(A_ACTW)}, {S(S_T0)}, {V(L16)}")
    a(f"s_lshr_b32 {S(S_T0)}, {S(S_W)}, 1")
    a(f"s_lshl_b32 {S(S_T0)}, {S(S_T0)}, 12")
    a(f"s_lshl_b32 {S(S_T1)}, {S(S_T1)}, 11")
    a(f"s_add_u32 {S(S_T0)}, {S(S_T0)}, {S(S_T1)}")
    a(f"s_add_u32 {S(S_T0)}, {S(S_T0)}, {O_LDS}")
    a(f"v_add_u32 {V(A_OW)}, {S(S_T0)}, {V(L16)}")
    poll_word(a, SRD_DBG, "32", f"s_cmp_ge_u32 {S(S_T0)}, 224", T3, "c0b")
    a(f"s_mov_b32 {S(S_SEG)}, {S(S_TEAM)}")
    a(f"s_mov_b32 {S(S_J)}, 0")
    a("s_barrier")
    xn_dma(a, 0, XS, S_SEG)
    FA = 128
    XF = 32
    a.label("L_w2_loop")
    a("s_waitcnt vmcnt(0)")
    a("s_barrier")
    for r in range(FA, FA + 64, 2):
        a(f"v_mov_b64 {V(r,2)}, 0")
    Lnf = a.newlabel("L_w2_noffn")
    a(f"s_cmp_eq_u32 {S(S_FFN)}, 0")
    a(f"s_cbranch_scc1 {Lnf}")
    H = 48
    for r in range(H, H + 8, 2): a(f"v_mov_b64 {V(r,2)}, 0")
    def rdx(u):
        b = XF + 8 * (u & 1)
        for tt in range(2):
            a(f"ds_read_b128 {V(b+4*tt,4)}, {V(L16)} offset:{(tt*16+u)*1024}")
    rdx(0)
    for u in range(16):
        if u < 15:
            rdx(u + 1); a("s_waitcnt lgkmcnt(2)")
        else:
            a("s_waitcnt lgkmcnt(0)")
        b = XF + 8 * (u & 1)
        for tt in range(2):
            a(f"v_mfma_f32_16x16x32_bf16 {V(H+4*tt,4)}, {A(192+4*u,4)}, {V(b+4*tt,4)}, {V(H+4*tt,4)}")
    a("s_nop 7")
    U, NN, DD, T_ = 56, 57, 58, 59
    for tt in range(2):
        for r in range(4):
            h = H + 4 * tt + r
            a(f"v_add_f32 {V(h)}, {V(h)}, {V(B1+r)}")
            a(f"v_mul_f32 {V(U)}, {S(S_L2E)}, {V(h)}")
            a(f"v_exp_f32 {V(U)}, -|{V(U)}|")
            a(f"v_cmp_le_f32 vcc, 0, {V(h)}")
            a(f"v_add_f32 {V(T_)}, {V(U)}, {V(U)}")
            a(f"v_fma_f32 {V(NN)}, {V(U)}, {V(U)}, {V(T_)}")
            a(f"v_add_f32 {V(DD)}, 1.0, {V(T_)}")
            a(f"v_mul_f32 {V(T_)}, {V(T_)}, {V(U)}")
            a(f"v_cndmask_b32 {V(NN)}, {V(NN)}, {V(DD)}, vcc")
            a(f"v_cndmask_b32 {V(T_)}, 2.0, {V(T_)}, vcc")
            a(f"v_add_f32 {V(DD)}, {V(NN)}, {V(T_)}")
            a(f"v_rcp_f32 {V(DD)}, {V(DD)}")
            a(f"v_mul_f32 {V(NN)}, {V(NN)}, {V(h)}")
            a(f"v_mul_f32 {V(h)}, {V(NN)}, {V(DD)}")
        a(f"v_cvt_pk_bf16_f32 {V(H+4*tt)}, {V(H+4*tt)}, {V(H+4*tt+1)}")
        a(f"v_cvt_pk_bf16_f32 {V(H+4*tt+1)}, {V(H+4*tt+2)}, {V(H+4*tt+3)}")
        a(f"ds_write_b64 {V(A_ACTW)}, {V(H+4*tt,2)} offset:{tt*2048}")
    a.label(Lnf)
    a("s_waitcnt lgkmcnt(0)")
    a("s_barrier")
    a(f"s_add_u32 {S(S_T3)}, {S(S_SEG)}, {NTEAM}")
    a(f"s_min_u32 {S(44)}, {S(S_T3)}, 63")
    xn_dma(a, 0, XS, 44)
    Lnf = a.newlabel("L_w2_noffn2")
    a(f"s_cmp_eq_u32 {S(S_FFN)}, 0")
    a(f"s_cbranch_scc1 {Lnf}")
    for tt in range(2):
        for uu in range(2):
            a(f"ds_read_b128 {V(XF+4*(2*tt+uu),4)}, {V(L16)} offset:{ACT_O + (tt*2+uu)*1024}")
    a("s_waitcnt lgkmcnt(0)")
    for tt in range(2):
        for tau in range(8):
            for uu in range(2):
                acc = V(FA + (tt*8+tau)*4, 4)
                a(f"v_mfma_f32_16x16x32_bf16 {acc}, {A(128+(tau*2+uu)*4,4)}, {V(XF+4*(2*tt+uu),4)}, {acc}")
    a.label(Lnf)
    a(f"s_lshl_b32 {S(S_T1)}, {S(S_SEG)}, 5")
    a(f"s_add_u32 {S(S_T1)}, {S(S_T1)}, {S(S_H)}")
    a(f"s_mov_b32 {S(46)}, {S(S_T1)}")
    a(f"s_lshl_b32 {S(S_T1)}, {S(S_T1)}, 2")
    a(f"s_add_u32 {S(45)}, {S(S_T1)}, {FLAG_OFF}")
    poll_word(a, SRD_WS, S(45), f"s_cmp_eq_u32 {S(S_T0)}, 1", T3, "kv")
    a(f"s_add_u32 {S(45)}, {S(45)}, {KVMF_OFF - FLAG_OFF}")
    poll_word(a, SRD_WS, S(45), f"s_cmp_lg_u32 {S(S_T0)}, 0", T3, "kvm")
    QF, KF0, KF1, VF, REC, VMR = 32, 48, 64, 80, 96, 98
    a(f"s_lshl_b32 {S(45)}, {S(46)}, 13")
    a(f"s_lshr_b32 {S(S_T0)}, {S(S_W)}, 1")
    a(f"s_lshl_b32 {S(S_T0)}, {S(S_T0)}, 12")
    a(f"s_add_u32 {S(S_T1)}, {S(45)}, {S(S_T0)}")
    a(f"s_add_u32 {S(S_T1)}, {S(S_T1)}, {QF_OFF}")
    for u in range(4):
        a(f"buffer_load_dwordx4 {V(QF+4*u,4)}, {V(L16)}, {S(SRD_WS,4)}, {S(S_T1)} offen offset:{u*1024} sc1")
    a(f"s_add_u32 {S(S_T1)}, {S(45)}, {KF_OFF}")
    for u in range(4):
        a(f"buffer_load_dwordx4 {V(KF0+4*u,4)}, {V(L16)}, {S(SRD_WS,4)}, {S(S_T1)} offen offset:{u*1024} sc1")
    a(f"s_add_u32 {S(S_T1)}, {S(S_T1)}, 4096")
    for u in range(4):
        a(f"buffer_load_dwordx4 {V(KF1+4*u,4)}, {V(L16)}, {S(SRD_WS,4)}, {S(S_T1)} offen offset:{u*1024} sc1")
    a(f"s_and_b32 {S(S_T0)}, {S(S_W)}, 1")
    a(f"s_lshl_b32 {S(S_T2)}, {S(S_T0)}, 12")
    a(f"s_add_u32 {S(S_T1)}, {S(45)}, {S(S_T2)}")
    a(f"s_add_u32 {S(S_T1)}, {S(S_T1)}, {VF_OFF}")
    for t in range(4):
        a(f"buffer_load_dwordx4 {V(VF+4*t,4)}, {V(L16)}, {S(SRD_WS,4)}, {S(S_T1)} offen offset:{t*1024} sc1")
    a(f"s_lshl_b32 {S(45)}, {S(46)}, 12")
    a(f"s_add_u32 {S(45)}, {S(45)}, {KVM_OFF}")
    a(f"s_lshl_b32 {S(S_T1)}, {S(S_W)}, 10")
    a(f"s_add_u32 {S(S_T1)}, {S(S_T1)}, {S(45)}")
    a(f"buffer_load_dwordx2 {V(REC,2)}, {V(L16)}, {S(SRD_WS,4)}, {S(S_T1)} offen sc1")
    a(f"s_lshl_b32 {S(S_T1)}, {S(S_T0)}, 11")
    a(f"s_add_u32 {S(S_T1)}, {S(S_T1)}, {S(45)}")
    for k in range(2):
        a(f"buffer_load_dwordx2 {V(VMR+2*k,2)}, {V(L16)}, {S(SRD_WS,4)}, {S(S_T1)} offen offset:{k*1024+8} sc1")
    a("s_waitcnt vmcnt(2)")
    a(f"ds_write_b32 {V(A_KW)}, {V(REC)}")
    a(f"ds_write_b32 {V(A_KW)}, {V(REC+1)} offset:512")
    a("s_waitcnt vmcnt(0) lgkmcnt(0)")
    a("s_barrier")
    KM = 104
    for u in range(4):
        for f in range(2):
            a(f"ds_read_b64_tr_b16 {V(KM+4*u+2*f,2)}, {V(A_TRK)} offset:{u*1024 + f*512}")
    ST0, ST1, SM = 20, 24, 28
    for u in range(4):
        a(f"v_mfma_f32_16x16x32_bf16 {V(ST0,4)}, {V(KF0+4*u,4)}, {V(QF+4*u,4)}, {'0' if u == 0 else V(ST0,4)}")
        a(f"v_mfma_f32_16x16x32_bf16 {V(ST1,4)}, {V(KF1+4*u,4)}, {V(QF+4*u,4)}, {'0' if u == 0 else V(ST1,4)}")
    a("s_waitcnt lgkmcnt(0)")
    for u in range(4):
        a(f"v_mfma_f32_16x16x32_bf16 {V(SM,4)}, {V(KM+4*u,4)}, {V(QF+4*u,4)}, {'0' if u == 0 else V(SM,4)}")
    NEG, MX, MX2, LS, LS2 = 120, 121, 122, 123, 124
    a(f"v_mov_b32 {V(NEG)}, 0xf149f2ca")
    a("s_nop 6")
    for r in range(4):
        a(f"v_cndmask_b32 {V(ST0+r)}, {V(NEG)}, {V(ST0+r)}, {S(S_M0+2*r,2)}")
        a(f"v_cndmask_b32 {V(ST1+r)}, {V(NEG)}, {V(ST1+r)}, {S(S_M1+2*r,2)}")
    SV = [ST0, ST0+1, ST0+2, ST0+3, ST1, ST1+1, ST1+2, ST1+3, SM, SM+1]
    a(f"v_max3_f32 {V(MX)}, {V(SV[0])}, {V(SV[1])}, {V(SV[2])}")
    a(f"v_max3_f32 {V(MX2)}, {V(SV[3])}, {V(SV[4])}, {V(SV[5])}")
    a(f"v_max3_f32 {V(MX)}, {V(MX)}, {V(SV[6])}, {V(SV[7])}")
    a(f"v_max3_f32 {V(MX2)}, {V(MX2)}, {V(SV[8])}, {V(SV[9])}")
    a(f"v_max_f32 {V(MX)}, {V(MX)}, {V(MX2)}")
    for sw in ("v_permlane32_swap_b32", "v_permlane16_swap_b32"):
        a(f"v_mov_b32 {V(MX2)}, {V(MX)}")
        a("s_nop 1")
        a(f"{sw} {V(MX)}, {V(MX2)}")
        a(f"v_max_f32 {V(MX)}, {V(MX)}, {V(MX2)}")
    a(f"v_mul_f32 {V(MX)}, {S(S_C)}, {V(MX)}")
    for k in range(10):
        a(f"v_fma_f32 {V(SV[k])}, {V(SV[k])}, {S(S_C)}, -{V(MX)}")
    for k in range(10):
        a(f"v_exp_f32 {V(SV[k])}, {V(SV[k])}")
    PT, PM0, PM1 = 32, 36, 38
    a("s_nop 0")
    for k in range(4):
        a(f"v_cvt_pk_bf16_f32 {V(PT+k)}, {V(SV[2*k])}, {V(SV[2*k+1])}")
    a(f"v_cvt_pk_bf16_f32 {V(PM0)}, {V(SV[8])}, {V(SV[9])}")
    a(f"v_cvt_pk_bf16_f32 {V(PM1+1)}, {V(SV[8])}, {V(SV[9])}")
    a(f"v_mov_b32 {V(PM0+1)}, 0")
    a(f"v_mov_b32 {V(PM1)}, 0")
    OA = 48
    a("s_nop 1")
    for t in range(4):
        a(f"v_mfma_f32_16x16x32_bf16 {V(OA+4*t,4)}, {V(VF+4*t,4)}, {V(PT,4)}, 0")
    for t in range(4):
        a(f"v_mfma_f32_16x16x16_bf16 {V(OA+4*t,4)}, {V(VMR+2*(t>>1),2)}, {V(PM0 if t % 2 == 0 else PM1,2)}, {V(OA+4*t,4)}")
    a(f"v_add_f32 {V(LS)}, {V(SV[0])}, {V(SV[1])}")
    for k in range(2, 10):
        a(f"v_add_f32 {V(LS)}, {V(LS)}, {V(SV[k])}")
    for sw in ("v_permlane32_swap_b32", "v_permlane16_swap_b32"):
        a(f"v_mov_b32 {V(LS2)}, {V(LS)}")
        a("s_nop 1")
        a(f"{sw} {V(LS)}, {V(LS2)}")
        a(f"v_add_f32 {V(LS)}, {V(LS)}, {V(LS2)}")
    a(f"v_rcp_f32 {V(LS)}, {V(LS)}")
    a("s_nop 3")
    for k in range(16):
        a(f"v_mul_f32 {V(OA+k)}, {V(OA+k)}, {V(LS)}")
    for t in range(4):
        a(f"v_cvt_pk_bf16_f32 {V(OA+4*t)}, {V(OA+4*t)}, {V(OA+4*t+1)}")
        a(f"v_cvt_pk_bf16_f32 {V(OA+4*t+1)}, {V(OA+4*t+2)}, {V(OA+4*t+3)}")
        a(f"ds_write_b64 {V(A_OW)}, {V(OA+4*t,2)} offset:{(t>>1)*1024 + (t&1)*8}")
    a("s_waitcnt lgkmcnt(0)")
    a("s_barrier")
    OF = 64
    for tt in range(2):
        for u in range(4):
            a(f"ds_read_b128 {V(OF+4*(tt*4+u),4)}, {V(L16)} offset:{O_LDS + (tt*4+u)*1024}")
    a("s_waitcnt lgkmcnt(0)")
    for tt in range(2):
        for tau in range(8):
            for u in range(4):
                acc = V(FA + (tt*8+tau)*4, 4)
                a(f"v_mfma_f32_16x16x32_bf16 {acc}, {A((tau*4+u)*4,4)}, {V(OF+4*(tt*4+u),4)}, {acc}")
    a("s_nop 7")
    S_SLOT = 47
    a(f"s_and_b32 {S(S_T0)}, {S(S_J)}, 1")
    a(f"s_lshl_b32 {S(S_T0)}, {S(S_T0)}, 20")
    a(f"s_lshl_b32 {S(S_T1)}, {S(S_TEAM)}, 21")
    a(f"s_add_u32 {S(S_T0)}, {S(S_T0)}, {S(S_T1)}")
    a(f"s_add_u32 {S(S_SLOT)}, {S(S_T0)}, {W2P_OFF}")
    a(f"s_lshl_b32 {S(S_T0)}, {S(S_H)}, 10")
    a(f"s_lshl_b32 {S(S_T1)}, {S(S_W)}, 8")
    a(f"s_add_u32 {S(S_T0)}, {S(S_T0)}, {S(S_T1)}")
    a(f"s_add_u32 {S(S_T0)}, {S(S_T0)}, {S(S_SLOT)}")
    PKD = 32
    for tt in range(2):
        for tp in range(4):
            o = PKD + 4 * ((tt * 4 + tp) % 8)
            for k in range(2):
                acc = FA + (tt*8 + 2*tp + k) * 4
                a(f"v_cvt_pk_bf16_f32 {V(o+2*k)}, {V(acc)}, {V(acc+1)}")
                a(f"v_cvt_pk_bf16_f32 {V(o+2*k+1)}, {V(acc+2)}, {V(acc+3)}")
            a(f"buffer_store_dwordx4 {V(o,4)}, {V(G_PST)}, {S(SRD_WS,4)}, {S(S_T0)} offen offset:{tp*64}")
        if tt == 0: a(f"s_add_u32 {S(S_T0)}, {S(S_T0)}, {16*32768}")
    XR = 64
    a(f"s_lshl_b32 {S(S_T1)}, {S(S_SEG)}, 5")
    a(f"s_add_u32 {S(S_T1)}, {S(S_T1)}, {S(S_H)}")
    a(f"s_lshl_b32 {S(46)}, {S(S_T1)}, 10")
    a(f"buffer_load_dwordx2 {V(XR,2)}, {V(G_OUT)}, {S(SRD_A,4)}, {S(46)} offen")
    a("s_waitcnt vmcnt(0)")
    a("s_barrier")
    a(f"s_add_u32 {S(S_J)}, {S(S_J)}, 1")
    Lf = a.newlabel("L_w2_flag")
    a(f"s_lshl_b32 {S(45)}, {S(S_TEAM)}, 7")
    a(f"s_add_u32 {S(45)}, {S(45)}, {W2F_OFF}")
    a(f"s_cmp_eq_u32 {S(S_W)}, 0")
    a(f"s_cbranch_scc0 {Lf}")
    a(f"v_mov_b32 {V(T3)}, {S(S_J)}")
    a(f"s_lshl_b32 {S(S_T0)}, {S(S_H)}, 2")
    a(f"s_add_u32 {S(S_T0)}, {S(S_T0)}, {S(45)}")
    a(f"buffer_store_dword {V(T3)}, off, {S(SRD_WS,4)}, {S(S_T0)}")
    a.label(Lf)
    Lp = a.newlabel("L_w2_poll"); Ld = Lp + "_d"
    a(f"s_mov_b32 {S(S_CNT)}, 0")
    a.label(Lp)
    a(f"s_cmp_eq_u32 {S(S_FAIL)}, 1")
    a(f"s_cbranch_scc1 {Ld}")
    a(f"buffer_load_dword {V(T2)}, {V(7)}, {S(SRD_WS,4)}, {S(45)} offen sc1")
    a("s_waitcnt vmcnt(0)")
    a(f"v_cmp_gt_u32 vcc, {S(S_J)}, {V(T2)}")
    a(f"s_cbranch_vccz {Ld}")
    a("s_sleep 1")
    a(f"s_add_u32 {S(S_CNT)}, {S(S_CNT)}, 1")
    a(f"s_cmp_lt_u32 {S(S_CNT)}, {SPIN_MAX}")
    a(f"s_cbranch_scc1 {Lp}")
    a(f"s_mov_b32 {S(S_FAIL)}, 1")
    a.label(Ld)
    IN = 32
    a(f"s_lshl_b32 {S(S_T0)}, {S(S_H)}, 15")
    a(f"s_lshl_b32 {S(S_T1)}, {S(S_W)}, 8")
    a(f"s_add_u32 {S(S_T0)}, {S(S_T0)}, {S(S_T1)}")
    a(f"s_add_u32 {S(S_T0)}, {S(S_T0)}, {S(S_SLOT)}")
    for i in range(8):
        a(f"buffer_load_dwordx4 {V(IN+4*i,4)}, {V(G_PLD)}, {S(SRD_WS,4)}, {S(S_T0)} offen sc1")
        if i < 7: a(f"s_add_u32 {S(S_T0)}, {S(S_T0)}, 4096")
    RA = 68
    for i in range(8):
        a(f"s_waitcnt vmcnt({7-i})")
        a(f"v_mfma_f32_16x16x32_bf16 {V(RA,4)}, {V(SEL,4)}, {V(IN+4*i,4)}, {'0' if i == 0 else V(RA,4)}")
    a(f"v_lshlrev_b32 {V(72)}, 16, {V(XR)}")
    a(f"v_and_b32 {V(73)}, 0xffff0000, {V(XR)}")
    a(f"v_lshlrev_b32 {V(74)}, 16, {V(XR+1)}")
    a(f"v_and_b32 {V(75)}, 0xffff0000, {V(XR+1)}")
    a("s_nop 4")
    for r in range(4):
        a(f"v_add_f32 {V(RA+r)}, {V(RA+r)}, {V(72+r)}")
    a(f"v_cvt_pk_bf16_f32 {V(RA)}, {V(RA)}, {V(RA+1)}")
    a(f"v_cvt_pk_bf16_f32 {V(RA+1)}, {V(RA+2)}, {V(RA+3)}")
    a(f"buffer_store_dwordx2 {V(RA,2)}, {V(G_OUT)}, {S(SRD_B,4)}, {S(46)} offen")
    a(f"s_add_u32 {S(S_SEG)}, {S(S_SEG)}, {NTEAM}")
    a(f"s_cmp_lt_u32 {S(S_SEG)}, 64")
    a("s_cbranch_scc1 L_w2_loop")
    a("s_waitcnt vmcnt(0)")
```

```python
import sys
from asm import *
from common import *
import rec3 as rec
import wk
def build(dbg=False, timing=False, stamps=False):
    a = Asm()
    entry(a)
    if stamps: a("s_memrealtime s[92:93]")
    a("s_cmp_eq_u32 s6, 0")
    a("s_cbranch_scc0 L_worker")
    rec.prologue(a, dbg)
    if stamps:
        a("s_memrealtime s[94:95]")
        a("s_waitcnt lgkmcnt(0)")
    rec.loop(a, dbg, timing)
    a("s_branch L_fin_all")
    a.label("L_worker")
    wk.w0(a)
    a("s_cmp_ge_u32 s6, 4")
    a("s_cbranch_scc1 L_w2")
    wk.w1(a)
    a("s_mov_b32 s94, s92")
    a("s_branch L_fin_all")
    a.label("L_w2")
    wk.w2(a)
    a("s_mov_b32 s94, s92")
    a.label("L_fin_all")
    if stamps:
        a("s_memrealtime s[90:91]")
        a("s_waitcnt lgkmcnt(0)")
        a("s_cmp_eq_u32 s5, 0")
        a("s_cbranch_scc0 L_end")
        a("v_mov_b32 v20, s92")
        a("v_mov_b32 v21, s94")
        a("v_mov_b32 v22, s90")
        a("v_mov_b32 v23, s17")
        a("s_lshl_b32 s40, s6, 5")
        a("s_add_u32 s40, s40, s4")
        a("s_lshl_b32 s40, s40, 4")
        a(f"s_add_u32 s40, s40, {DBG_OFF + 0x200000}")
        a("buffer_store_dwordx4 v[20:23], off, s[8:11], s40")
        a("s_waitcnt vmcnt(0)")
    a.label("L_end")
    a("s_endpgm")
    return a
if __name__ == "__main__":
    out = sys.argv[1]
    for x in sys.argv:
        if x.startswith("p:"):
            k, v = x[2:].split("="); rec.PARAM[k] = int(v) if v.isdigit() else v
    rec.PARAM.setdefault("pre1", 0)
    rec.OPT = set(x[4:] for x in sys.argv if x.startswith("opt:"))
    wk.OPT = set(x[4:] for x in sys.argv if x.startswith("wopt:"))
    t = Asm(); wk.w2(t); check(t.lines, "w2")
    t = Asm(); wk.w1(t); check(t.lines, "w1")
    a = build(dbg="dbg" in sys.argv, timing="timing" in sys.argv, stamps="stamps" in sys.argv)
    a.lines, st = align_pass(a.lines); print("align", st, "lines", len(a.lines))
    txt = HEADER.format(name=NAME) + a.text() + FOOTER.format(name=NAME)
    open(out, "w").write(txt)
    print("bytes", len(txt))
```

```python
from asm import *
from layout import *

IDX, A_MF, A_WQ0, A_WQ1, HI16, A_VX, A_QW, A_KW, A_TRQ, A_TRK, A_OW, G_PST = range(12)
G_PUB, V_FL = 12, 13
ZERO = 14
SV1 = 15
MF = 16
RING = 48
ACCQ, ACCK, ACCV = 104, 112, 120
WO = 128
KXF = 64
QF = (96, 100, 48, 52)
KV4 = 56
SENT = 60
PT = 116
OACC = 96
OF = 48

S_H, S_W = 4, 5
SRD_WS = 8
S_STEP = 16
S_FAIL = 17
S_CNT = 18
S_C = 20
S_ODD = 22
S_PST = 24
S_PLD = 28
S_MLD = 30
S_PUB = 32
S_KVM = 34
S_KD = 35
S_VD = 36
S_FLG = 37
S_KVMF = 38
S_SEL = 56
S_T0, S_T1, S_T2 = 41, 42, 43
S_FLG0 = 19
S_TM = 44
SRD_W = 48
SRD_DBG = 52
SPIN_MAX = 1 << 19
FAST = False
OPT = set()

C_SCALE = (128 ** -0.5) * 1.4426950408889634


def f2u(x):
    import struct
    return struct.unpack("<I", struct.pack("<f", x))[0]


def weave(a, mf, fill, per=1):
    fill = list(fill)
    for m in mf:
        a(m)
        for _ in range(per):
            if fill:
                x = fill.pop(0)
                if x is not None:
                    a(x)
    for x in fill:
        if x is not None:
            a(x)


def wq_read(phi, half):
    T, tile = phi >> 1, phi & 1
    slot = phi % 7
    r = RING + 8 * slot + 4 * half
    base = A_WQ0 if T < 4 else A_WQ1
    off = (T & 3) * 16384 + tile * 2048 + half * 1024
    return f"ds_read_b128 {V(r,4)}, {V(base)} offset:{off}"


def lane_setup(a, l):
    a(f"v_and_b32 {V(l)}, 63, v0")


def emit_spin_check(a, lab_retry, lab_done):
    a(f"s_add_u32 {S(S_CNT)}, {S(S_CNT)}, 1")
    a(f"s_cmp_lt_u32 {S(S_CNT)}, {SPIN_MAX}")
    a(f"s_cbranch_scc1 {lab_retry}")
    a(f"s_mov_b32 {S(S_FAIL)}, 1")


def poll_word(a, srd, soff_text, cond_text, vtmp, name):
    L = a.newlabel("L_pw_" + name)
    D = L + "_d"
    a(f"s_mov_b32 {S(S_CNT)}, 0")
    a.label(L)
    a(f"s_cmp_eq_u32 {S(S_FAIL)}, 1")
    a(f"s_cbranch_scc1 {D}")
    a(f"buffer_load_dword {V(vtmp)}, off, {S(srd,4)}, {soff_text} sc1")
    a("s_waitcnt vmcnt(0)")
    a(f"v_readfirstlane_b32 {S(S_T0)}, {V(vtmp)}")
    a("s_nop 3")
    a(cond_text)
    a(f"s_cbranch_scc1 {D}")
    a("s_sleep 2")
    emit_spin_check(a, L, D)
    a.label(D)


def prologue(a, dbg=False):
    L, N, G, T1, T2, T3 = 100, 101, 102, 103, 104, 105
    a(f"s_mov_b32 {S(S_FAIL)}, 0")
    a(f"v_and_b32 {V(L)}, 63, v0")
    a(f"v_and_b32 {V(N)}, 15, {V(L)}")
    a(f"v_lshrrev_b32 {V(G)}, 4, {V(L)}")
    for i in range(4):
        a(f"v_mov_b32 {V(20+i)}, -1")
    a(f"s_lshl_b32 {S(S_T0)}, {S(S_H)}, 13")
    a(f"s_lshl_b32 {S(S_T1)}, {S(S_W)}, 11")
    a(f"s_add_u32 {S(S_T0)}, {S(S_T0)}, {S(S_T1)}")
    a(f"s_add_u32 {S(S_T0)}, {S(S_T0)}, {P_OFF}")
    a(f"s_add_u32 {S(S_T1)}, {S(S_T0)}, 262144")
    a(f"v_lshlrev_b32 {V(T1)}, 4, {V(L)}")
    for i in range(2):
        a(f"buffer_store_dwordx4 {V(20,4)}, {V(T1)}, {S(SRD_WS,4)}, {S(S_T0)} offen offset:{i*1024}")
    a(f"v_lshlrev_b32 {V(T1)}, 13, {V(G)}")
    a(f"v_lshlrev_b32 {V(T2)}, 4, {V(N)}")
    a(f"v_add_u32 {V(T1)}, {V(T1)}, {V(T2)}")
    a(f"v_mov_b32 {V(T2)}, 0x7ff00000")
    a(f"v_cmp_gt_u32 vcc, 32, {V(L)}")
    a("s_nop 1")
    a(f"v_cndmask_b32 {V(T1)}, {V(T2)}, {V(T1)}, vcc")
    a(f"s_lshl_b32 {S(S_T0)}, {S(S_H)}, 8")
    a(f"s_add_u32 {S(S_T0)}, {S(S_T0)}, {M_OFF}")
    a(f"buffer_store_dwordx4 {V(20,4)}, {V(T1)}, {S(SRD_WS,4)}, {S(S_T0)} offen")
    a("s_load_dwordx2 s[56:57], s[0:1], 8")
    a("s_load_dwordx2 s[58:59], s[0:1], 16")
    a("s_load_dwordx2 s[60:61], s[0:1], 24")
    a("s_load_dwordx2 s[62:63], s[0:1], 32")
    a("s_load_dwordx2 s[64:65], s[0:1], 40")
    a(f"v_and_b32 {V(T1)}, 3, v0")
    a(f"v_lshlrev_b32 {V(T1)}, 11, {V(T1)}")
    a(f"v_bfe_u32 {V(T2)}, v0, 2, 1")
    a(f"v_lshlrev_b32 {V(T2)}, 6, {V(T2)}")
    a(f"v_add_u32 {V(T1)}, {V(T1)}, {V(T2)}")
    a(f"v_bfe_u32 {V(T2)}, v0, 3, 4")
    a(f"v_lshlrev_b32 {V(T2)}, 1, {V(T2)}")
    a(f"v_add_u32 {V(T1)}, {V(T1)}, {V(T2)}")
    a(f"v_lshrrev_b32 {V(T2)}, 7, v0")
    a(f"v_lshlrev_b32 {V(T2)}, 7, {V(T2)}")
    a(f"v_add_u32 {V(T1)}, {V(T1)}, {V(T2)}")
    a("s_waitcnt lgkmcnt(0)")
    a(f"s_mov_b32 {S(SRD_W)}, s56")
    a(f"s_and_b32 {S(SRD_W+1)}, s57, 0xffff")
    a(f"s_mov_b32 {S(SRD_W+2)}, 8192")
    a(f"s_mov_b32 {S(SRD_W+3)}, 0x20000")
    for k in range(4):
        for e, off in enumerate((0, 32, 1024, 1024 + 32)):
            a(f"buffer_load_ushort {V(64+4*k+e)}, {V(T1)}, {S(SRD_W,4)}, 0 offen offset:{k*256+off}")
    for dst, src in ((68, 60), (72, 62), (76, 64), (80, 58)):
        a(f"s_mov_b32 {S(dst)}, {S(src)}")
        a(f"s_and_b32 {S(dst+1)}, {S(src+1)}, 0xffff")
        a(f"s_mov_b32 {S(dst+2)}, 0x400000")
        a(f"s_mov_b32 {S(dst+3)}, 0x20000")
    a(f"s_and_b32 {S(S_T0)}, {S(S_W)}, 1")
    a(f"s_lshl_b32 {S(S_T0)}, {S(S_T0)}, 3")
    a(f"v_and_b32 {V(T1)}, 1, {V(G)}")
    a(f"v_lshlrev_b32 {V(T1)}, 1, {V(T1)}")
    a(f"v_or_b32 {V(T1)}, {S(S_T0)}, {V(T1)}")
    a(f"v_xor_b32 {V(T1)}, {V(T1)}, {V(N)}")
    a(f"s_lshl_b32 {S(S_T1)}, {S(S_W)}, 4")
    a(f"s_lshl_b32 {S(S_T2)}, {S(S_H)}, 8")
    for i in range(4):
        a(f"v_xor_b32 {V(T2)}, {4*(i&1)}, {V(T1)}")
        a(f"v_lshlrev_b32 {V(T2)}, 4, {V(T2)}")
        a(f"v_add_u32 {V(T3)}, {S(S_T1)}, {V(G)}")
        a(f"v_add_u32 {V(T3)}, {4*i}, {V(T3)}")
        a(f"v_lshlrev_b32 {V(24+i)}, 13, {V(T3)}")
        a(f"v_add_u32 {V(24+i)}, {V(24+i)}, {V(T2)}")
        a(f"v_add_u32 {V(24+i)}, {S(S_T2)}, {V(24+i)}")
        a(f"v_lshlrev_b32 {V(28+i)}, 10, {V(T3)}")
        a(f"v_add_u32 {V(28+i)}, {V(28+i)}, {V(T2)}")
    a(f"v_lshrrev_b32 {V(T1)}, 2, {V(N)}")
    a(f"v_and_b32 {V(T2)}, 3, {V(N)}")
    a(f"v_lshrrev_b32 {V(T3)}, 1, {V(G)}")
    a(f"v_lshlrev_b32 {V(32)}, 5, {V(T3)}")
    a(f"v_and_b32 {V(T3)}, 1, {V(G)}")
    a(f"v_lshlrev_b32 {V(33)}, 2, {V(T3)}")
    a(f"v_add_u32 {V(32)}, {V(32)}, {V(33)}")
    a(f"v_lshrrev_b32 {V(T3)}, 1, {V(T1)}")
    a(f"v_lshlrev_b32 {V(34)}, 4, {V(T3)}")
    a(f"v_add_u32 {V(32)}, {V(32)}, {V(34)}")
    a(f"v_lshlrev_b32 {V(34)}, 3, {V(T3)}")
    a(f"v_add_u32 {V(33)}, {V(33)}, {V(34)}")
    a(f"v_and_b32 {V(T3)}, 1, {V(T1)}")
    a(f"v_add_u32 {V(32)}, {V(32)}, {V(T3)}")
    a(f"v_lshlrev_b32 {V(34)}, 1, {V(T3)}")
    a(f"v_add_u32 {V(33)}, {V(33)}, {V(34)}")
    a(f"v_lshlrev_b32 {V(32)}, 8, {V(32)}")
    a(f"v_lshlrev_b32 {V(34)}, 3, {V(T2)}")
    a(f"v_add_u32 {V(32)}, {V(32)}, {V(34)}")
    a(f"v_lshlrev_b32 {V(33)}, 4, {V(33)}")
    for fp in range(2):
        a(f"s_lshl_b32 {S(S_T0)}, {S(S_W)}, 6")
        a(f"s_add_u32 {S(S_T0)}, {S(S_T0)}, {32*fp}")
        a(f"v_xor_b32 {V(35+fp)}, {S(S_T0)}, {V(33)}")
        a(f"v_add_u32 {V(35+fp)}, {V(35+fp)}, {V(32)}")
    a(f"s_lshl_b32 {S(S_T0)}, {S(S_W)}, 12")
    a(f"v_lshlrev_b32 {V(T1)}, 4, {V(L)}")
    a(f"v_add_u32 {V(A_WQ0)}, {S(S_T0)}, {V(T1)}")
    a(f"v_add_u32 {V(A_WQ1)}, 0x10000, {V(A_WQ0)}")
    a(f"v_add_u32 {V(HI16)}, {HI}, {V(T1)}")

    def dma_chunk(i):
        slot = i & 7
        mat, j = i >> 3, i & 7
        for k in range(4):
            a(f"s_lshl_b32 {S(S_T0)}, {S(S_W)}, 12")
            a(f"s_add_u32 m0, {S(S_T0)}, {slot*16384 + k*1024}")
            if mat == 2:
                a(f"s_lshl_b32 {S(S_T1)}, {S(S_H)}, 17")
                a(f"s_add_u32 {S(S_T1)}, {S(S_T1)}, {(j>>2)*65536 + (j&3)*256}")
                a(f"buffer_load_dwordx4 {V(28+k)}, {S(76,4)}, {S(S_T1)} offen lds")
            else:
                srd = {0: 68, 1: 72, 3: 80}[mat]
                a(f"s_mov_b32 {S(S_T1)}, {j*524288}")
                a(f"buffer_load_dwordx4 {V(24+k)}, {S(srd,4)}, {S(S_T1)} offen lds")

    for i in range(8):
        dma_chunk(i)
    for i in range(32):
        slot = i & 7
        mat, j = i >> 3, i & 7
        later = min(i + 7, 31) - i
        a(f"s_waitcnt vmcnt({4*later})")
        a("s_barrier")
        if i == 0:
            Ls = a.newlabel("L_arr")
            a(f"s_cmp_eq_u32 {S(S_W)}, 0")
            a(f"s_cbranch_scc0 {Ls}")
            a(f"v_mov_b32 {V(T1)}, 1")
            a(f"s_mov_b64 s[56:57], exec")
            a(f"s_mov_b64 exec, 1")
            a(f"s_mov_b32 {S(S_T0)}, 36")
            a(f"buffer_atomic_add {V(T1)}, off, {S(SRD_DBG,4)}, {S(S_T0)} sc1")
            a(f"s_mov_b64 exec, s[56:57]")
            a.label(Ls)
            a(f"v_lshlrev_b32 {V(T1)}, 3, v0")
            a(f"v_add_u32 {V(T1)}, {HI + R_O[0]}, {V(T1)}")
            for k in range(4):
                a(f"v_lshl_or_b32 {V(64+4*k)}, {V(65+4*k)}, 16, {V(64+4*k)}")
                a(f"v_lshl_or_b32 {V(65+4*k)}, {V(67+4*k)}, 16, {V(66+4*k)}")
                a(f"ds_write_b64 {V(T1)}, {V(64+4*k,2)} offset:{k*2048}")
        if mat != 2:
            for fp in range(2):
                a(f"v_add_u32 {V(37+fp)}, {slot*16384}, {V(35+fp)}")
            for fp in range(2):
                for q in range(4):
                    off = (8 * (q >> 1) + 2 * (q & 1)) * 256
                    if mat == 0: dst = A((fp * 8 + j) * 8 + 2 * q, 2)
                    elif mat == 1: dst = A(128 + (fp * 8 + j) * 8 + 2 * q, 2)
                    else: dst = V(40 + 8 * fp + 2 * q, 2)
                    a(f"ds_read_b64_tr_b16 {dst}, {V(37+fp)} offset:{off}")
        else:
            Ls = a.newlabel("L_wo")
            T, wp = j >> 2, j & 3
            a(f"s_cmp_eq_u32 {S(S_W)}, {wp}")
            a(f"s_cbranch_scc0 {Ls}")
            for tau in range(8):
                a(f"v_xor_b32 {V(37)}, {32*tau}, {V(33)}")
                a(f"v_add_u32 {V(37)}, {V(37)}, {V(32)}")
                a(f"v_add_u32 {V(37)}, {slot*16384}, {V(37)}")
                for q in range(4):
                    off = (8 * (q >> 1) + 2 * (q & 1)) * 256
                    a(f"ds_read_b64_tr_b16 {V(WO + (tau*2+T)*8 + 2*q, 2)}, {V(37)} offset:{off}")
                if tau & 1:
                    a("s_waitcnt lgkmcnt(0)")
            a.label(Ls)
        a("s_waitcnt lgkmcnt(0)")
        a("s_barrier")
        if mat == 3:
            base = A_WQ0 if j < 4 else A_WQ1
            for fp in range(2):
                for half in range(2):
                    a(f"ds_write_b128 {V(base)}, {V(40+8*fp+4*half,4)} offset:{(j&3)*16384 + fp*2048 + half*1024}")
            a("s_waitcnt lgkmcnt(0)")
        if i + 8 < 32:
            dma_chunk(i + 8)

    R_, C_ = T1, T2
    a(f"v_and_b32 {V(L)}, 63, v0")
    a(f"v_lshrrev_b32 {V(R_)}, 2, {V(N)}")
    a(f"v_and_b32 {V(C_)}, 3, {V(N)}")
    a(f"v_and_b32 {V(T3)}, 1, {V(L)}")
    a(f"v_cmp_eq_u32 vcc, 1, {V(T3)}")
    a(f"v_mov_b32 {V(IDX)}, 0x44444444")
    a(f"v_mov_b32 {V(T3)}, 0xeeeeeeee")
    a(f"v_cndmask_b32 {V(IDX)}, {V(IDX)}, {V(T3)}, vcc")
    a(f"v_lshrrev_b32 {V(T3)}, 1, {V(G)}")
    a(f"v_lshlrev_b32 {V(T3)}, 3, {V(T3)}")
    a(f"v_add_u32 {V(T3)}, {V(T3)}, {V(R_)}")
    a(f"v_lshlrev_b32 {V(A_MF)}, 6, {V(T3)}")
    a(f"v_and_b32 {V(T3)}, 1, {V(G)}")
    a(f"v_lshlrev_b32 {V(T3)}, 5, {V(T3)}")
    a(f"v_add_u32 {V(A_MF)}, {V(A_MF)}, {V(T3)}")
    a(f"v_lshlrev_b32 {V(T3)}, 3, {V(C_)}")
    a(f"v_add_u32 {V(A_MF)}, {V(A_MF)}, {V(T3)}")
    a(f"v_add_u32 {V(A_MF)}, {HI}, {V(A_MF)}")
    a(f"s_lshl_b32 {S(S_T0)}, {S(S_W)}, 11")
    a(f"v_add_u32 {V(A_VX)}, {S(S_T0)}, {V(HI16)}")
    a(f"s_lshl_b32 {S(S_T0)}, {S(S_W)}, 5")
    a(f"v_add_u32 {V(T3)}, {S(S_T0)}, {V(N)}")
    a(f"v_lshlrev_b32 {V(A_QW)}, 4, {V(T3)}")
    a(f"v_lshl_add_u32 {V(A_QW)}, {V(G)}, 2, {V(A_QW)}")
    a(f"v_add_u32 {V(A_QW)}, {HI}, {V(A_QW)}")
    a(f"v_lshlrev_b32 {V(A_KW)}, 5, {V(T3)}")
    a(f"v_add_u32 {V(T3)}, {V(G)}, {V(R_)}")
    a(f"v_and_b32 {V(T3)}, 3, {V(T3)}")
    a(f"v_lshl_add_u32 {V(A_KW)}, {V(T3)}, 3, {V(A_KW)}")
    a(f"v_add_u32 {V(A_KW)}, {HI}, {V(A_KW)}")
    a(f"v_lshl_add_u32 {V(T3)}, {V(G)}, 2, {V(R_)}")
    a(f"v_lshlrev_b32 {V(A_TRQ)}, 4, {V(T3)}")
    a(f"v_lshlrev_b32 {V(A_TRK)}, 5, {V(T3)}")
    a(f"v_and_b32 {V(T3)}, 1, {V(C_)}")
    a(f"v_lshl_add_u32 {V(A_TRQ)}, {V(T3)}, 3, {V(A_TRQ)}")
    a(f"v_add_u32 {V(A_TRQ)}, {HI}, {V(A_TRQ)}")
    a(f"v_add_u32 {V(T3)}, {V(C_)}, {V(G)}")
    a(f"v_and_b32 {V(T3)}, 3, {V(T3)}")
    a(f"v_lshl_add_u32 {V(A_TRK)}, {V(T3)}, 3, {V(A_TRK)}")
    a(f"v_add_u32 {V(A_TRK)}, {HI}, {V(A_TRK)}")
    a(f"v_lshrrev_b32 {V(T3)}, 1, {V(G)}")
    a(f"v_lshlrev_b32 {V(A_OW)}, 9, {V(T3)}")
    a(f"v_and_b32 {V(T3)}, 1, {V(G)}")
    a(f"v_lshl_add_u32 {V(A_OW)}, {V(T3)}, 3, {V(A_OW)}")
    a(f"v_and_b32 {V(T3)}, 7, {V(N)}")
    a(f"v_lshl_add_u32 {V(A_OW)}, {V(T3)}, 5, {V(A_OW)}")
    a(f"v_lshrrev_b32 {V(T3)}, 3, {V(N)}")
    a(f"v_lshl_add_u32 {V(A_OW)}, {V(T3)}, 4, {V(A_OW)}")
    a(f"s_lshr_b32 {S(S_T0)}, {S(S_W)}, 1")
    a(f"s_lshl_b32 {S(S_T0)}, {S(S_T0)}, 10")
    a(f"s_and_b32 {S(S_T1)}, {S(S_W)}, 1")
    a(f"s_lshl_b32 {S(S_T1)}, {S(S_T1)}, 8")
    a(f"s_add_u32 {S(S_T0)}, {S(S_T0)}, {S(S_T1)}")
    a(f"s_add_u32 {S(S_T0)}, {S(S_T0)}, {HI + O_O}")
    a(f"v_add_u32 {V(A_OW)}, {S(S_T0)}, {V(A_OW)}")
    a(f"s_lshl_b32 {S(S_T0)}, {S(S_W)}, 3")
    a(f"v_add_u32 {V(T3)}, {S(S_T0)}, {V(R_)}")
    a(f"v_lshlrev_b32 {V(G_PST)}, 13, {V(T3)}")
    a(f"v_bfe_u32 {V(T3)}, {V(N)}, 1, 1")
    a(f"v_lshl_add_u32 {V(G_PST)}, {V(T3)}, 12, {V(G_PST)}")
    if "norot" not in OPT:
        a(f"v_lshl_add_u32 {V(T3)}, {V(R_)}, 1, {V(T3)}")
        a(f"s_add_u32 {S(S_T0)}, {S(S_T0)}, {S(S_H)}")
        a(f"v_add_u32 {V(T3)}, {S(S_T0)}, {V(T3)}")
        a(f"v_and_b32 {V(T3)}, 31, {V(T3)}")
    else:
        a(f"v_mov_b32 {V(T3)}, {S(S_H)}")
    a(f"v_lshl_add_u32 {V(G_PST)}, {V(T3)}, 7, {V(G_PST)}")
    a(f"v_and_b32 {V(T3)}, 1, {V(N)}")
    a(f"v_lshl_add_u32 {V(G_PST)}, {V(T3)}, 6, {V(G_PST)}")
    a(f"v_lshl_add_u32 {V(G_PST)}, {V(G)}, 4, {V(G_PST)}")
    a(f"v_mov_b32 {V(ZERO)}, 0")
    a(f"v_and_b32 {V(T3)}, 8, {V(L)}")
    a(f"v_cmp_ne_u32 {S(S_ODD,2)}, 0, {V(T3)}")
    a(f"s_mov_b32 {S(S_C)}, {f2u(C_SCALE):#x}")
    a(f"s_mov_b32 {S(S_C+1)}, {f2u(C_SCALE):#x}")
    for par in range(2):
        for i in range(2):
            a(f"s_mov_b32 {S(S_PST+2*par+i)}, {P_OFF + i*32768}")
        a(f"s_mov_b32 {S(S_PUB+par)}, {M_OFF + par*8192}")
    a(f"s_lshl_b32 {S(S_T0)}, {S(S_H)}, 13")
    a(f"s_and_b32 {S(S_T1)}, {S(S_W)}, 1")
    a(f"s_lshl_b32 {S(S_T1)}, {S(S_T1)}, 12")
    a(f"s_add_u32 {S(S_T0)}, {S(S_T0)}, {S(S_T1)}")
    a(f"s_add_u32 {S(S_PLD)}, {S(S_T0)}, {P_OFF - HI}")
    a(f"s_add_u32 {S(S_KD)}, {S(S_T0)}, {KF_OFF - HI}")
    a(f"s_add_u32 {S(S_VD)}, {S(S_T0)}, {VF_OFF - HI}")
    a(f"s_lshl_b32 {S(S_T2)}, {S(S_W)}, 11")
    for par in range(2):
        a(f"s_add_u32 {S(S_MLD+par)}, {S(S_T2)}, {M_OFF + par*8192 - HI}")
    a(f"s_lshl_b32 {S(S_T0)}, {S(S_H)}, 12")
    a(f"s_lshl_b32 {S(S_T2)}, {S(S_W)}, 10")
    a(f"s_add_u32 {S(S_T0)}, {S(S_T0)}, {S(S_T2)}")
    a(f"s_add_u32 {S(S_KVM)}, {S(S_T0)}, {KVM_OFF - HI}")
    a(f"s_lshl_b32 {S(S_T0)}, {S(S_H)}, 2")
    a(f"s_add_u32 {S(S_FLG)}, {S(S_T0)}, {FLAG_OFF}")
    a(f"s_add_u32 {S(S_KVMF)}, {S(S_T0)}, {KVMF_OFF}")
    a(f"s_mov_b32 {S(S_STEP)}, 0")
    a(f"v_lshrrev_b32 {V(T3)}, 1, {V(G)}")
    a(f"v_lshlrev_b32 {V(G_PUB)}, 5, {V(T3)}")
    a(f"v_lshl_add_u32 {V(G_PUB)}, {V(C_)}, 3, {V(G_PUB)}")
    a(f"v_and_b32 {V(T3)}, 1, {V(G)}")
    a(f"v_lshl_add_u32 {V(G_PUB)}, {V(T3)}, 2, {V(G_PUB)}")
    a(f"v_bfe_u32 {V(T3)}, {V(N)}, 2, 1")
    a(f"v_lshl_add_u32 {V(G_PUB)}, {V(T3)}, 6, {V(G_PUB)}")
    a(f"s_lshl_b32 {S(S_T0)}, {S(S_H)}, 8")
    a(f"s_and_b32 {S(S_T2)}, {S(S_W)}, 1")
    a(f"s_lshl_b32 {S(S_T2)}, {S(S_T2)}, 7")
    a(f"s_add_u32 {S(S_T0)}, {S(S_T0)}, {S(S_T2)}")
    a(f"v_add_u32 {V(G_PUB)}, {S(S_T0)}, {V(G_PUB)}")
    a(f"v_and_b32 {V(T3)}, 8, {V(L)}")
    a(f"v_cmp_ne_u32 vcc, 0, {V(T3)}")
    a(f"v_mov_b32 {V(T3)}, 0x7ff00000")
    a("s_nop 0")
    a(f"v_cndmask_b32 {V(G_PUB)}, {V(G_PUB)}, {V(T3)}, vcc")
    a(f"v_bfe_u32 {V(T3)}, {V(N)}, 2, 1")
    a(f"v_lshlrev_b32 {V(T3)}, 4, {V(T3)}")
    a(f"v_mov_b32 {V(SV1)}, 0x3f80")
    a(f"v_lshlrev_b32 {V(SV1)}, {V(T3)}, {V(SV1)}")
    a(f"v_lshrrev_b32 {V(T3)}, 3, {V(N)}")
    a(f"v_lshlrev_b32 {V(T3)}, 1, {V(T3)}")
    a(f"v_and_b32 {V(106)}, 3, {V(N)}")
    a(f"v_add_u32 {V(T3)}, {V(T3)}, {V(106)}")
    a(f"v_bfe_u32 {V(106)}, {V(N)}, 1, 1")
    a(f"v_lshlrev_b32 {V(106)}, 4, {V(106)}")
    a(f"v_add_u32 {V(T3)}, {V(T3)}, {V(106)}")
    for rho in range(4):
        a(f"v_cmp_eq_u32 {S(S_SEL+2*rho,2)}, {rho}, {V(T3)}")
    Lp = a.newlabel("L_nof")
    a(f"s_cmp_lt_u32 {S(S_W)}, 2")
    a(f"s_cbranch_scc1 {Lp}")
    poll_word(a, SRD_DBG, "32", f"s_cmp_ge_u32 {S(S_T0)}, 224", T3, "c0")
    poll_word(a, SRD_WS, S(S_FLG), f"s_cmp_eq_u32 {S(S_T0)}, 1", T3, "kv0")
    for x in kv_dma_list(KX_O, R_O[1]): a(x)
    a(f"s_add_u32 {S(S_FLG)}, {S(S_FLG)}, 128")
    a(f"buffer_load_dword {V(V_FL)}, off, {S(SRD_WS,4)}, {S(S_FLG)} sc1")
    a.label(Lp)
    poll_word(a, SRD_DBG, "36", f"s_cmp_ge_u32 {S(S_T0)}, 32", T3, "team")
    a("s_barrier")
    emit_idle_prep(a)
    a("s_waitcnt vmcnt(0) lgkmcnt(0)")


PARAM = dict(pre1=0, pre2=0)

def dma_list(lds_off, sreg):
    out = [f"s_and_b32 {S(S_T1)}, {S(S_W)}, 1",
           f"s_lshl_b32 {S(S_T1)}, {S(S_T1)}, 12",
           f"s_add_u32 m0, {S(S_T1)}, {HI + lds_off}",
           "s_nop 0"]
    for i in range(4):
        out.append(f"buffer_load_dwordx4 {V(HI16)}, {S(SRD_WS,4)}, {S(sreg)} offen offset:{i*1024} {PARAM.get('dmaf','')} lds")
    out.append(f"s_add_u32 {S(sreg)}, {S(sreg)}, 262144")
    return out

def kv_dma_list(kx_off, vx_off):
    return dma_list(kx_off, S_KD) + dma_list(vx_off, S_VD)


def idle_prep_list():
    out = []
    for phi in range(7):
        for half in range(2):
            out.append(wq_read(phi, half))
    for r in range(ACCQ, ACCV + 8, 2):
        out.append(f"v_mov_b64 {V(r,2)}, 0")
    return out

def emit_idle_prep(a):
    for x in idle_prep_list(): a(x)


TS = 64
TACC = 84
def stamp(a, k, timing):
    if timing: a(f"{'s_memrealtime' if 'trace' in OPT else 's_memtime'} {S(TS+2*k,2)}")
def stamp_acc(a, n, timing):
    if not timing: return
    for k in range(n - 1):
        a(f"s_sub_u32 {S(S_T0)}, {S(TS+2*(k+1))}, {S(TS+2*k)}")
        a(f"s_add_u32 {S(TACC+k)}, {S(TACC+k)}, {S(S_T0)}")


def smf(d, aa, b):
    return f"v_smfmac_f32_16x16x64_bf16 {V(d,4)}, {V(aa,4)}, {b}, {V(IDX)}"

def delay(a, cyc):
    n = cyc // 64
    for _ in range(n): a("s_nop 15")
    r = (cyc % 64) // 4
    if r: a(f"s_nop {r-1}")


def step(a, par, role, dbg=False, timing=False):
    P = role == "P"
    MR, VR = R_O[par], R_O[par ^ 1]
    LEND = a.newlabel("L_stepend")
    def tp(k):
        if f"trunc{k}" in OPT:
            if par == 1:
                a(f"s_cmp_eq_u32 {S(S_STEP)}, 63")
                a(f"s_cbranch_scc1 L_rec_fin")
            a(f"s_branch {LEND}")
    for T in range(8):
        for hf in range(2):
            a(f"ds_read_b64_tr_b16 {V(MF+4*T+2*hf,2)}, {V(A_MF)} offset:{MR + T*1024 + hf*256}")
    if P and "nokvm" not in OPT:
        Ls = a.newlabel("L_kvmf")
        a(f"s_cmp_eq_u32 {S(S_KVMF+1)}, 0")
        a(f"s_cbranch_scc1 {Ls}")
        a(f"buffer_store_dword {V(IDX)}, off, {S(SRD_WS,4)}, {S(S_KVMF)} sc1")
        a(f"s_add_u32 {S(S_KVMF)}, {S(S_KVMF)}, 128")
        a.label(Ls)
        a(f"s_mov_b32 {S(S_KVMF+1)}, {S(S_KVMF+2)}")
    tp(0)
    order = []
    for T in range(8):
        if T < 7:
            order += [("q", 0, T), ("k", 0, T), ("q", 1, T), ("k", 1, T)]
        else:
            order += [("q", 0, T), ("q", 1, T), ("k", 0, T), ("k", 1, T)]
    mf = []
    for kind, tile, T in order:
        if kind == "q":
            mf.append(smf(ACCQ + 4 * tile, MF + 4 * T, V(RING + 8 * ((2 * T + tile) % 7), 8)))
        else:
            mf.append(smf(ACCK + 4 * tile, MF + 4 * T, A((tile * 8 + T) * 8, 8)))
    qpos = {2 * T + tile: mu for mu, (kind, tile, T) in enumerate(order) if kind == "q"}
    fillers = {}
    for phi in range(9):
        mu = qpos[phi]
        fillers[mu] = (wq_read(phi + 7, 0), ("wq", phi + 7))
        fillers[mu + 1] = (wq_read(phi + 7, 1), ("wq", phi + 7))
    kx = [(u, tt) for u in range(4) for tt in range(2)]
    for n_, (u, tt) in enumerate(kx):
        mu = qpos[9 + (n_ >> 1)] + (n_ & 1)
        fillers[mu] = (f"ds_read_b128 {V(KXF + 4*(2*u+tt), 4)}, {V(HI16)} offset:{KX_O + (tt*4+u)*1024}", ("kx", n_))
    tags = [("mf", T) for T in range(8) for _ in range(2)]
    waited = -1
    BM = PARAM.get("bm", 8)
    vx = []
    fx = (not P) and "nofx" not in OPT
    if fx:
        Lok = a.newlabel("L_kvok")
        a(f"v_readfirstlane_b32 {S(S_T0)}, {V(V_FL)}")
        a("s_nop 3")
        a(f"s_cmp_eq_u32 {S(S_T0)}, 1")
        a(f"s_cbranch_scc1 {Lok}")
        if not FAST:
            poll_word(a, SRD_WS, S(S_FLG), f"s_cmp_eq_u32 {S(S_T0)}, 1", V_FL, "kv")
        a.label(Lok)
        vx = dma_list(MR, S_VD)
    for mu, (kind, tile, T) in enumerate(order):
        if mu == BM:
            n_after = min(len(tags) - 16, 15)
            a(f"s_waitcnt lgkmcnt({n_after})")
            waited = max(waited, len(tags) - 1 - n_after)
            a("s_barrier")
        need = [("mf", T)]
        if kind == "q" and 2 * T + tile >= 7: need.append(("wq", 2 * T + tile))
        idxs = [k for k, tg in enumerate(tags) if tg in need]
        last = max(idxs)
        if last > waited:
            n_after = min(len(tags) - 1 - last, 15)
            a(f"s_waitcnt lgkmcnt({n_after})")
            waited = len(tags) - 1 - n_after
        a(mf[mu])
        if mu in fillers:
            a(fillers[mu][0]); tags.append(fillers[mu][1])
        if mu >= BM and vx and (mu - BM) % PARAM.get("vsp", 4) == 0:
            while vx:
                x = vx.pop(0); a(x)
                if x.startswith("buffer"): break
    for x in vx: a(x)
    tp(1)
    vm = []
    for T in range(8):
        for tile in range(2):
            vm.append(smf(ACCV + 4 * tile, MF + 4 * T, A(128 + (tile * 8 + T) * 8, 8)))
    def vmf(n=1):
        for _ in range(n):
            if vm: a(vm.pop(0))
    for tile in range(2):
        a(f"v_add_f32 {V(ACCQ+4*tile)}, {V(ACCQ+4*tile)}, {V(ACCQ+4*tile+1)}")
        a(f"v_add_f32 {V(ACCQ+4*tile+2)}, {V(ACCQ+4*tile+2)}, {V(ACCQ+4*tile+3)}")
    for tile in range(2):
        a(f"v_cvt_pk_bf16_f32 {V(ACCQ+4*tile+1)}, {V(ACCQ+4*tile)}, {V(ACCQ+4*tile+2)}")
    a(f"ds_write_b32 {V(A_QW)}, {V(ACCQ+1)} offset:{QT_O}")
    a(f"ds_write_b32 {V(A_QW)}, {V(ACCQ+5)} offset:{QT_O+256}")
    for tile in range(2):
        a(f"v_add_f32 {V(ACCK+4*tile)}, {V(ACCK+4*tile)}, {V(ACCK+4*tile+1)}")
        a(f"v_add_f32 {V(ACCK+4*tile+2)}, {V(ACCK+4*tile+2)}, {V(ACCK+4*tile+3)}")
    for tile in range(2):
        a(f"v_cvt_pk_bf16_f32 {V(KV4+tile)}, {V(ACCK+4*tile)}, {V(ACCK+4*tile+2)}")
    a(f"ds_write_b32 {V(A_KW)}, {V(KV4)} offset:{KT_O}")
    a(f"ds_write_b32 {V(A_KW)}, {V(KV4+1)} offset:{KT_O+512}")
    vmf(4)
    stamp(a, 1, timing)
    a("s_waitcnt lgkmcnt(0)")
    tp(2)
    a("s_barrier")
    KM = (SENT, PT, KXF, KXF + 8)
    lds = []
    for u in range(4):
        for f in range(2):
            a(f"ds_read_b64_tr_b16 {V(QF[u]+2*f,2)}, {V(A_TRQ)} offset:{QT_O + u*512 + f*256}")
        lds += [("q", u)] * 2
        if u < 2:
            for f in range(2):
                a(f"ds_read_b64_tr_b16 {V(KM[u]+2*f,2)}, {V(A_TRK)} offset:{KT_O + u*1024 + f*512}")
            lds += [("km", u)] * 2
    ex = []
    if fx:
        ex = dma_list(KX_O, S_KD) + [f"s_min_u32 {S(S_T0)}, {S(S_STEP)}, 61", f"s_add_u32 {S(S_T0)}, {S(S_T0)}, 2",
                       f"s_lshl_b32 {S(S_T0)}, {S(S_T0)}, 7", f"s_add_u32 {S(S_FLG)}, {S(S_T0)}, {S(S_FLG0)}",
                       f"buffer_load_dword {V(V_FL)}, off, {S(SRD_WS,4)}, {S(S_FLG)} sc1"]
        for _ in range(4):
            vmf(1)
            while ex:
                x = ex.pop(0); a(x)
                if x.startswith("buffer"): break
    else:
        vmf(4)
    def exf():
        while ex:
            x = ex.pop(0); a(x)
            if x.startswith("buffer"): break
    ST0, ST1, SM = ACCQ, ACCQ + 4, ACCK
    seq = [("t0", 0), ("t1", 0), ("m", 0), ("t0", 1), ("t1", 1), ("m", 1), ("t0", 2), ("t1", 2), ("t0", 3), ("t1", 3), ("m", 2), ("m", 3)]
    waited = -1
    for n_, (kind, u) in enumerate(seq):
        need = [("q", u)] + ([("km", u)] if kind == "m" else [])
        last = max(k for k, tg in enumerate(lds) if tg in need)
        if last > waited:
            n_after = len(lds) - 1 - last
            a(f"s_waitcnt lgkmcnt({n_after})")
            waited = last
        if kind == "t0":
            a(f"v_mfma_f32_16x16x32_bf16 {V(ST0,4)}, {V(KXF+8*u,4)}, {V(QF[u],4)}, {'0' if u == 0 else V(ST0,4)}")
        elif kind == "t1":
            a(f"v_mfma_f32_16x16x32_bf16 {V(ST1,4)}, {V(KXF+8*u+4,4)}, {V(QF[u],4)}, {'0' if u == 0 else V(ST1,4)}")
            if u < 2:
                for f in range(2):
                    a(f"ds_read_b64_tr_b16 {V(KM[u+2]+2*f,2)}, {V(A_TRK)} offset:{KT_O + (u+2)*1024 + f*512}")
                lds += [("km", u + 2)] * 2
        else:
            a(f"v_mfma_f32_16x16x32_bf16 {V(SM,4)}, {V(KM[u],4)}, {V(QF[u],4)}, {'0' if u == 0 else V(SM,4)}")
        if n_ % 2 == 1: exf()
    VXF = (76, 84)
    for f in range(2):
        a(f"ds_read_b128 {V(VXF[f],4)}, {V(A_VX)} offset:{VR + f*1024}")
    while ex: exf()
    tp(3)
    SN = 92
    if P and "nohop" not in OPT:
        a(f"v_mov_b32 {V(SN)}, -1")
        a(f"buffer_store_dword {V(SN)}, {V(G_PUB)}, {S(SRD_WS,4)}, {S(S_PUB+par)} offen")
    vmf(2)
    MX, MX2, LS, LS2 = 68, 69, 70, 71
    SV = [ST0, ST0+1, ST0+2, ST0+3, ST1, ST1+1, ST1+2, ST1+3, SM, SM+1]
    a(f"v_max3_f32 {V(MX)}, {V(SV[0])}, {V(SV[1])}, {V(SV[2])}")
    a(f"v_max3_f32 {V(MX2)}, {V(SV[3])}, {V(SV[4])}, {V(SV[5])}")
    a(f"v_max3_f32 {V(MX)}, {V(MX)}, {V(SV[6])}, {V(SV[7])}")
    a(f"v_max3_f32 {V(MX2)}, {V(MX2)}, {V(SV[8])}, {V(SV[9])}")
    a(f"v_max_f32 {V(LS)}, {V(MX)}, {V(MX2)}")
    a(f"v_max_f32 {V(MX)}, {V(MX)}, {V(MX2)}")
    vmf(1)
    a("s_nop 0")
    a(f"v_permlane32_swap_b32 {V(MX)}, {V(LS)}")
    a(f"v_max_f32 {V(MX2)}, {V(MX)}, {V(LS)}")
    a(f"v_max_f32 {V(MX)}, {V(MX)}, {V(LS)}")
    vmf(1)
    a("s_nop 0")
    a(f"v_permlane16_swap_b32 {V(MX)}, {V(MX2)}")
    a(f"v_max_f32 {V(MX)}, {V(MX)}, {V(MX2)}")
    a(f"v_mul_f32 {V(MX)}, {S(S_C)}, {V(MX)}")
    for k in range(10):
        a(f"v_fma_f32 {V(SV[k])}, {V(SV[k])}, {S(S_C)}, -{V(MX)}")
    for k in range(10):
        a(f"v_exp_f32 {V(SV[k])}, {V(SV[k])}")
        if k in (1, 3, 5, 7): vmf(1)
    vmf(16)
    tp(4)
    PM0, PM1 = 114, 64
    PTt = 72
    for k in range(4):
        a(f"v_cvt_pk_bf16_f32 {V(PTt+k)}, {V(SV[2*k])}, {V(SV[2*k+1])}")
    a(f"v_cvt_pk_bf16_f32 {V(PM0)}, {V(SV[8])}, {V(SV[9])}")
    a(f"v_cvt_pk_bf16_f32 {V(PM1+1)}, {V(SV[8])}, {V(SV[9])}")
    a("s_waitcnt lgkmcnt(0)")
    stamp(a, 2, timing)
    if timing: a("s_waitcnt lgkmcnt(0)")
    a(f"v_mfma_f32_16x16x32_bf16 {V(OACC,4)}, {V(VXF[0],4)}, {V(PTt,4)}, 0")
    a(f"v_mov_b32 {V(PM0+1)}, 0")
    a(f"v_mov_b32 {V(PM1)}, 0")
    a(f"v_mfma_f32_16x16x32_bf16 {V(OACC+4,4)}, {V(VXF[1],4)}, {V(PTt,4)}, 0")
    for tile in range(2):
        a(f"v_add_f32 {V(ACCV+4*tile)}, {V(ACCV+4*tile)}, {V(ACCV+4*tile+1)}")
        a(f"v_add_f32 {V(ACCV+4*tile+2)}, {V(ACCV+4*tile+2)}, {V(ACCV+4*tile+3)}")
    for tile in range(2):
        a(f"v_cvt_pk_bf16_f32 {V(KV4+2+tile)}, {V(ACCV+4*tile)}, {V(ACCV+4*tile+2)}")
    a(f"v_add_f32 {V(SV[0])}, {V(SV[0])}, {V(SV[1])}")
    a(f"v_add_f32 {V(SV[2])}, {V(SV[2])}, {V(SV[3])}")
    a(f"v_mfma_f32_16x16x16_bf16 {V(OACC,4)}, {V(KV4+2,2)}, {V(PM0,2)}, {V(OACC,4)}")
    a(f"v_add_f32 {V(SV[4])}, {V(SV[4])}, {V(SV[5])}")
    a(f"v_add_f32 {V(SV[6])}, {V(SV[6])}, {V(SV[7])}")
    a(f"v_mfma_f32_16x16x16_bf16 {V(OACC+4,4)}, {V(KV4+2,2)}, {V(PM1,2)}, {V(OACC+4,4)}")
    a(f"v_add_f32 {V(SV[8])}, {V(SV[8])}, {V(SV[9])}")
    a(f"v_add_f32 {V(SV[0])}, {V(SV[0])}, {V(SV[2])}")
    a(f"v_mfma_f32_32x32x1_2b_f32 {V(MF,32)}, {V(ZERO)}, {V(ZERO)}, 0")
    if "nokvm" not in OPT:
        a(f"buffer_store_dwordx4 {V(KV4,4)}, {V(HI16)}, {S(SRD_WS,4)}, {S(S_KVM)} offen sc1")
    if par == 1:
        a(f"s_cmp_eq_u32 {S(S_STEP)}, 63")
        a(f"s_cbranch_scc1 L_rec_fin")
    tp(5)
    a(f"v_add_f32 {V(SV[4])}, {V(SV[4])}, {V(SV[6])}")
    a(f"v_add_f32 {V(SV[0])}, {V(SV[0])}, {V(SV[8])}")
    a(f"v_add_f32 {V(LS)}, {V(SV[0])}, {V(SV[4])}")
    a(f"v_add_f32 {V(LS2)}, {V(SV[0])}, {V(SV[4])}")
    a(f"s_add_u32 {S(S_KVM)}, {S(S_KVM)}, 131072")
    a("s_nop 0")
    a(f"v_permlane32_swap_b32 {V(LS)}, {V(LS2)}")
    a(f"v_add_f32 {V(MX)}, {V(LS)}, {V(LS2)}")
    a(f"v_add_f32 {V(LS)}, {V(LS)}, {V(LS2)}")
    a("s_nop 1")
    a(f"v_permlane16_swap_b32 {V(LS)}, {V(MX)}")
    a(f"v_add_f32 {V(LS)}, {V(LS)}, {V(MX)}")
    a(f"v_rcp_f32 {V(LS)}, {V(LS)}")
    for r in range(4):
        a(f"v_cndmask_b32 {V(OACC+r)}, {V(OACC+r)}, {V(OACC+4+r)}, {S(S_ODD,2)}")
    for r in range(4):
        a(f"v_mul_f32 {V(OACC+r)}, {V(OACC+r)}, {V(LS)}")
    a(f"v_cvt_pk_bf16_f32 {V(OACC)}, {V(OACC)}, {V(OACC+1)}")
    a(f"v_cvt_pk_bf16_f32 {V(OACC+1)}, {V(OACC+2)}, {V(OACC+3)}")
    a(f"ds_write_b64 {V(A_OW)}, {V(OACC,2)}")
    stamp(a, 3, timing)
    if P and "nohop" not in OPT:
        a(f"s_waitcnt vmcnt({0 if 'nokvm' in OPT else 1}) lgkmcnt(0)")
    else:
        a("s_waitcnt lgkmcnt(0)")
    tp(6)
    a("s_barrier")
    for T in range(2):
        a(f"ds_read_b128 {V(OF+4*T,4)}, {V(HI16)} offset:{O_O + T*1024}")
    a("s_waitcnt lgkmcnt(0)")
    tp(7)
    PK = ACCQ
    mf = []
    for tau in range(8):
        for T in range(2):
            mf.append(smf(MF + 4 * tau, OF + 4 * T, V(WO + (tau * 2 + T) * 8, 8)))
    def post(tau):
        d = MF + 4 * tau
        r = [f"v_add_f32 {V(d)}, {V(d)}, {V(d+1)}",
             f"v_add_f32 {V(d+2)}, {V(d+2)}, {V(d+3)}",
             f"v_cvt_pk_bf16_f32 {V(PK+tau)}, {V(d)}, {V(d+2)}"]
        if tau % 4 == 0:
            r.append(f"v_or_b32 {V(PK+tau)}, 1, {V(PK+tau)}" if par else f"v_and_b32 {V(PK+tau)}, -2, {V(PK+tau)}")
        return r
    fl = []
    st = [f"buffer_store_dwordx4 {V(PK,4)}, {V(G_PST)}, {S(SRD_WS,4)}, {S(S_PST)} offen",
          f"buffer_store_dwordx4 {V(PK+4,4)}, {V(G_PST)}, {S(SRD_WS,4)}, {S(S_PST+1)} offen"]
    popped = 0
    for mu in range(16):
        a(mf[mu])
        if mu >= 3 and (mu - 3) % 2 == 0:
            fl += post((mu - 3) // 2)
        k = 2 if (mu >= 4 and mu % 2 == 0) else 1
        for _ in range(k):
            if fl:
                a(fl.pop(0)); popped += 1
                if popped == 13: a(st[0])
    while fl:
        a(fl.pop(0)); popped += 1
        if popped == 13: a(st[0])
    a("s_nop 3")
    for x in post(7): a(x)
    if "wo_nost" in OPT: st[1] = "s_nop 0"
    a(st[1])
    stamp(a, 4, timing)
    a.label(LEND)
    if "nohop" in OPT:
        emit_idle_prep(a)
        stamp(a, 5, timing); stamp(a, 6, timing)
        a("s_waitcnt lgkmcnt(0)" if "novm" in OPT else "s_waitcnt vmcnt(0) lgkmcnt(0)")
    else:
        ip = idle_prep_list()
        if P:
            hop1(a, par, ip[:14], timing)
            if timing: a(f"s_add_u32 {S(TACC+6)}, {S(TACC+6)}, {S(S_CNT)}")
            stamp(a, 5, timing)
            if dbg:
                a(f"s_lshl_b32 {S(S_T0)}, {S(S_STEP)}, 13")
                a(f"s_add_u32 {S(S_T0)}, {S(S_T0)}, {DBG_OFF}")
                a(f"buffer_store_dword {V(ACCQ)}, {V(G_PUB)}, {S(SRD_WS,4)}, {S(S_T0)} offen")
            a("s_barrier")
        else:
            for x in ip[:14]: a(x)
            stamp(a, 5, timing)
            a("s_barrier")
        hop2(a, par, VR, ip[14:])
        if timing: a(f"s_add_u32 {S(TACC+7)}, {S(TACC+7)}, {S(S_CNT)}")
        stamp(a, 6, timing)
        a("s_waitcnt lgkmcnt(0)")
    stamp_acc(a, 7, timing)
    if timing and "trace" in OPT:
        for k in range(7): a(f"v_mov_b32 {V(MF+16+k)}, {S(TS+2*k)}")
        a(f"v_mov_b32 {V(MF+23)}, {S(TACC+6)}")
        a(f"s_lshl_b32 {S(S_T0)}, {S(S_STEP)}, 5")
        a(f"s_add_u32 {S(S_T0)}, {S(S_T0)}, {S(S_H)}")
        a(f"s_lshl_b32 {S(S_T0)}, {S(S_T0)}, 2")
        a(f"s_add_u32 {S(S_T0)}, {S(S_T0)}, {S(S_W)}")
        a(f"s_lshl_b32 {S(S_T0)}, {S(S_T0)}, 5")
        a(f"s_add_u32 {S(S_T0)}, {S(S_T0)}, {DBG_OFF + 0x300000}")
        a(f"buffer_store_dwordx4 {V(MF+16,4)}, off, {S(SRD_WS,4)}, {S(S_T0)}")
        a(f"buffer_store_dwordx4 {V(MF+20,4)}, off, {S(SRD_WS,4)}, {S(S_T0)} offset:16")
        a("s_nop 1")
    if timing:
        a(f"s_mov_b32 {S(TS)}, {S(TS+12)}")
    a(f"s_add_u32 {S(S_STEP)}, {S(S_STEP)}, 1")
    a("s_barrier")


def hop1(a, par, pre, timing, shadow=()):
    XS = (MF, MF + 16)
    RA = ACCQ
    SEL = ACCQ + 4
    t0 = ACCK
    two = "poll1" not in OPT
    for x in pre: a(x)
    for rr in range(4):
        a(f"v_cndmask_b32 {V(SEL+rr)}, {V(ZERO)}, {V(SV1)}, {S(S_SEL+2*rr,2)}")
    delay(a, PARAM["pre1"])
    L = a.newlabel("L_h1"); D = L + "_d"; RT = L + "_r"
    def issue(X):
        for i in range(4):
            a(f"buffer_load_dwordx4 {V(X+4*i,4)}, {V(HI16)}, {S(SRD_WS,4)}, {S(S_PLD)} offen offset:{i*1024} sc1")
    def consume(X, n):
        a(f"s_waitcnt vmcnt({n})")
        a("s_mov_b64 exec, -1")
        if par == 0:
            a(f"v_or3_b32 {V(t0)}, {V(X)}, {V(X+4)}, {V(X+8)}")
        else:
            a(f"v_bitop3_b32 {V(t0)}, {V(X)}, {V(X+4)}, {V(X+8)} bitop3:0x80")
        a(f"v_mfma_f32_16x16x32_bf16 {V(RA,4)}, {V(SEL,4)}, {V(X,4)}, 0")
        a(f"v_or_b32 {V(t0)}, {V(t0)}, {V(X+12)}" if par == 0 else f"v_and_b32 {V(t0)}, {V(t0)}, {V(X+12)}")
        a(f"v_mfma_f32_16x16x32_bf16 {V(RA,4)}, {V(SEL,4)}, {V(X+4,4)}, {V(RA,4)}")
        a(f"v_and_b32 {V(t0)}, 1, {V(t0)}")
        a(f"v_mfma_f32_16x16x32_bf16 {V(RA,4)}, {V(SEL,4)}, {V(X+8,4)}, {V(RA,4)}")
        a(f"v_cmp_ne_u32 vcc, {par}, {V(t0)}")
        a(f"v_mfma_f32_16x16x32_bf16 {V(RA,4)}, {V(SEL,4)}, {V(X+12,4)}, {V(RA,4)}")
        a(f"s_cbranch_vccz {D}")
    a(f"s_mov_b32 {S(S_CNT)}, 0")
    issue(XS[0])
    if two:
        delay(a, PARAM.get("d1", 64))
        issue(XS[1])
    a.label(RT)
    consume(XS[0], 4 if two else 0)
    if not FAST:
        a(f"s_cmp_eq_u32 {S(S_FAIL)}, 1")
        a(f"s_cbranch_scc1 {D}")
        a("s_mov_b64 exec, vcc")
        issue(XS[0])
        if two:
            consume(XS[1], 4)
            a("s_mov_b64 exec, vcc")
            issue(XS[1])
        emit_spin_check(a, RT, D)
        a("s_waitcnt vmcnt(0)")
        a("s_mov_b64 exec, -1")
    a.label(D)
    a("s_nop 6")
    for r in range(2):
        a(f"v_add_f32_dpp {V(RA+r)}, {V(RA+r)}, {V(RA+r)} row_ror:8 row_mask:0xf bank_mask:0xf")
    a(f"v_cvt_pk_bf16_f32 {V(RA)}, {V(RA)}, {V(RA+1)}")
    a(f"buffer_store_dword {V(RA)}, {V(G_PUB)}, {S(SRD_WS,4)}, {S(S_PUB+par)} offen")


def hop2(a, par, region, shadow=()):
    XS = (MF, MF + 8)
    t0, t1 = MF + 24, MF + 25
    two = "poll1" not in OPT and "poll2s" not in OPT
    delay(a, PARAM["pre2"])
    L = a.newlabel("L_h2"); RT = L + "_r"; DA = L + "_da"; DB = L + "_db"; J = L + "_j"
    def issue(X):
        for i in range(2):
            a(f"buffer_load_dwordx4 {V(X+4*i,4)}, {V(HI16)}, {S(SRD_WS,4)}, {S(S_MLD+par)} offen offset:{i*1024} sc1")
    def check_(X, n, D):
        a(f"s_waitcnt vmcnt({n})")
        a("s_mov_b64 exec, -1")
        a(f"v_max3_u32 {V(t0)}, {V(X)}, {V(X+1)}, {V(X+2)}")
        a(f"v_max3_u32 {V(t1)}, {V(X+3)}, {V(X+4)}, {V(X+5)}")
        a(f"v_max3_u32 {V(t0)}, {V(t0)}, {V(X+6)}, {V(X+7)}")
        a(f"v_max_u32 {V(t0)}, {V(t0)}, {V(t1)}")
        a(f"v_cmp_eq_u32 vcc, -1, {V(t0)}")
        a(f"s_cbranch_vccz {D}")
    def write(X):
        for i in range(2):
            a(f"ds_write_b128 {V(A_VX)}, {V(X+4*i,4)} offset:{region + i*1024}")
    a(f"s_mov_b32 {S(S_CNT)}, 0")
    issue(XS[0])
    for x in shadow: a(x)
    if two:
        delay(a, PARAM.get("d2", 48))
        issue(XS[1])
    a.label(RT)
    check_(XS[0], 2 if two else 0, DA)
    if not FAST:
        a(f"s_cmp_eq_u32 {S(S_FAIL)}, 1")
        a(f"s_cbranch_scc1 {DA}")
        a("s_mov_b64 exec, vcc")
        issue(XS[0])
        if two:
            check_(XS[1], 2, DB)
            a("s_mov_b64 exec, vcc")
            issue(XS[1])
        emit_spin_check(a, RT, DA)
        a("s_waitcnt vmcnt(0)")
        a("s_mov_b64 exec, -1")
        a(f"s_branch {DA}")
        if two:
            a.label(DB)
            write(XS[1])
            a(f"s_branch {J}")
    a.label(DA)
    write(XS[0])
    a.label(J)
    a("s_waitcnt vmcnt(0)")


def loop(a, dbg=False, timing=False):
    if timing:
        for k in range(8): a(f"s_mov_b32 {S(TACC+k)}, 0")
        a(f"{'s_memrealtime' if 'trace' in OPT else 's_memtime'} {S(TS,2)}")
        a("s_waitcnt lgkmcnt(0)")
    a(f"s_cmp_eq_u32 {S(S_W)}, 0")
    a(f"s_cselect_b32 {S(S_KVMF+2)}, 1, 0")
    a(f"s_mov_b32 {S(S_KVMF+1)}, 0")
    a(f"s_sub_u32 {S(S_FLG0)}, {S(S_FLG)}, 128")
    a("s_barrier")
    a(f"s_cmp_ge_u32 {S(S_W)}, 2")
    a("s_cbranch_scc1 L_recF_loop")
    for role in "PF":
        a(".p2align 3")
        a.label(f"L_rec{role}_loop")
        for par in range(2):
            step(a, par, role, dbg, timing)
        a(f"s_branch L_rec{role}_loop")
    a.label("L_rec_fin")
    a("s_waitcnt vmcnt(0) lgkmcnt(0)")
    a("s_barrier")
    Ls = a.newlabel("L_fin")
    a(f"s_cmp_eq_u32 {S(S_W)}, 0")
    a(f"s_cbranch_scc0 {Ls}")
    a(f"v_mov_b32 {V(16)}, 1")
    a(f"buffer_store_dword {V(16)}, off, {S(SRD_WS,4)}, {S(S_KVMF)} sc1")
    a("s_waitcnt vmcnt(0)")
    a.label(Ls)
```

```python
from asm import *
from layout import *
import struct

def f2u(x): return struct.unpack("<I", struct.pack("<f", x))[0]

S_IDX, S_W, S_XCC = 4, 5, 6
SRD_WS, SRD_DBG = 8, 52
S_WK = 16
S_H1, S_SUB = 17, 18
S_FAIL, S_CNT = 19, 20
S_J, S_SEG = 21, 22
S_T0, S_T1, S_T2, S_T3 = 24, 25, 26, 27
SRD_A, SRD_B, SRD_C = 28, 32, 36
S_TEAM = 40
S_NSEG = 41
SPIN_MAX = 1 << 19
FAST = False
OPT = set()
W1_STRIDE = 3
W1_AHEAD = 9
STF = 'sc1'
PSTF = 'sc1'
OSTF = 'sc1'

def srd(a, dst, karg_off, nbytes, tmp=56):
    a(f"s_load_dwordx2 {S(tmp,2)}, s[0:1], {karg_off}")
    a("s_waitcnt lgkmcnt(0)")
    a(f"s_mov_b32 {S(dst)}, {S(tmp)}")
    a(f"s_and_b32 {S(dst+1)}, {S(tmp+1)}, 0xffff")
    a(f"s_mov_b32 {S(dst+2)}, {nbytes}")
    a(f"s_mov_b32 {S(dst+3)}, 0x20000")

def poll_word(a, srdn, soff_text, cond_text, vtmp, name):
    L = a.newlabel("L_wpw_" + name)
    D = L + "_d"
    a(f"s_mov_b32 {S(S_CNT)}, 0")
    a.label(L)
    a(f"s_cmp_eq_u32 {S(S_FAIL)}, 1")
    a(f"s_cbranch_scc1 {D}")
    a(f"buffer_load_dword {V(vtmp)}, off, {S(srdn,4)}, {soff_text} sc1")
    a("s_waitcnt vmcnt(0)")
    a(f"v_readfirstlane_b32 {S(S_T0)}, {V(vtmp)}")
    a("s_nop 3")
    a(cond_text)
    a(f"s_cbranch_scc1 {D}")
    a("s_sleep 4")
    a(f"s_add_u32 {S(S_CNT)}, {S(S_CNT)}, 1")
    a(f"s_cmp_lt_u32 {S(S_CNT)}, {SPIN_MAX}")
    a(f"s_cbranch_scc1 {L}")
    a(f"s_mov_b32 {S(S_FAIL)}, 1")
    a.label(D)

def bf16_round(a, dst, src):
    a(f"v_cvt_pk_bf16_f32 {V(dst)}, {V(src)}, {V(src)}")
    a(f"v_lshlrev_b32 {V(dst)}, 16, {V(dst)}")

def wave_sum(a, regs, tmp):
    for sh in (1, 2, 4, 8):
        a("s_nop 1")
        for r in regs:
            a(f"v_add_f32_dpp {V(r)}, {V(r)}, {V(r)} row_ror:{sh} row_mask:0xf bank_mask:0xf")
    for sw in ("v_permlane16_swap_b32", "v_permlane32_swap_b32"):
        for k, r in enumerate(regs):
            a(f"v_mov_b32 {V(tmp+k)}, {V(r)}")
        a("s_nop 1")
        for k, r in enumerate(regs):
            a(f"{sw} {V(r)}, {V(tmp+k)}")
        for k, r in enumerate(regs):
            a(f"v_add_f32 {V(r)}, {V(r)}, {V(tmp+k)}")

def w0(a):
    a("; ===== W0: init + LayerNorm =====")
    a(f"s_mov_b32 {S(S_FAIL)}, 0")
    a(f"s_sub_u32 {S(S_TEAM)}, {S(S_XCC)}, 1")
    a(f"s_lshl_b32 {S(S_WK)}, {S(S_TEAM)}, 5")
    a(f"s_add_u32 {S(S_WK)}, {S(S_WK)}, {S(S_IDX)}")
    a(f"s_mul_i32 {S(S_H1)}, {S(S_WK)}, 21846")
    a(f"s_lshr_b32 {S(S_H1)}, {S(S_H1)}, 16")
    a(f"s_mul_i32 {S(S_T0)}, {S(S_H1)}, 3")
    a(f"s_sub_u32 {S(S_SUB)}, {S(S_WK)}, {S(S_T0)}")
    L = 100
    a(f"v_and_b32 {V(L)}, 63, v0")
    Ls = a.newlabel("L_fz")
    a(f"s_cmp_eq_u32 {S(S_W)}, 0")
    a(f"s_cbranch_scc0 {Ls}")
    for i in range(4): a(f"v_mov_b32 {V(20+i)}, 0")
    a(f"v_lshlrev_b32 {V(24)}, 4, {V(L)}")
    a(f"v_mov_b32 {V(25)}, 0x7ff00000")
    a(f"v_cmp_gt_u32 vcc, 8, {V(L)}")
    a("s_nop 1")
    a(f"v_cndmask_b32 {V(24)}, {V(25)}, {V(24)}, vcc")
    a(f"s_lshl_b32 {S(S_T0)}, {S(S_WK)}, 7")
    a(f"s_add_u32 {S(S_T0)}, {S(S_T0)}, {FLAG_OFF}")
    a(f"buffer_store_dwordx4 {V(20,4)}, {V(24)}, {S(SRD_WS,4)}, {S(S_T0)} offen sc1")
    a.label(Ls)
    srd(a, SRD_A, 0, 2048 * 512 * 2)
    a(f"s_lshl_b32 {S(S_T0)}, {S(S_WK)}, 2")
    a(f"s_add_u32 {S(S_T0)}, {S(S_T0)}, {S(S_W)}")
    a(f"v_lshlrev_b32 {V(24)}, 4, {V(L)}")
    NR = 3
    X = [32 + 4 * k for k in range(NR)]
    F = [48 + 8 * k for k in range(NR)]
    for k in range(NR):
        a(f"s_add_u32 {S(S_T1)}, {S(S_T0)}, {896*k}")
        a(f"s_min_u32 {S(S_T1)}, {S(S_T1)}, 2047")
        a(f"s_lshl_b32 {S(S_T1)}, {S(S_T1)}, 10")
        a(f"buffer_load_dwordx4 {V(X[k],4)}, {V(24)}, {S(SRD_A,4)}, {S(S_T1)} offen")
    a("s_waitcnt vmcnt(0)")
    SUM = [80 + k for k in range(NR)]
    TMP = 84
    for k in range(NR):
        for d in range(4):
            a(f"v_lshlrev_b32 {V(F[k]+2*d)}, 16, {V(X[k]+d)}")
            a(f"v_and_b32 {V(F[k]+2*d+1)}, 0xffff0000, {V(X[k]+d)}")
        a(f"v_add_f32 {V(SUM[k])}, {V(F[k])}, {V(F[k]+1)}")
        for d in range(2, 8):
            a(f"v_add_f32 {V(SUM[k])}, {V(SUM[k])}, {V(F[k]+d)}")
    wave_sum(a, SUM, TMP)
    MEAN = [88 + k for k in range(NR)]
    VAR = [92 + k for k in range(NR)]
    for k in range(NR):
        a(f"v_mul_f32 {V(MEAN[k])}, {f2u(1/512):#x}, {V(SUM[k])}")
        a(f"v_sub_f32 {V(TMP)}, {V(F[k])}, {V(MEAN[k])}")
        a(f"v_mul_f32 {V(VAR[k])}, {V(TMP)}, {V(TMP)}")
        for d in range(1, 8):
            a(f"v_sub_f32 {V(TMP)}, {V(F[k]+d)}, {V(MEAN[k])}")
            a(f"v_fmac_f32 {V(VAR[k])}, {V(TMP)}, {V(TMP)}")
    wave_sum(a, VAR, TMP)
    for k in range(NR):
        a(f"v_mul_f32 {V(VAR[k])}, {f2u(1/512):#x}, {V(VAR[k])}")
        bf16_round(a, VAR[k], VAR[k])
        a(f"v_add_f32 {V(VAR[k])}, {f2u(1e-5):#x}, {V(VAR[k])}")
        bf16_round(a, VAR[k], VAR[k])
        a(f"v_sqrt_f32 {V(VAR[k])}, {V(VAR[k])}")
        a("s_nop 0")
        bf16_round(a, VAR[k], VAR[k])
        a(f"v_rcp_f32 {V(96+k)}, {V(VAR[k])}")
        bf16_round(a, MEAN[k], MEAN[k])
        for d in range(8):
            a(f"v_sub_f32 {V(F[k]+d)}, {V(F[k]+d)}, {V(MEAN[k])}")
        for d in range(0, 8, 2):
            a(f"v_cvt_pk_bf16_f32 {V(TMP)}, {V(F[k]+d)}, {V(F[k]+d+1)}")
            a(f"v_lshlrev_b32 {V(F[k]+d)}, 16, {V(TMP)}")
            a(f"v_and_b32 {V(F[k]+d+1)}, 0xffff0000, {V(TMP)}")
        for d in range(8):
            a(f"v_mul_f32 {V(TMP)}, {V(F[k]+d)}, {V(96+k)}")
            a(f"v_fma_f32 {V(TMP+1)}, -{V(TMP)}, {V(VAR[k])}, {V(F[k]+d)}")
            a(f"v_fma_f32 {V(F[k]+d)}, {V(TMP+1)}, {V(96+k)}, {V(TMP)}")
        for d in range(4):
            a(f"v_cvt_pk_bf16_f32 {V(X[k]+d)}, {V(F[k]+2*d)}, {V(F[k]+2*d+1)}")
        Lk = a.newlabel("L_lnrow")
        a(f"s_add_u32 {S(S_T1)}, {S(S_T0)}, {896*k}")
        a(f"s_cmp_ge_u32 {S(S_T1)}, 2048")
        a(f"s_cbranch_scc1 {Lk}")
        a(f"s_lshl_b32 {S(S_T1)}, {S(S_T1)}, 10")
        a(f"s_add_u32 {S(S_T1)}, {S(S_T1)}, {XN_OFF}")
        a(f"buffer_store_dwordx4 {V(X[k],4)}, {V(24)}, {S(SRD_WS,4)}, {S(S_T1)} offen sc1")
        a.label(Lk)
    a("s_waitcnt vmcnt(0)")
    a("s_barrier")
    Ls = a.newlabel("L_c0")
    a(f"s_cmp_eq_u32 {S(S_W)}, 0")
    a(f"s_cbranch_scc0 {Ls}")
    a("v_mov_b32 v20, 1")
    a("s_mov_b64 exec, 1")
    a(f"s_mov_b32 {S(S_T0)}, 32")
    a(f"buffer_atomic_add v20, off, {S(SRD_DBG,4)}, {S(S_T0)} sc1")
    a("s_mov_b64 exec, -1")
    a.label(Ls)


class Stager:
    def __init__(self, a, L=100, N=101, G=102):
        self.a = a; self.L, self.N, self.G = L, N, G
    def lane_ids(self):
        a = self.a
        a(f"v_and_b32 {V(self.L)}, 63, v0")
        a(f"v_and_b32 {V(self.N)}, 15, {V(self.L)}")
        a(f"v_lshrrev_b32 {V(self.G)}, 4, {V(self.L)}")
    def dma_voffsets(self, dst, stride, swz, t1=103, t2=104, t3=105):
        a = self.a
        a(f"v_and_b32 {V(t1)}, 3, {V(self.G)}")
        a(f"v_lshlrev_b32 {V(t1)}, 1, {V(t1)}")
        a(f"v_xor_b32 {V(t1)}, {V(t1)}, {V(self.N)}")
        a(f"s_lshl_b32 {S(S_T2)}, {S(S_W)}, 4")
        a(f"s_mov_b32 {S(S_T3)}, {stride}")
        for i in range(4):
            bit = ((i >> 1) & 1) if swz == "B" else (i & 1)
            a(f"v_xor_b32 {V(t2)}, {8*bit}, {V(t1)}")
            a(f"v_lshlrev_b32 {V(t2)}, 4, {V(t2)}")
            a(f"v_add_u32 {V(t3)}, {S(S_T2)}, {V(self.G)}")
            a(f"v_add_u32 {V(t3)}, {4*i}, {V(t3)}")
            a(f"v_mul_lo_u32 {V(dst+i)}, {S(S_T3)}, {V(t3)}")
            a(f"v_add_u32 {V(dst+i)}, {V(dst+i)}, {V(t2)}")
    def tr_base(self, dbase, dfs, swz, t1=103, t2=104, t3=105):
        a = self.a
        a(f"v_lshrrev_b32 {V(t1)}, 2, {V(self.N)}")
        a(f"v_and_b32 {V(t2)}, 3, {V(self.N)}")
        sh = 3 if swz == "B" else 2
        a(f"v_lshl_add_u32 {V(t3)}, {V(self.G)}, {sh}, {V(t1)}")
        a(f"v_lshlrev_b32 {V(dbase)}, 8, {V(t3)}")
        a(f"v_lshl_add_u32 {V(dbase)}, {V(t2)}, 3, {V(dbase)}")
        a(f"v_and_b32 {V(t3)}, 1, {V(self.G)}")
        a(f"v_lshlrev_b32 {V(t3)}, 2, {V(t3)}")
        a(f"v_add_u32 {V(t3)}, {V(t3)}, {V(t1)}")
        a(f"v_lshlrev_b32 {V(dfs)}, 5, {V(t3)}")
    def run(self, chunks):
        a = self.a
        n = len(chunks)
        def dma(i):
            c = chunks[i]
            slot = i & 7
            for k in range(4):
                a(f"s_lshl_b32 {S(S_T0)}, {S(S_W)}, 12")
                a(f"s_add_u32 m0, {S(S_T0)}, {slot*16384 + k*1024}")
                for x in c["soff"]: a(x)
                a(f"buffer_load_dwordx4 {V(c['voff']+k)}, {S(c['srd'],4)}, {S(S_T1)} offen lds")
        for i in range(min(8, n)): dma(i)
        for i in range(n):
            later = min(i + 7, n - 1) - i
            a(f"s_waitcnt vmcnt({4*later})")
            a("s_barrier")
            chunks[i]["consume"]((i & 7) * 16384)
            a("s_waitcnt lgkmcnt(0)")
            a("s_barrier")
            if i + 8 < n: dma(i + 8)


XN_LDS = (0, 32768)

def xn_dma(a, buf, vsrc, sseg):
    a(f"s_lshl_b32 {S(S_T1)}, {S(sseg)}, 15")
    a(f"s_lshr_b32 {S(S_T2)}, {S(S_W)}, 1")
    a(f"s_lshl_b32 {S(S_T2)}, {S(S_T2)}, 14")
    a(f"s_add_u32 {S(S_T1)}, {S(S_T1)}, {S(S_T2)}")
    a(f"s_and_b32 {S(S_T2)}, {S(S_W)}, 1")
    a(f"s_lshl_b32 {S(S_T2)}, {S(S_T2)}, 9")
    a(f"s_add_u32 {S(S_T1)}, {S(S_T1)}, {S(S_T2)}")
    a(f"s_add_u32 {S(S_T1)}, {S(S_T1)}, {XN_OFF}")
    a(f"s_lshl_b32 {S(S_T0)}, {S(S_W)}, 13")
    a(f"s_add_u32 m0, {S(S_T0)}, {buf}")
    for k in range(8):
        a("s_nop 0")
        a(f"buffer_load_dwordx4 {V(vsrc)}, {S(SRD_WS,4)}, {S(S_T1)} offen lds")
        if k < 7:
            a(f"s_add_u32 m0, m0, 1024")
            a(f"s_add_u32 {S(S_T1)}, {S(S_T1)}, 64")


def w1_flag(a, sseg):
    Lf = a.newlabel("L_w1_noflag")
    a(f"s_cmp_ge_u32 {S(sseg)}, 64")
    a(f"s_cbranch_scc1 {Lf}")
    a(f"s_cmp_eq_u32 {S(S_W)}, 0")
    a(f"s_cbranch_scc0 {Lf}")
    a(f"s_lshl_b32 {S(S_T0)}, {S(sseg)}, 5")
    a(f"s_add_u32 {S(S_T0)}, {S(S_T0)}, {S(S_H1)}")
    a(f"s_lshl_b32 {S(S_T0)}, {S(S_T0)}, 2")
    a(f"s_add_u32 {S(S_T0)}, {S(S_T0)}, {FLAG_OFF}")
    a("v_mov_b32 v26, 1")
    a(f"buffer_store_dword v26, off, {S(SRD_WS,4)}, {S(S_T0)} sc1")
    a.label(Lf)


def w1(a):
    a("; ===== W1: Q,K,V projections, head stationary =====")
    st = Stager(a)
    st.lane_ids()
    L, N, G = st.L, st.N, st.G
    srd(a, SRD_A, 24, 0x400000)
    srd(a, SRD_B, 32, 0x400000)
    srd(a, SRD_C, 16, 0x400000)
    VOFF = 24
    st.dma_voffsets(VOFF, 8192, "B")
    a(f"s_lshl_b32 {S(S_T2)}, {S(S_H1)}, 8")
    for i in range(4):
        a(f"v_add_u32 {V(VOFF+i)}, {S(S_T2)}, {V(VOFF+i)}")
    TB, FS = 32, 33
    st.tr_base(TB, FS, "B")
    TA = (34, 35)
    for f in range(2):
        a(f"s_lshl_b32 {S(S_T0)}, {S(S_W)}, 6")
        a(f"s_add_u32 {S(S_T0)}, {S(S_T0)}, {32*f}")
        a(f"v_xor_b32 {V(TA[f])}, {S(S_T0)}, {V(FS)}")
        a(f"v_add_u32 {V(TA[f])}, {V(TA[f])}, {V(TB)}")
    def frag(mat, f, u):
        k = (f * 16 + u) * 4
        return {"q": lambda c: A(k + c[0], c[1]), "k": lambda c: A(128 + k + c[0], c[1]), "v": lambda c: V(128 + k + c[0], c[1])}[mat]
    chunks = []
    for mat, sr in (("k", SRD_A), ("v", SRD_B), ("q", SRD_C)):
        for T in range(8):
            def consume(slot, mat=mat, T=T):
                for f in range(2):
                    a(f"v_add_u32 {V(36+f)}, {slot}, {V(TA[f])}")
                for f in range(2):
                    for uu in range(2):
                        for hh in range(2):
                            a(f"ds_read_b64_tr_b16 {frag(mat, f, 2*T+uu)((2*hh, 2))}, {V(36+f)} offset:{(32*uu + 4*hh)*256}")
            chunks.append(dict(srd=sr, voff=VOFF, soff=[f"s_mov_b32 {S(S_T1)}, {T*524288}"], consume=consume))
    st.run(chunks)
    if "time" in OPT:
        a("s_memrealtime s[60:61]")
        a("s_waitcnt lgkmcnt(0)")
    poll_word(a, SRD_DBG, "32", f"s_cmp_ge_u32 {S(S_T0)}, 224", 103, "c0")
    if "time" in OPT:
        a("s_memrealtime s[62:63]")
        a("s_waitcnt lgkmcnt(0)")
    XS = 24
    L16 = 25
    a(f"v_lshlrev_b32 {V(XS)}, 10, {V(N)}")
    a(f"v_lshl_add_u32 {V(XS)}, {V(G)}, 4, {V(XS)}")
    a(f"v_lshlrev_b32 {V(L16)}, 4, {V(L)}")
    a(f"s_mov_b32 {S(S_SEG)}, {S(S_SUB)}")
    a(f"s_mov_b32 {S(S_J)}, 0")
    S_PREV = 42
    S_NEXT = 43
    a(f"s_mov_b32 {S(S_PREV)}, 64")
    xn_dma(a, XN_LDS[0], XS, S_SEG)
    a("s_waitcnt vmcnt(0)")
    ACC = 32
    XF = 80
    OUT = 96
    a.label("L_w1_loop")
    for par in range(2):
        a("s_waitcnt vmcnt(0)")
        a("s_barrier")
        w1_flag(a, S_PREV)
        if "noflow" not in OPT:
            Lfc = a.newlabel("L_w1_fc")
            a(f"s_cmp_lt_u32 {S(S_SEG)}, {W1_AHEAD}")
            a(f"s_cbranch_scc1 {Lfc}")
            a(f"s_sub_u32 {S(S_T1)}, {S(S_SEG)}, {W1_AHEAD}")
            a(f"s_lshl_b32 {S(S_T1)}, {S(S_T1)}, 5")
            a(f"s_add_u32 {S(S_T1)}, {S(S_T1)}, {S(S_H1)}")
            a(f"s_lshl_b32 {S(S_T1)}, {S(S_T1)}, 2")
            a(f"s_add_u32 {S(45)}, {S(S_T1)}, {KVMF_OFF}")
            poll_word(a, SRD_WS, S(45), f"s_cmp_lg_u32 {S(S_T0)}, 0", 26, "fc")
            a.label(Lfc)
        Ln = a.newlabel("L_w1_nopf")
        a(f"s_add_u32 {S(S_NEXT)}, {S(S_SEG)}, {W1_STRIDE}")
        a(f"s_min_u32 {S(S_T3)}, {S(S_NEXT)}, 63")
        a(f"s_mov_b32 {S(44)}, {S(S_T3)}")
        xn_dma(a, XN_LDS[par ^ 1], XS, 44)
        for r in range(ACC, ACC + 48, 2):
            a(f"v_mov_b64 {V(r,2)}, 0")
        def rd(u):
            b = XF + 8 * (u & 1)
            for tt in range(2):
                a(f"ds_read_b128 {V(b+4*tt,4)}, {V(L16)} offset:{XN_LDS[par] + (tt*16+u)*1024}")
        rd(0)
        for u in range(16):
            if u + 1 < 16:
                rd(u + 1)
                a("s_waitcnt lgkmcnt(2)")
            else:
                a("s_waitcnt lgkmcnt(0)")
            b = XF + 8 * (u & 1)
            for mi, mat in enumerate(("q", "k", "v")):
                for f in range(2):
                    for tt in range(2):
                        acc = V(ACC + ((mi * 2 + f) * 2 + tt) * 4, 4)
                        wf = frag(mat, f, u)((0, 4))
                        xf = V(b + 4 * tt, 4)
                        if mat == "v":
                            a(f"v_mfma_f32_16x16x32_bf16 {acc}, {xf}, {wf}, {acc}")
                        else:
                            a(f"v_mfma_f32_16x16x32_bf16 {acc}, {wf}, {xf}, {acc}")
        a("s_nop 7")
        def acc(mi, f, tt): return ACC + ((mi * 2 + f) * 2 + tt) * 4
        for mi in range(2):
            for tt in range(2):
                o = OUT + (mi * 2 + tt) * 4
                for f in range(2):
                    for hp in range(2):
                        a(f"v_cvt_pk_bf16_f32 {V(o+2*f+hp)}, {V(acc(mi,f,tt)+2*hp)}, {V(acc(mi,f,tt)+2*hp+1)}")
        for f in range(2):
            o = OUT + 16 + f * 4
            for tt in range(2):
                for hp in range(2):
                    a(f"v_cvt_pk_bf16_f32 {V(o+2*tt+hp)}, {V(acc(2,f,tt)+2*hp)}, {V(acc(2,f,tt)+2*hp+1)}")
        a(f"s_lshl_b32 {S(S_T0)}, {S(S_SEG)}, 5")
        a(f"s_add_u32 {S(S_T0)}, {S(S_T0)}, {S(S_H1)}")
        a(f"s_lshl_b32 {S(S_T0)}, {S(S_T0)}, 13")
        a(f"s_lshl_b32 {S(S_T1)}, {S(S_W)}, 10")
        a(f"s_add_u32 {S(S_T1)}, {S(S_T1)}, {S(S_T0)}")
        for mi, base in ((0, QF_OFF), (1, KF_OFF)):
            for tt in range(2):
                a(f"s_add_u32 {S(S_T2)}, {S(S_T1)}, {base + tt*4096}")
                a(f"buffer_store_dwordx4 {V(OUT+(mi*2+tt)*4,4)}, {V(L16)}, {S(SRD_WS,4)}, {S(S_T2)} offen {STF}")
        a(f"s_lshl_b32 {S(S_T1)}, {S(S_W)}, 11")
        a(f"s_add_u32 {S(S_T1)}, {S(S_T1)}, {S(S_T0)}")
        for f in range(2):
            a(f"s_add_u32 {S(S_T2)}, {S(S_T1)}, {VF_OFF + f*1024}")
            a(f"buffer_store_dwordx4 {V(OUT+16+f*4,4)}, {V(L16)}, {S(SRD_WS,4)}, {S(S_T2)} offen {STF}")
        a(f"s_mov_b32 {S(S_PREV)}, {S(S_SEG)}")
        a(f"s_mov_b32 {S(S_SEG)}, {S(S_NEXT)}")
        a(f"s_cmp_ge_u32 {S(S_SEG)}, 64")
        a("s_cbranch_scc1 L_w1_done")
    a("s_branch L_w1_loop")
    a.label("L_w1_done")
    a("s_waitcnt vmcnt(0)")
    a("s_barrier")
    w1_flag(a, S_PREV)


NTEAM = 4
ACT_O, O_LDS, KT_LDS = 32768, 36864, 45056
C_SCALE = (128 ** -0.5) * 1.4426950408889634
LOG2E = 1.4426950408889634

def w2(a):
    a("; ===== W2: FFN + token attention + output projection, one team per XCD =====")
    st = Stager(a)
    st.lane_ids()
    L, N, G = st.L, st.N, st.G
    S_H = S_IDX
    a(f"s_sub_u32 {S(S_TEAM)}, {S(S_XCC)}, 4")
    srd(a, SRD_A, 40, 0x400000)
    srd(a, SRD_B, 80, 1792 * 512 * 2)
    srd(a, SRD_C, 64, 512 * 1792 * 2)
    VO_C, VO_B = 24, 28
    st.dma_voffsets(VO_C, 1024, "C")
    st.dma_voffsets(VO_B, 3584, "B")
    TBC, FSC, TBB, FSB = 32, 33, 34, 35
    st.tr_base(TBC, FSC, "C")
    st.tr_base(TBB, FSB, "B")
    a(f"s_lshl_b32 {S(S_T0)}, {S(S_W)}, 5")
    a(f"v_xor_b32 {V(36)}, {S(S_T0)}, {V(FSB)}")
    a(f"v_add_u32 {V(36)}, {V(36)}, {V(TBB)}")
    S_FFN = 41
    a(f"s_cmp_lt_u32 {S(S_H)}, 28")
    a(f"s_cselect_b32 {S(S_FFN)}, 1, 0")
    S_HC = 42
    a(f"s_min_u32 {S(S_HC)}, {S(S_H)}, 27")
    chunks = []
    def own_wave(wp, body):
        Ls = a.newlabel("L_own")
        a(f"s_cmp_eq_u32 {S(S_W)}, {wp}")
        a(f"s_cbranch_scc0 {Ls}")
        body()
        a.label(Ls)
    for T in range(2):
        for wp in range(4):
            def consume(slot, T=T, wp=wp):
                def body():
                    for tau in range(8):
                        a(f"v_xor_b32 {V(37)}, {32*tau}, {V(FSC)}")
                        a(f"v_add_u32 {V(37)}, {V(37)}, {V(TBC)}")
                        a(f"v_add_u32 {V(37)}, {slot}, {V(37)}")
                        for uu in range(2):
                            for f in range(2):
                                a(f"ds_read_b64_tr_b16 {A((tau*4 + 2*T+uu)*4 + 2*f, 2)}, {V(37)} offset:{(32*uu + 16*f)*256}")
                        if tau & 1: a("s_waitcnt lgkmcnt(0)")
                own_wave(wp, body)
            chunks.append(dict(srd=SRD_A, voff=VO_C, consume=consume,
                               soff=[f"s_lshl_b32 {S(S_T1)}, {S(S_H)}, 17", f"s_add_u32 {S(S_T1)}, {S(S_T1)}, {T*65536 + wp*256}"]))
    for wp in range(4):
        def consume(slot, wp=wp):
            def body():
                for tau in range(8):
                    a(f"v_xor_b32 {V(37)}, {32*tau}, {V(FSC)}")
                    a(f"v_add_u32 {V(37)}, {V(37)}, {V(TBC)}")
                    a(f"v_add_u32 {V(37)}, {slot}, {V(37)}")
                    for uu in range(2):
                        for f in range(2):
                            a(f"ds_read_b64_tr_b16 {A(128 + (tau*2 + uu)*4 + 2*f, 2)}, {V(37)} offset:{(32*uu + 16*f)*256}")
                    if tau & 1: a("s_waitcnt lgkmcnt(0)")
            own_wave(wp, body)
        chunks.append(dict(srd=SRD_B, voff=VO_C, consume=consume,
                           soff=[f"s_lshl_b32 {S(S_T1)}, {S(S_HC)}, 16", f"s_add_u32 {S(S_T1)}, {S(S_T1)}, {wp*256}"]))
    for T in range(8):
        def consume(slot, T=T):
            a(f"v_add_u32 {V(37)}, {slot}, {V(36)}")
            for uu in range(2):
                for hh in range(2):
                    a(f"ds_read_b64_tr_b16 {A(192 + (2*T+uu)*4 + 2*hh, 2)}, {V(37)} offset:{(32*uu + 4*hh)*256}")
        chunks.append(dict(srd=SRD_C, voff=VO_B, consume=consume,
                           soff=[f"s_lshl_b32 {S(S_T1)}, {S(S_HC)}, 7", f"s_add_u32 {S(S_T1)}, {S(S_T1)}, {T*64*3584}"]))
    st.run(chunks)
    L16, XS, A_KW, A_TRK, G_PST, G_PLD, G_OUT = 0, 1, 2, 3, 4, 5, 6
    B1 = 8
    SEL = 12
    T1, T2, T3 = 103, 104, 105
    R_, C_ = 106, 107
    a(f"v_lshrrev_b32 {V(R_)}, 2, {V(N)}")
    a(f"v_and_b32 {V(C_)}, 3, {V(N)}")
    a(f"v_lshlrev_b32 {V(XS)}, 10, {V(N)}")
    a(f"v_lshl_add_u32 {V(XS)}, {V(G)}, 4, {V(XS)}")
    a(f"s_lshl_b32 {S(S_T0)}, {S(S_W)}, 5")
    a(f"v_add_u32 {V(T3)}, {S(S_T0)}, {V(N)}")
    a(f"v_lshlrev_b32 {V(A_KW)}, 5, {V(T3)}")
    a(f"v_add_u32 {V(T3)}, {V(G)}, {V(R_)}")
    a(f"v_and_b32 {V(T3)}, 3, {V(T3)}")
    a(f"v_lshl_add_u32 {V(A_KW)}, {V(T3)}, 3, {V(A_KW)}")
    a(f"v_add_u32 {V(A_KW)}, {KT_LDS}, {V(A_KW)}")
    a(f"v_lshl_add_u32 {V(T3)}, {V(G)}, 2, {V(R_)}")
    a(f"v_lshlrev_b32 {V(A_TRK)}, 5, {V(T3)}")
    a(f"v_add_u32 {V(T3)}, {V(C_)}, {V(G)}")
    a(f"v_and_b32 {V(T3)}, 3, {V(T3)}")
    a(f"v_lshl_add_u32 {V(A_TRK)}, {V(T3)}, 3, {V(A_TRK)}")
    a(f"v_add_u32 {V(A_TRK)}, {KT_LDS}, {V(A_TRK)}")
    a(f"v_lshlrev_b32 {V(G_PST)}, 15, {V(N)}")
    a(f"v_lshl_add_u32 {V(G_PST)}, {V(G)}, 4, {V(G_PST)}")
    a(f"v_lshlrev_b32 {V(G_PLD)}, 10, {V(G)}")
    a(f"v_lshl_add_u32 {V(G_PLD)}, {V(N)}, 4, {V(G_PLD)}")
    a(f"v_lshlrev_b32 {V(G_OUT)}, 6, {V(R_)}")
    a(f"v_lshl_add_u32 {V(G_OUT)}, {V(G)}, 5, {V(G_OUT)}")
    a(f"v_lshl_add_u32 {V(G_OUT)}, {V(C_)}, 3, {V(G_OUT)}")
    a(f"s_lshl_b32 {S(S_T0)}, {S(S_W)}, 8")
    a(f"v_add_u32 {V(G_OUT)}, {S(S_T0)}, {V(G_OUT)}")
    a(f"v_cmp_lt_u32 vcc, 1, {V(G)}")
    a(f"v_mov_b32 {V(T3)}, 0x7ff00000")
    a("s_nop 0")
    a(f"v_cndmask_b32 {V(G_OUT)}, {V(G_OUT)}, {V(T3)}, vcc")
    a(f"v_and_b32 {V(T1)}, 1, {V(N)}")
    a(f"v_lshlrev_b32 {V(T1)}, 4, {V(T1)}")
    a(f"v_mov_b32 {V(T2)}, 0x3f80")
    a(f"v_lshlrev_b32 {V(T2)}, {V(T1)}, {V(T2)}")
    a(f"v_bfe_u32 {V(T1)}, {V(N)}, 1, 2")
    for rr in range(4):
        a(f"v_cmp_eq_u32 vcc, {rr}, {V(T1)}")
        a(f"v_mov_b32 {V(SEL+rr)}, 0")
        a("s_nop 0")
        a(f"v_cndmask_b32 {V(SEL+rr)}, {V(SEL+rr)}, {V(T2)}, vcc")
    srd(a, SRD_C, 72, 1792 * 2)
    a(f"s_lshl_b32 {S(S_T0)}, {S(S_HC)}, 7")
    a(f"s_lshl_b32 {S(S_T1)}, {S(S_W)}, 5")
    a(f"s_add_u32 {S(S_T0)}, {S(S_T0)}, {S(S_T1)}")
    a(f"v_lshlrev_b32 {V(T1)}, 3, {V(G)}")
    a(f"buffer_load_dwordx2 {V(T2,2)}, {V(T1)}, {S(SRD_C,4)}, {S(S_T0)} offen")
    a("s_waitcnt vmcnt(0)")
    a(f"v_lshlrev_b32 {V(B1)}, 16, {V(T2)}")
    a(f"v_and_b32 {V(B1+1)}, 0xffff0000, {V(T2)}")
    a(f"v_lshlrev_b32 {V(B1+2)}, 16, {V(T3)}")
    a(f"v_and_b32 {V(B1+3)}, 0xffff0000, {V(T3)}")
    S_M0, S_M1 = 64, 72
    for r in range(4):
        a(f"v_lshl_add_u32 {V(T1)}, {V(G)}, 2, {r}")
        a(f"v_cmp_le_u32 {S(S_M1+2*r,2)}, {V(T1)}, {V(N)}")
    a("s_nop 3")
    a(f"s_cmp_ge_u32 {S(S_W)}, 2")
    for r in range(4):
        a(f"s_cselect_b64 {S(S_M0+2*r,2)}, -1, {S(S_M1+2*r,2)}")
        a(f"s_cselect_b64 {S(S_M1+2*r,2)}, {S(S_M1+2*r,2)}, 0")
    a(f"v_lshlrev_b32 {V(L16)}, 4, {V(L)}")
    a(f"v_and_b32 {V(7)}, 31, {V(L)}")
    a(f"v_lshlrev_b32 {V(7)}, 2, {V(7)}")
    srd(a, SRD_A, 0, 2048 * 512 * 2)
    srd(a, SRD_B, 88, 2048 * 512 * 2)
    S_C = 80
    a(f"s_mov_b32 {S(S_C)}, {f2u(C_SCALE):#x}")
    S_L2E = 81
    a(f"s_mov_b32 {S(S_L2E)}, {f2u(LOG2E):#x}")
    A_ACTW, A_OW = 16, 17
    a(f"s_lshr_b32 {S(S_T0)}, {S(S_W)}, 1")
    a(f"s_lshl_b32 {S(S_T0)}, {S(S_T0)}, 10")
    a(f"s_and_b32 {S(S_T1)}, {S(S_W)}, 1")
    a(f"s_lshl_b32 {S(S_T2)}, {S(S_T1)}, 3")
    a(f"s_add_u32 {S(S_T0)}, {S(S_T0)}, {S(S_T2)}")
    a(f"s_add_u32 {S(S_T0)}, {S(S_T0)}, {ACT_O}")
    a(f"v_add_u32 {V(A_ACTW)}, {S(S_T0)}, {V(L16)}")
    a(f"s_lshr_b32 {S(S_T0)}, {S(S_W)}, 1")
    a(f"s_lshl_b32 {S(S_T0)}, {S(S_T0)}, 12")
    a(f"s_lshl_b32 {S(S_T1)}, {S(S_T1)}, 11")
    a(f"s_add_u32 {S(S_T0)}, {S(S_T0)}, {S(S_T1)}")
    a(f"s_add_u32 {S(S_T0)}, {S(S_T0)}, {O_LDS}")
    a(f"v_add_u32 {V(A_OW)}, {S(S_T0)}, {V(L16)}")
    poll_word(a, SRD_DBG, "32", f"s_cmp_ge_u32 {S(S_T0)}, 224", T3, "c0b")
    a(f"s_mov_b32 {S(S_SEG)}, {S(S_TEAM)}")
    a(f"s_mov_b32 {S(S_J)}, 0")
    a("s_barrier")
    xn_dma(a, 0, XS, S_SEG)
    FA = 128
    XF = 32
    a.label("L_w2_loop")
    a("s_waitcnt vmcnt(0)")
    a("s_barrier")
    for r in range(FA, FA + 64, 2):
        a(f"v_mov_b64 {V(r,2)}, 0")
    Lnf = a.newlabel("L_w2_noffn")
    a(f"s_cmp_eq_u32 {S(S_FFN)}, 0")
    a(f"s_cbranch_scc1 {Lnf}")
    H = 48
    for r in range(H, H + 8, 2): a(f"v_mov_b64 {V(r,2)}, 0")
    def rdx(u):
        b = XF + 8 * (u & 1)
        for tt in range(2):
            a(f"ds_read_b128 {V(b+4*tt,4)}, {V(L16)} offset:{(tt*16+u)*1024}")
    rdx(0)
    for u in range(16):
        if u < 15:
            rdx(u + 1); a("s_waitcnt lgkmcnt(2)")
        else:
            a("s_waitcnt lgkmcnt(0)")
        b = XF + 8 * (u & 1)
        for tt in range(2):
            a(f"v_mfma_f32_16x16x32_bf16 {V(H+4*tt,4)}, {A(192+4*u,4)}, {V(b+4*tt,4)}, {V(H+4*tt,4)}")
    a("s_nop 7")
    U, NN, DD, T_ = 56, 57, 58, 59
    for tt in range(2):
        for r in range(4):
            h = H + 4 * tt + r
            a(f"v_add_f32 {V(h)}, {V(h)}, {V(B1+r)}")
            a(f"v_mul_f32 {V(U)}, {S(S_L2E)}, {V(h)}")
            a(f"v_exp_f32 {V(U)}, -|{V(U)}|")
            a(f"v_cmp_le_f32 vcc, 0, {V(h)}")
            a(f"v_add_f32 {V(T_)}, {V(U)}, {V(U)}")
            a(f"v_fma_f32 {V(NN)}, {V(U)}, {V(U)}, {V(T_)}")
            a(f"v_add_f32 {V(DD)}, 1.0, {V(T_)}")
            a(f"v_mul_f32 {V(T_)}, {V(T_)}, {V(U)}")
            a(f"v_cndmask_b32 {V(NN)}, {V(NN)}, {V(DD)}, vcc")
            a(f"v_cndmask_b32 {V(T_)}, 2.0, {V(T_)}, vcc")
            a(f"v_add_f32 {V(DD)}, {V(NN)}, {V(T_)}")
            a(f"v_rcp_f32 {V(DD)}, {V(DD)}")
            a(f"v_mul_f32 {V(NN)}, {V(NN)}, {V(h)}")
            a(f"v_mul_f32 {V(h)}, {V(NN)}, {V(DD)}")
        a(f"v_cvt_pk_bf16_f32 {V(H+4*tt)}, {V(H+4*tt)}, {V(H+4*tt+1)}")
        a(f"v_cvt_pk_bf16_f32 {V(H+4*tt+1)}, {V(H+4*tt+2)}, {V(H+4*tt+3)}")
        a(f"ds_write_b64 {V(A_ACTW)}, {V(H+4*tt,2)} offset:{tt*2048}")
    a.label(Lnf)
    a("s_waitcnt lgkmcnt(0)")
    a("s_barrier")
    a(f"s_add_u32 {S(S_T3)}, {S(S_SEG)}, {NTEAM}")
    a(f"s_min_u32 {S(44)}, {S(S_T3)}, 63")
    xn_dma(a, 0, XS, 44)
    Lnf = a.newlabel("L_w2_noffn2")
    a(f"s_cmp_eq_u32 {S(S_FFN)}, 0")
    a(f"s_cbranch_scc1 {Lnf}")
    for tt in range(2):
        for uu in range(2):
            a(f"ds_read_b128 {V(XF+4*(2*tt+uu),4)}, {V(L16)} offset:{ACT_O + (tt*2+uu)*1024}")
    a("s_waitcnt lgkmcnt(0)")
    for tt in range(2):
        for tau in range(8):
            for uu in range(2):
                acc = V(FA + (tt*8+tau)*4, 4)
                a(f"v_mfma_f32_16x16x32_bf16 {acc}, {A(128+(tau*2+uu)*4,4)}, {V(XF+4*(2*tt+uu),4)}, {acc}")
    a.label(Lnf)
    a(f"s_lshl_b32 {S(S_T1)}, {S(S_SEG)}, 5")
    a(f"s_add_u32 {S(S_T1)}, {S(S_T1)}, {S(S_H)}")
    a(f"s_mov_b32 {S(46)}, {S(S_T1)}")
    a(f"s_lshl_b32 {S(S_T1)}, {S(S_T1)}, 2")
    a(f"s_add_u32 {S(45)}, {S(S_T1)}, {FLAG_OFF}")
    poll_word(a, SRD_WS, S(45), f"s_cmp_eq_u32 {S(S_T0)}, 1", T3, "kv")
    a(f"s_add_u32 {S(45)}, {S(45)}, {KVMF_OFF - FLAG_OFF}")
    poll_word(a, SRD_WS, S(45), f"s_cmp_lg_u32 {S(S_T0)}, 0", T3, "kvm")
    QF, KF0, KF1, VF, REC, VMR = 32, 48, 64, 80, 96, 98
    a(f"s_lshl_b32 {S(45)}, {S(46)}, 13")
    a(f"s_lshr_b32 {S(S_T0)}, {S(S_W)}, 1")
    a(f"s_lshl_b32 {S(S_T0)}, {S(S_T0)}, 12")
    a(f"s_add_u32 {S(S_T1)}, {S(45)}, {S(S_T0)}")
    a(f"s_add_u32 {S(S_T1)}, {S(S_T1)}, {QF_OFF}")
    for u in range(4):
        a(f"buffer_load_dwordx4 {V(QF+4*u,4)}, {V(L16)}, {S(SRD_WS,4)}, {S(S_T1)} offen offset:{u*1024} sc1")
    a(f"s_add_u32 {S(S_T1)}, {S(45)}, {KF_OFF}")
    for u in range(4):
        a(f"buffer_load_dwordx4 {V(KF0+4*u,4)}, {V(L16)}, {S(SRD_WS,4)}, {S(S_T1)} offen offset:{u*1024} sc1")
    a(f"s_add_u32 {S(S_T1)}, {S(S_T1)}, 4096")
    for u in range(4):
        a(f"buffer_load_dwordx4 {V(KF1+4*u,4)}, {V(L16)}, {S(SRD_WS,4)}, {S(S_T1)} offen offset:{u*1024} sc1")
    a(f"s_and_b32 {S(S_T0)}, {S(S_W)}, 1")
    a(f"s_lshl_b32 {S(S_T2)}, {S(S_T0)}, 12")
    a(f"s_add_u32 {S(S_T1)}, {S(45)}, {S(S_T2)}")
    a(f"s_add_u32 {S(S_T1)}, {S(S_T1)}, {VF_OFF}")
    for t in range(4):
        a(f"buffer_load_dwordx4 {V(VF+4*t,4)}, {V(L16)}, {S(SRD_WS,4)}, {S(S_T1)} offen offset:{t*1024} sc1")
    a(f"s_lshl_b32 {S(45)}, {S(46)}, 12")
    a(f"s_add_u32 {S(45)}, {S(45)}, {KVM_OFF}")
    a(f"s_lshl_b32 {S(S_T1)}, {S(S_W)}, 10")
    a(f"s_add_u32 {S(S_T1)}, {S(S_T1)}, {S(45)}")
    a(f"buffer_load_dwordx2 {V(REC,2)}, {V(L16)}, {S(SRD_WS,4)}, {S(S_T1)} offen sc1")
    a(f"s_lshl_b32 {S(S_T1)}, {S(S_T0)}, 11")
    a(f"s_add_u32 {S(S_T1)}, {S(S_T1)}, {S(45)}")
    for k in range(2):
        a(f"buffer_load_dwordx2 {V(VMR+2*k,2)}, {V(L16)}, {S(SRD_WS,4)}, {S(S_T1)} offen offset:{k*1024+8} sc1")
    a("s_waitcnt vmcnt(2)")
    a(f"ds_write_b32 {V(A_KW)}, {V(REC)}")
    a(f"ds_write_b32 {V(A_KW)}, {V(REC+1)} offset:512")
    a("s_waitcnt vmcnt(0) lgkmcnt(0)")
    a("s_barrier")
    KM = 104
    for u in range(4):
        for f in range(2):
            a(f"ds_read_b64_tr_b16 {V(KM+4*u+2*f,2)}, {V(A_TRK)} offset:{u*1024 + f*512}")
    ST0, ST1, SM = 20, 24, 28
    for u in range(4):
        a(f"v_mfma_f32_16x16x32_bf16 {V(ST0,4)}, {V(KF0+4*u,4)}, {V(QF+4*u,4)}, {'0' if u == 0 else V(ST0,4)}")
        a(f"v_mfma_f32_16x16x32_bf16 {V(ST1,4)}, {V(KF1+4*u,4)}, {V(QF+4*u,4)}, {'0' if u == 0 else V(ST1,4)}")
    a("s_waitcnt lgkmcnt(0)")
    for u in range(4):
        a(f"v_mfma_f32_16x16x32_bf16 {V(SM,4)}, {V(KM+4*u,4)}, {V(QF+4*u,4)}, {'0' if u == 0 else V(SM,4)}")
    NEG, MX, MX2, LS, LS2 = 120, 121, 122, 123, 124
    a(f"v_mov_b32 {V(NEG)}, 0xf149f2ca")
    a("s_nop 6")
    for r in range(4):
        a(f"v_cndmask_b32 {V(ST0+r)}, {V(NEG)}, {V(ST0+r)}, {S(S_M0+2*r,2)}")
        a(f"v_cndmask_b32 {V(ST1+r)}, {V(NEG)}, {V(ST1+r)}, {S(S_M1+2*r,2)}")
    SV = [ST0, ST0+1, ST0+2, ST0+3, ST1, ST1+1, ST1+2, ST1+3, SM, SM+1]
    a(f"v_max3_f32 {V(MX)}, {V(SV[0])}, {V(SV[1])}, {V(SV[2])}")
    a(f"v_max3_f32 {V(MX2)}, {V(SV[3])}, {V(SV[4])}, {V(SV[5])}")
    a(f"v_max3_f32 {V(MX)}, {V(MX)}, {V(SV[6])}, {V(SV[7])}")
    a(f"v_max3_f32 {V(MX2)}, {V(MX2)}, {V(SV[8])}, {V(SV[9])}")
    a(f"v_max_f32 {V(MX)}, {V(MX)}, {V(MX2)}")
    for sw in ("v_permlane32_swap_b32", "v_permlane16_swap_b32"):
        a(f"v_mov_b32 {V(MX2)}, {V(MX)}")
        a("s_nop 1")
        a(f"{sw} {V(MX)}, {V(MX2)}")
        a(f"v_max_f32 {V(MX)}, {V(MX)}, {V(MX2)}")
    a(f"v_mul_f32 {V(MX)}, {S(S_C)}, {V(MX)}")
    for k in range(10):
        a(f"v_fma_f32 {V(SV[k])}, {V(SV[k])}, {S(S_C)}, -{V(MX)}")
    for k in range(10):
        a(f"v_exp_f32 {V(SV[k])}, {V(SV[k])}")
    PT, PM0, PM1 = 32, 36, 38
    a("s_nop 0")
    for k in range(4):
        a(f"v_cvt_pk_bf16_f32 {V(PT+k)}, {V(SV[2*k])}, {V(SV[2*k+1])}")
    a(f"v_cvt_pk_bf16_f32 {V(PM0)}, {V(SV[8])}, {V(SV[9])}")
    a(f"v_cvt_pk_bf16_f32 {V(PM1+1)}, {V(SV[8])}, {V(SV[9])}")
    a(f"v_mov_b32 {V(PM0+1)}, 0")
    a(f"v_mov_b32 {V(PM1)}, 0")
    OA = 48
    a("s_nop 1")
    for t in range(4):
        a(f"v_mfma_f32_16x16x32_bf16 {V(OA+4*t,4)}, {V(VF+4*t,4)}, {V(PT,4)}, 0")
    for t in range(4):
        a(f"v_mfma_f32_16x16x16_bf16 {V(OA+4*t,4)}, {V(VMR+2*(t>>1),2)}, {V(PM0 if t % 2 == 0 else PM1,2)}, {V(OA+4*t,4)}")
    a(f"v_add_f32 {V(LS)}, {V(SV[0])}, {V(SV[1])}")
    for k in range(2, 10):
        a(f"v_add_f32 {V(LS)}, {V(LS)}, {V(SV[k])}")
    for sw in ("v_permlane32_swap_b32", "v_permlane16_swap_b32"):
        a(f"v_mov_b32 {V(LS2)}, {V(LS)}")
        a("s_nop 1")
        a(f"{sw} {V(LS)}, {V(LS2)}")
        a(f"v_add_f32 {V(LS)}, {V(LS)}, {V(LS2)}")
    a(f"v_rcp_f32 {V(LS)}, {V(LS)}")
    a("s_nop 3")
    for k in range(16):
        a(f"v_mul_f32 {V(OA+k)}, {V(OA+k)}, {V(LS)}")
    for t in range(4):
        a(f"v_cvt_pk_bf16_f32 {V(OA+4*t)}, {V(OA+4*t)}, {V(OA+4*t+1)}")
        a(f"v_cvt_pk_bf16_f32 {V(OA+4*t+1)}, {V(OA+4*t+2)}, {V(OA+4*t+3)}")
        a(f"ds_write_b64 {V(A_OW)}, {V(OA+4*t,2)} offset:{(t>>1)*1024 + (t&1)*8}")
    a("s_waitcnt lgkmcnt(0)")
    a("s_barrier")
    OF = 64
    for tt in range(2):
        for u in range(4):
            a(f"ds_read_b128 {V(OF+4*(tt*4+u),4)}, {V(L16)} offset:{O_LDS + (tt*4+u)*1024}")
    a("s_waitcnt lgkmcnt(0)")
    for tt in range(2):
        for tau in range(8):
            for u in range(4):
                acc = V(FA + (tt*8+tau)*4, 4)
                a(f"v_mfma_f32_16x16x32_bf16 {acc}, {A((tau*4+u)*4,4)}, {V(OF+4*(tt*4+u),4)}, {acc}")
    a("s_nop 7")
    S_SLOT = 47
    a(f"s_and_b32 {S(S_T0)}, {S(S_J)}, 1")
    a(f"s_lshl_b32 {S(S_T0)}, {S(S_T0)}, 20")
    a(f"s_lshl_b32 {S(S_T1)}, {S(S_TEAM)}, 21")
    a(f"s_add_u32 {S(S_T0)}, {S(S_T0)}, {S(S_T1)}")
    a(f"s_add_u32 {S(S_SLOT)}, {S(S_T0)}, {W2P_OFF}")
    a(f"s_lshl_b32 {S(S_T0)}, {S(S_H)}, 10")
    a(f"s_lshl_b32 {S(S_T1)}, {S(S_W)}, 8")
    a(f"s_add_u32 {S(S_T0)}, {S(S_T0)}, {S(S_T1)}")
    a(f"s_add_u32 {S(S_T0)}, {S(S_T0)}, {S(S_SLOT)}")
    PKD = 32
    for tt in range(2):
        for tp in range(4):
            o = PKD + 4 * ((tt * 4 + tp) % 8)
            for k in range(2):
                acc = FA + (tt*8 + 2*tp + k) * 4
                a(f"v_cvt_pk_bf16_f32 {V(o+2*k)}, {V(acc)}, {V(acc+1)}")
                a(f"v_cvt_pk_bf16_f32 {V(o+2*k+1)}, {V(acc+2)}, {V(acc+3)}")
            a(f"buffer_store_dwordx4 {V(o,4)}, {V(G_PST)}, {S(SRD_WS,4)}, {S(S_T0)} offen offset:{tp*64} {PSTF}")
        if tt == 0: a(f"s_add_u32 {S(S_T0)}, {S(S_T0)}, {16*32768}")
    XR = 64
    a(f"s_lshl_b32 {S(S_T1)}, {S(S_SEG)}, 5")
    a(f"s_add_u32 {S(S_T1)}, {S(S_T1)}, {S(S_H)}")
    a(f"s_lshl_b32 {S(46)}, {S(S_T1)}, 10")
    a(f"buffer_load_dwordx2 {V(XR,2)}, {V(G_OUT)}, {S(SRD_A,4)}, {S(46)} offen")
    a("s_waitcnt vmcnt(0)")
    a("s_barrier")
    a(f"s_add_u32 {S(S_J)}, {S(S_J)}, 1")
    Lf = a.newlabel("L_w2_flag")
    a(f"s_lshl_b32 {S(45)}, {S(S_TEAM)}, 7")
    a(f"s_add_u32 {S(45)}, {S(45)}, {W2F_OFF}")
    a(f"s_cmp_eq_u32 {S(S_W)}, 0")
    a(f"s_cbranch_scc0 {Lf}")
    a(f"v_mov_b32 {V(T3)}, {S(S_J)}")
    a(f"s_lshl_b32 {S(S_T0)}, {S(S_H)}, 2")
    a(f"s_add_u32 {S(S_T0)}, {S(S_T0)}, {S(45)}")
    a(f"buffer_store_dword {V(T3)}, off, {S(SRD_WS,4)}, {S(S_T0)}")
    a.label(Lf)
    Lp = a.newlabel("L_w2_poll"); Ld = Lp + "_d"
    a(f"s_mov_b32 {S(S_CNT)}, 0")
    a.label(Lp)
    a(f"s_cmp_eq_u32 {S(S_FAIL)}, 1")
    a(f"s_cbranch_scc1 {Ld}")
    a(f"buffer_load_dword {V(T2)}, {V(7)}, {S(SRD_WS,4)}, {S(45)} offen sc1")
    a("s_waitcnt vmcnt(0)")
    a(f"v_cmp_gt_u32 vcc, {S(S_J)}, {V(T2)}")
    a(f"s_cbranch_vccz {Ld}")
    a("s_sleep 1")
    a(f"s_add_u32 {S(S_CNT)}, {S(S_CNT)}, 1")
    a(f"s_cmp_lt_u32 {S(S_CNT)}, {SPIN_MAX}")
    a(f"s_cbranch_scc1 {Lp}")
    a(f"s_mov_b32 {S(S_FAIL)}, 1")
    a.label(Ld)
    IN = 32
    a(f"s_lshl_b32 {S(S_T0)}, {S(S_H)}, 15")
    a(f"s_lshl_b32 {S(S_T1)}, {S(S_W)}, 8")
    a(f"s_add_u32 {S(S_T0)}, {S(S_T0)}, {S(S_T1)}")
    a(f"s_add_u32 {S(S_T0)}, {S(S_T0)}, {S(S_SLOT)}")
    for i in range(8):
        a(f"buffer_load_dwordx4 {V(IN+4*i,4)}, {V(G_PLD)}, {S(SRD_WS,4)}, {S(S_T0)} offen sc1")
        if i < 7: a(f"s_add_u32 {S(S_T0)}, {S(S_T0)}, 4096")
    RA = 68
    for i in range(8):
        a(f"s_waitcnt vmcnt({7-i})")
        a(f"v_mfma_f32_16x16x32_bf16 {V(RA,4)}, {V(SEL,4)}, {V(IN+4*i,4)}, {'0' if i == 0 else V(RA,4)}")
    a(f"v_lshlrev_b32 {V(72)}, 16, {V(XR)}")
    a(f"v_and_b32 {V(73)}, 0xffff0000, {V(XR)}")
    a(f"v_lshlrev_b32 {V(74)}, 16, {V(XR+1)}")
    a(f"v_and_b32 {V(75)}, 0xffff0000, {V(XR+1)}")
    a("s_nop 4")
    for r in range(4):
        a(f"v_add_f32 {V(RA+r)}, {V(RA+r)}, {V(72+r)}")
    a(f"v_cvt_pk_bf16_f32 {V(RA)}, {V(RA)}, {V(RA+1)}")
    a(f"v_cvt_pk_bf16_f32 {V(RA+1)}, {V(RA+2)}, {V(RA+3)}")
    a(f"buffer_store_dwordx2 {V(RA,2)}, {V(G_OUT)}, {S(SRD_B,4)}, {S(46)} offen {OSTF}")
    a(f"s_add_u32 {S(S_SEG)}, {S(S_SEG)}, {NTEAM}")
    a(f"s_cmp_lt_u32 {S(S_SEG)}, 64")
    a("s_cbranch_scc1 L_w2_loop")
    a("s_waitcnt vmcnt(0)")
```

```python
import sys
from asm import *
from common import *
import rec3 as rec
import wk
def build(dbg=False, timing=False, stamps=False):
    a = Asm()
    if stamps: a("s_memrealtime s[86:87]")
    entry(a)
    if stamps: a("s_memrealtime s[92:93]")
    a("s_cmp_eq_u32 s6, 0")
    a("s_cbranch_scc0 L_worker")
    rec.prologue(a, dbg)
    if stamps:
        a("s_memrealtime s[94:95]")
        a("s_memtime s[88:89]")
        a("s_waitcnt lgkmcnt(0)")
        a("s_mov_b32 s93, s88")
    rec.loop(a, dbg, timing)
    if timing:
        for k in range(8): a(f"v_mov_b32 v{24+k}, s{rec.TACC+k}")
        a("s_lshl_b32 s40, s4, 2")
        a("s_add_u32 s40, s40, s5")
        a("s_lshl_b32 s40, s40, 5")
        a(f"s_add_u32 s40, s40, {DBG_OFF + 0x110000}")
        a("buffer_store_dwordx4 v[24:27], off, s[8:11], s40")
        a("buffer_store_dwordx4 v[28:31], off, s[8:11], s40 offset:16")
        a("s_waitcnt vmcnt(0)")
    if stamps:
        a("s_memtime s[88:89]")
        a("s_waitcnt lgkmcnt(0)")
        a("s_sub_u32 s17, s88, s93")
    a("s_branch L_fin_all")
    a.label("L_worker")
    wk.w0(a)
    a("s_cmp_ge_u32 s6, 4")
    a("s_cbranch_scc1 L_w2")
    wk.w1(a)
    a("s_mov_b32 s94, s92")
    a("s_branch L_fin_all")
    a.label("L_w2")
    if "now2" not in wk.OPT: wk.w2(a)
    a("s_mov_b32 s94, s92")
    a.label("L_fin_all")
    if "wbl2" in wk.OPT:
        a("buffer_wbl2 sc1")
        a("s_waitcnt vmcnt(0)")
    if stamps:
        a("s_memrealtime s[90:91]")
        a("s_waitcnt lgkmcnt(0)")
        a("s_cmp_eq_u32 s5, 0")
        a("s_cbranch_scc0 L_end")
        a("v_mov_b32 v20, s92")
        a("v_mov_b32 v21, s94")
        a("v_mov_b32 v22, s90")
        a("v_mov_b32 v23, s17")
        a("v_mov_b32 v24, s86")
        a("s_lshl_b32 s40, s6, 5")
        a("s_add_u32 s40, s40, s4")
        a("s_lshl_b32 s40, s40, 4")
        a(f"s_add_u32 s40, s40, {DBG_OFF + 0x200000}")
        a("buffer_store_dwordx4 v[20:23], off, s[8:11], s40")
        a("s_lshl_b32 s41, s6, 5")
        a("s_add_u32 s41, s41, s4")
        a("s_lshl_b32 s41, s41, 2")
        a(f"s_add_u32 s41, s41, {DBG_OFF + 0x210000}")
        a("buffer_store_dword v24, off, s[8:11], s41")
        a("s_waitcnt vmcnt(0)")
    a.label("L_end")
    a("s_endpgm")
    return a
if __name__ == "__main__":
    out = sys.argv[1]
    for x in sys.argv:
        if x.startswith("p:"):
            k, v = x[2:].split("="); rec.PARAM[k] = int(v) if v.isdigit() else v
    rec.PARAM.setdefault("pre1", 0)
    rec.OPT = set(x[4:] for x in sys.argv if x.startswith("opt:"))
    wk.OPT = set(x[5:] for x in sys.argv if x.startswith("wopt:"))
    if "pplain" in wk.OPT: wk.PSTF = ""
    if "oplain" in wk.OPT: wk.OSTF = ""
    t = Asm(); wk.w2(t); check(t.lines, "w2")
    t = Asm(); wk.w1(t); check(t.lines, "w1")
    a = build(dbg="dbg" in sys.argv, timing="timing" in sys.argv, stamps="stamps" in sys.argv)
    a.lines, st = align_pass(a.lines); print("align", st, "lines", len(a.lines))
    txt = HEADER.format(name=NAME) + a.text() + FOOTER.format(name=NAME)
    open(out, "w").write(txt)
    print("bytes", len(txt))
```

```python
from asm import *
from layout import *

IDX, A_MF, A_WQ0, A_WQ1, HI16, A_VX, A_QW, A_KW, A_TRQ, A_TRK, A_OW, G_PST = range(12)
G_PUB, V_FL = 12, 13
ZERO = 14
SV1 = 15
MF = 16
RING = 48
ACCQ, ACCK, ACCV = 104, 112, 120
WO = 128
KXF = 64
QF = (96, 100, 48, 52)
KV4 = 56
SENT = 60
PT = 116
OACC = 96
OF = 48

S_H, S_W = 4, 5
SRD_WS = 8
S_STEP = 16
S_FAIL = 17
S_CNT = 18
S_C = 20
S_ODD = 22
S_PST = 24
S_PLD = 28
S_MLD = 30
S_PUB = 32
S_KVM = 34
S_KD = 35
S_VD = 36
S_FLG = 37
S_KVMF = 38
S_SEL = 56
S_T0, S_T1, S_T2 = 41, 42, 43
S_FLG0 = 19
S_TM = 44
SRD_W = 48
SRD_DBG = 52
SPIN_MAX = 1 << 19
FAST = False
OPT = set()

C_SCALE = (128 ** -0.5) * 1.4426950408889634


def f2u(x):
    import struct
    return struct.unpack("<I", struct.pack("<f", x))[0]


def weave(a, mf, fill, per=1):
    fill = list(fill)
    for m in mf:
        a(m)
        for _ in range(per):
            if fill:
                x = fill.pop(0)
                if x is not None:
                    a(x)
    for x in fill:
        if x is not None:
            a(x)


def wq_read(phi, half):
    T, tile = phi >> 1, phi & 1
    slot = phi % 7
    r = RING + 8 * slot + 4 * half
    base = A_WQ0 if T < 4 else A_WQ1
    off = (T & 3) * 16384 + tile * 2048 + half * 1024
    return f"ds_read_b128 {V(r,4)}, {V(base)} offset:{off}"


def lane_setup(a, l):
    a(f"v_and_b32 {V(l)}, 63, v0")


def emit_spin_check(a, lab_retry, lab_done):
    a(f"s_add_u32 {S(S_CNT)}, {S(S_CNT)}, 1")
    a(f"s_cmp_lt_u32 {S(S_CNT)}, {SPIN_MAX}")
    a(f"s_cbranch_scc1 {lab_retry}")
    a(f"s_mov_b32 {S(S_FAIL)}, 1")


def poll_word(a, srd, soff_text, cond_text, vtmp, name):
    L = a.newlabel("L_pw_" + name)
    D = L + "_d"
    a(f"s_mov_b32 {S(S_CNT)}, 0")
    a.label(L)
    a(f"s_cmp_eq_u32 {S(S_FAIL)}, 1")
    a(f"s_cbranch_scc1 {D}")
    a(f"buffer_load_dword {V(vtmp)}, off, {S(srd,4)}, {soff_text} sc1")
    a("s_waitcnt vmcnt(0)")
    a(f"v_readfirstlane_b32 {S(S_T0)}, {V(vtmp)}")
    a("s_nop 3")
    a(cond_text)
    a(f"s_cbranch_scc1 {D}")
    a("s_sleep 2")
    emit_spin_check(a, L, D)
    a.label(D)


EARLY = 29
C0_TARGET = 128

def first_kv(a):
    for x in kv_dma_list(KX_O, R_O[1]): a(x)
    a(f"s_add_u32 {S(S_FLG)}, {S(S_FLG)}, 128")
    a(f"buffer_load_dword {V(V_FL)}, off, {S(SRD_WS,4)}, {S(S_FLG)} sc1")


def prologue(a, dbg=False):
    L, N, G, T1, T2, T3 = 100, 101, 102, 103, 104, 105
    a(f"s_mov_b32 {S(S_FAIL)}, 0")
    a(f"v_and_b32 {V(L)}, 63, v0")
    a(f"v_and_b32 {V(N)}, 15, {V(L)}")
    a(f"v_lshrrev_b32 {V(G)}, 4, {V(L)}")
    for i in range(4):
        a(f"v_mov_b32 {V(20+i)}, -1")
    a(f"s_lshl_b32 {S(S_T0)}, {S(S_H)}, 13")
    a(f"s_lshl_b32 {S(S_T1)}, {S(S_W)}, 11")
    a(f"s_add_u32 {S(S_T0)}, {S(S_T0)}, {S(S_T1)}")
    a(f"s_add_u32 {S(S_T0)}, {S(S_T0)}, {P_OFF}")
    a(f"s_add_u32 {S(S_T1)}, {S(S_T0)}, 262144")
    a(f"v_lshlrev_b32 {V(T1)}, 4, {V(L)}")
    for i in range(2):
        a(f"buffer_store_dwordx4 {V(20,4)}, {V(T1)}, {S(SRD_WS,4)}, {S(S_T0)} offen offset:{i*1024}")
    a(f"v_lshlrev_b32 {V(T1)}, 13, {V(G)}")
    a(f"v_lshlrev_b32 {V(T2)}, 4, {V(N)}")
    a(f"v_add_u32 {V(T1)}, {V(T1)}, {V(T2)}")
    a(f"v_mov_b32 {V(T2)}, 0x7ff00000")
    a(f"v_cmp_gt_u32 vcc, 32, {V(L)}")
    a("s_nop 1")
    a(f"v_cndmask_b32 {V(T1)}, {V(T2)}, {V(T1)}, vcc")
    a(f"s_lshl_b32 {S(S_T0)}, {S(S_H)}, 8")
    a(f"s_add_u32 {S(S_T0)}, {S(S_T0)}, {M_OFF}")
    a(f"buffer_store_dwordx4 {V(20,4)}, {V(T1)}, {S(SRD_WS,4)}, {S(S_T0)} offen")
    a("s_load_dwordx2 s[56:57], s[0:1], 8")
    a("s_load_dwordx2 s[58:59], s[0:1], 16")
    a("s_load_dwordx2 s[60:61], s[0:1], 24")
    a("s_load_dwordx2 s[62:63], s[0:1], 32")
    a("s_load_dwordx2 s[64:65], s[0:1], 40")
    a(f"v_and_b32 {V(T1)}, 3, v0")
    a(f"v_lshlrev_b32 {V(T1)}, 11, {V(T1)}")
    a(f"v_bfe_u32 {V(T2)}, v0, 2, 1")
    a(f"v_lshlrev_b32 {V(T2)}, 6, {V(T2)}")
    a(f"v_add_u32 {V(T1)}, {V(T1)}, {V(T2)}")
    a(f"v_bfe_u32 {V(T2)}, v0, 3, 4")
    a(f"v_lshlrev_b32 {V(T2)}, 1, {V(T2)}")
    a(f"v_add_u32 {V(T1)}, {V(T1)}, {V(T2)}")
    a(f"v_lshrrev_b32 {V(T2)}, 7, v0")
    a(f"v_lshlrev_b32 {V(T2)}, 7, {V(T2)}")
    a(f"v_add_u32 {V(T1)}, {V(T1)}, {V(T2)}")
    a("s_waitcnt lgkmcnt(0)")
    a(f"s_mov_b32 {S(SRD_W)}, s56")
    a(f"s_and_b32 {S(SRD_W+1)}, s57, 0xffff")
    a(f"s_mov_b32 {S(SRD_W+2)}, 8192")
    a(f"s_mov_b32 {S(SRD_W+3)}, 0x20000")
    for k in range(4):
        for e, off in enumerate((0, 32, 1024, 1024 + 32)):
            a(f"buffer_load_ushort {V(64+4*k+e)}, {V(T1)}, {S(SRD_W,4)}, 0 offen offset:{k*256+off}")
    for dst, src in ((68, 60), (72, 62), (76, 64), (80, 58)):
        a(f"s_mov_b32 {S(dst)}, {S(src)}")
        a(f"s_and_b32 {S(dst+1)}, {S(src+1)}, 0xffff")
        a(f"s_mov_b32 {S(dst+2)}, 0x400000")
        a(f"s_mov_b32 {S(dst+3)}, 0x20000")
    a(f"s_and_b32 {S(S_T0)}, {S(S_W)}, 1")
    a(f"s_lshl_b32 {S(S_T0)}, {S(S_T0)}, 3")
    a(f"v_and_b32 {V(T1)}, 1, {V(G)}")
    a(f"v_lshlrev_b32 {V(T1)}, 1, {V(T1)}")
    a(f"v_or_b32 {V(T1)}, {S(S_T0)}, {V(T1)}")
    a(f"v_xor_b32 {V(T1)}, {V(T1)}, {V(N)}")
    a(f"s_lshl_b32 {S(S_T1)}, {S(S_W)}, 4")
    a(f"s_lshl_b32 {S(S_T2)}, {S(S_H)}, 8")
    for i in range(4):
        a(f"v_xor_b32 {V(T2)}, {4*(i&1)}, {V(T1)}")
        a(f"v_lshlrev_b32 {V(T2)}, 4, {V(T2)}")
        a(f"v_add_u32 {V(T3)}, {S(S_T1)}, {V(G)}")
        a(f"v_add_u32 {V(T3)}, {4*i}, {V(T3)}")
        a(f"v_lshlrev_b32 {V(24+i)}, 13, {V(T3)}")
        a(f"v_add_u32 {V(24+i)}, {V(24+i)}, {V(T2)}")
        a(f"v_add_u32 {V(24+i)}, {S(S_T2)}, {V(24+i)}")
        a(f"v_lshlrev_b32 {V(28+i)}, 10, {V(T3)}")
        a(f"v_add_u32 {V(28+i)}, {V(28+i)}, {V(T2)}")
    a(f"v_lshrrev_b32 {V(T1)}, 2, {V(N)}")
    a(f"v_and_b32 {V(T2)}, 3, {V(N)}")
    a(f"v_lshrrev_b32 {V(T3)}, 1, {V(G)}")
    a(f"v_lshlrev_b32 {V(32)}, 5, {V(T3)}")
    a(f"v_and_b32 {V(T3)}, 1, {V(G)}")
    a(f"v_lshlrev_b32 {V(33)}, 2, {V(T3)}")
    a(f"v_add_u32 {V(32)}, {V(32)}, {V(33)}")
    a(f"v_lshrrev_b32 {V(T3)}, 1, {V(T1)}")
    a(f"v_lshlrev_b32 {V(34)}, 4, {V(T3)}")
    a(f"v_add_u32 {V(32)}, {V(32)}, {V(34)}")
    a(f"v_lshlrev_b32 {V(34)}, 3, {V(T3)}")
    a(f"v_add_u32 {V(33)}, {V(33)}, {V(34)}")
    a(f"v_and_b32 {V(T3)}, 1, {V(T1)}")
    a(f"v_add_u32 {V(32)}, {V(32)}, {V(T3)}")
    a(f"v_lshlrev_b32 {V(34)}, 1, {V(T3)}")
    a(f"v_add_u32 {V(33)}, {V(33)}, {V(34)}")
    a(f"v_lshlrev_b32 {V(32)}, 8, {V(32)}")
    a(f"v_lshlrev_b32 {V(34)}, 3, {V(T2)}")
    a(f"v_add_u32 {V(32)}, {V(32)}, {V(34)}")
    a(f"v_lshlrev_b32 {V(33)}, 4, {V(33)}")
    for fp in range(2):
        a(f"s_lshl_b32 {S(S_T0)}, {S(S_W)}, 6")
        a(f"s_add_u32 {S(S_T0)}, {S(S_T0)}, {32*fp}")
        a(f"v_xor_b32 {V(35+fp)}, {S(S_T0)}, {V(33)}")
        a(f"v_add_u32 {V(35+fp)}, {V(35+fp)}, {V(32)}")
    a(f"s_lshl_b32 {S(S_T0)}, {S(S_W)}, 12")
    a(f"v_lshlrev_b32 {V(T1)}, 4, {V(L)}")
    a(f"v_add_u32 {V(A_WQ0)}, {S(S_T0)}, {V(T1)}")
    a(f"v_add_u32 {V(A_WQ1)}, 0x10000, {V(A_WQ0)}")
    a(f"v_add_u32 {V(HI16)}, {HI}, {V(T1)}")

    def persistent_setup():
        R_, C_ = T1, T2
        a(f"v_and_b32 {V(L)}, 63, v0")
        a(f"v_lshrrev_b32 {V(R_)}, 2, {V(N)}")
        a(f"v_and_b32 {V(C_)}, 3, {V(N)}")
        a(f"v_and_b32 {V(T3)}, 1, {V(L)}")
        a(f"v_cmp_eq_u32 vcc, 1, {V(T3)}")
        a(f"v_mov_b32 {V(IDX)}, 0x44444444")
        a(f"v_mov_b32 {V(T3)}, 0xeeeeeeee")
        a(f"v_cndmask_b32 {V(IDX)}, {V(IDX)}, {V(T3)}, vcc")
        a(f"v_lshrrev_b32 {V(T3)}, 1, {V(G)}")
        a(f"v_lshlrev_b32 {V(T3)}, 3, {V(T3)}")
        a(f"v_add_u32 {V(T3)}, {V(T3)}, {V(R_)}")
        a(f"v_lshlrev_b32 {V(A_MF)}, 6, {V(T3)}")
        a(f"v_and_b32 {V(T3)}, 1, {V(G)}")
        a(f"v_lshlrev_b32 {V(T3)}, 5, {V(T3)}")
        a(f"v_add_u32 {V(A_MF)}, {V(A_MF)}, {V(T3)}")
        a(f"v_lshlrev_b32 {V(T3)}, 3, {V(C_)}")
        a(f"v_add_u32 {V(A_MF)}, {V(A_MF)}, {V(T3)}")
        a(f"v_add_u32 {V(A_MF)}, {HI}, {V(A_MF)}")
        a(f"s_lshl_b32 {S(S_T0)}, {S(S_W)}, 11")
        a(f"v_add_u32 {V(A_VX)}, {S(S_T0)}, {V(HI16)}")
        a(f"s_lshl_b32 {S(S_T0)}, {S(S_W)}, 5")
        a(f"v_add_u32 {V(T3)}, {S(S_T0)}, {V(N)}")
        a(f"v_lshlrev_b32 {V(A_QW)}, 4, {V(T3)}")
        a(f"v_lshl_add_u32 {V(A_QW)}, {V(G)}, 2, {V(A_QW)}")
        a(f"v_add_u32 {V(A_QW)}, {HI}, {V(A_QW)}")
        a(f"v_lshlrev_b32 {V(A_KW)}, 5, {V(T3)}")
        a(f"v_add_u32 {V(T3)}, {V(G)}, {V(R_)}")
        a(f"v_and_b32 {V(T3)}, 3, {V(T3)}")
        a(f"v_lshl_add_u32 {V(A_KW)}, {V(T3)}, 3, {V(A_KW)}")
        a(f"v_add_u32 {V(A_KW)}, {HI}, {V(A_KW)}")
        a(f"v_lshl_add_u32 {V(T3)}, {V(G)}, 2, {V(R_)}")
        a(f"v_lshlrev_b32 {V(A_TRQ)}, 4, {V(T3)}")
        a(f"v_lshlrev_b32 {V(A_TRK)}, 5, {V(T3)}")
        a(f"v_and_b32 {V(T3)}, 1, {V(C_)}")
        a(f"v_lshl_add_u32 {V(A_TRQ)}, {V(T3)}, 3, {V(A_TRQ)}")
        a(f"v_add_u32 {V(A_TRQ)}, {HI}, {V(A_TRQ)}")
        a(f"v_add_u32 {V(T3)}, {V(C_)}, {V(G)}")
        a(f"v_and_b32 {V(T3)}, 3, {V(T3)}")
        a(f"v_lshl_add_u32 {V(A_TRK)}, {V(T3)}, 3, {V(A_TRK)}")
        a(f"v_add_u32 {V(A_TRK)}, {HI}, {V(A_TRK)}")
        a(f"v_lshrrev_b32 {V(T3)}, 1, {V(G)}")
        a(f"v_lshlrev_b32 {V(A_OW)}, 9, {V(T3)}")
        a(f"v_and_b32 {V(T3)}, 1, {V(G)}")
        a(f"v_lshl_add_u32 {V(A_OW)}, {V(T3)}, 3, {V(A_OW)}")
        a(f"v_and_b32 {V(T3)}, 7, {V(N)}")
        a(f"v_lshl_add_u32 {V(A_OW)}, {V(T3)}, 5, {V(A_OW)}")
        a(f"v_lshrrev_b32 {V(T3)}, 3, {V(N)}")
        a(f"v_lshl_add_u32 {V(A_OW)}, {V(T3)}, 4, {V(A_OW)}")
        a(f"s_lshr_b32 {S(S_T0)}, {S(S_W)}, 1")
        a(f"s_lshl_b32 {S(S_T0)}, {S(S_T0)}, 10")
        a(f"s_and_b32 {S(S_T1)}, {S(S_W)}, 1")
        a(f"s_lshl_b32 {S(S_T1)}, {S(S_T1)}, 8")
        a(f"s_add_u32 {S(S_T0)}, {S(S_T0)}, {S(S_T1)}")
        a(f"s_add_u32 {S(S_T0)}, {S(S_T0)}, {HI + O_O}")
        a(f"v_add_u32 {V(A_OW)}, {S(S_T0)}, {V(A_OW)}")
        a(f"s_lshl_b32 {S(S_T0)}, {S(S_W)}, 3")
        a(f"v_add_u32 {V(T3)}, {S(S_T0)}, {V(R_)}")
        a(f"v_lshlrev_b32 {V(G_PST)}, 13, {V(T3)}")
        a(f"v_bfe_u32 {V(T3)}, {V(N)}, 1, 1")
        a(f"v_lshl_add_u32 {V(G_PST)}, {V(T3)}, 12, {V(G_PST)}")
        if "norot" not in OPT:
            a(f"v_lshl_add_u32 {V(T3)}, {V(R_)}, 1, {V(T3)}")
            a(f"s_add_u32 {S(S_T0)}, {S(S_T0)}, {S(S_H)}")
            a(f"v_add_u32 {V(T3)}, {S(S_T0)}, {V(T3)}")
            a(f"v_and_b32 {V(T3)}, 31, {V(T3)}")
        else:
            a(f"v_mov_b32 {V(T3)}, {S(S_H)}")
        a(f"v_lshl_add_u32 {V(G_PST)}, {V(T3)}, 7, {V(G_PST)}")
        a(f"v_and_b32 {V(T3)}, 1, {V(N)}")
        a(f"v_lshl_add_u32 {V(G_PST)}, {V(T3)}, 6, {V(G_PST)}")
        a(f"v_lshl_add_u32 {V(G_PST)}, {V(G)}, 4, {V(G_PST)}")
        a(f"v_mov_b32 {V(ZERO)}, 0")
        a(f"v_and_b32 {V(T3)}, 8, {V(L)}")
        a(f"v_cmp_ne_u32 {S(S_ODD,2)}, 0, {V(T3)}")
        a(f"s_mov_b32 {S(S_C)}, {f2u(C_SCALE):#x}")
        a(f"s_mov_b32 {S(S_C+1)}, {f2u(C_SCALE):#x}")
        for par in range(2):
            for i in range(2):
                a(f"s_mov_b32 {S(S_PST+2*par+i)}, {P_OFF + i*32768}")
            a(f"s_mov_b32 {S(S_PUB+par)}, {M_OFF + par*8192}")
        a(f"s_lshl_b32 {S(S_T0)}, {S(S_H)}, 13")
        a(f"s_and_b32 {S(S_T1)}, {S(S_W)}, 1")
        a(f"s_lshl_b32 {S(S_T1)}, {S(S_T1)}, 12")
        a(f"s_add_u32 {S(S_T0)}, {S(S_T0)}, {S(S_T1)}")
        a(f"s_add_u32 {S(S_PLD)}, {S(S_T0)}, {P_OFF - HI}")
        a(f"s_add_u32 {S(S_KD)}, {S(S_T0)}, {KF_OFF - HI}")
        a(f"s_add_u32 {S(S_VD)}, {S(S_T0)}, {VF_OFF - HI}")
        a(f"s_lshl_b32 {S(S_T2)}, {S(S_W)}, 11")
        for par in range(2):
            a(f"s_add_u32 {S(S_MLD+par)}, {S(S_T2)}, {M_OFF + par*8192 - HI}")
        a(f"s_lshl_b32 {S(S_T0)}, {S(S_H)}, 12")
        a(f"s_lshl_b32 {S(S_T2)}, {S(S_W)}, 10")
        a(f"s_add_u32 {S(S_T0)}, {S(S_T0)}, {S(S_T2)}")
        a(f"s_add_u32 {S(S_KVM)}, {S(S_T0)}, {KVM_OFF - HI}")
        a(f"s_lshl_b32 {S(S_T0)}, {S(S_H)}, 2")
        a(f"s_add_u32 {S(S_FLG)}, {S(S_T0)}, {FLAG_OFF}")
        a(f"s_add_u32 {S(S_KVMF)}, {S(S_T0)}, {KVMF_OFF}")
        a(f"s_mov_b32 {S(S_STEP)}, 0")
        a(f"v_lshrrev_b32 {V(T3)}, 1, {V(G)}")
        a(f"v_lshlrev_b32 {V(G_PUB)}, 5, {V(T3)}")
        a(f"v_lshl_add_u32 {V(G_PUB)}, {V(C_)}, 3, {V(G_PUB)}")
        a(f"v_and_b32 {V(T3)}, 1, {V(G)}")
        a(f"v_lshl_add_u32 {V(G_PUB)}, {V(T3)}, 2, {V(G_PUB)}")
        a(f"v_bfe_u32 {V(T3)}, {V(N)}, 2, 1")
        a(f"v_lshl_add_u32 {V(G_PUB)}, {V(T3)}, 6, {V(G_PUB)}")
        a(f"s_lshl_b32 {S(S_T0)}, {S(S_H)}, 8")
        a(f"s_and_b32 {S(S_T2)}, {S(S_W)}, 1")
        a(f"s_lshl_b32 {S(S_T2)}, {S(S_T2)}, 7")
        a(f"s_add_u32 {S(S_T0)}, {S(S_T0)}, {S(S_T2)}")
        a(f"v_add_u32 {V(G_PUB)}, {S(S_T0)}, {V(G_PUB)}")
        a(f"v_and_b32 {V(T3)}, 8, {V(L)}")
        a(f"v_cmp_ne_u32 vcc, 0, {V(T3)}")
        a(f"v_mov_b32 {V(T3)}, 0x7ff00000")
        a("s_nop 0")
        a(f"v_cndmask_b32 {V(G_PUB)}, {V(G_PUB)}, {V(T3)}, vcc")
        a(f"v_bfe_u32 {V(T3)}, {V(N)}, 2, 1")
        a(f"v_lshlrev_b32 {V(T3)}, 4, {V(T3)}")
        a(f"v_mov_b32 {V(SV1)}, 0x3f80")
        a(f"v_lshlrev_b32 {V(SV1)}, {V(T3)}, {V(SV1)}")
        a(f"v_lshrrev_b32 {V(T3)}, 3, {V(N)}")
        a(f"v_lshlrev_b32 {V(T3)}, 1, {V(T3)}")
        a(f"v_and_b32 {V(106)}, 3, {V(N)}")
        a(f"v_add_u32 {V(T3)}, {V(T3)}, {V(106)}")
        a(f"v_bfe_u32 {V(106)}, {V(N)}, 1, 1")
        a(f"v_lshlrev_b32 {V(106)}, 4, {V(106)}")
        a(f"v_add_u32 {V(T3)}, {V(T3)}, {V(106)}")
        for rho in range(4):
            a(f"v_cmp_eq_u32 {S(S_SEL+2*rho,2)}, {rho}, {V(T3)}")

    def dma_chunk(i):
        slot = i & 7
        mat, j = i >> 3, i & 7
        for k in range(4):
            a(f"s_lshl_b32 {S(S_T0)}, {S(S_W)}, 12")
            a(f"s_add_u32 m0, {S(S_T0)}, {slot*16384 + k*1024}")
            if mat == 2:
                a(f"s_lshl_b32 {S(S_T1)}, {S(S_H)}, 17")
                a(f"s_add_u32 {S(S_T1)}, {S(S_T1)}, {(j>>2)*65536 + (j&3)*256}")
                a(f"buffer_load_dwordx4 {V(28+k)}, {S(76,4)}, {S(S_T1)} offen lds")
            else:
                srd = {0: 68, 1: 72, 3: 80}[mat]
                a(f"s_mov_b32 {S(S_T1)}, {j*524288}")
                a(f"buffer_load_dwordx4 {V(24+k)}, {S(srd,4)}, {S(S_T1)} offen lds")

    a(f"v_lshlrev_b32 {V(107)}, 3, v0")
    a(f"v_add_u32 {V(107)}, {HI + R_O[0]}, {V(107)}")
    for i in range(8):
        dma_chunk(i)
    persistent_setup()
    S_DONE, S_TOK = 72, 73
    for i in range(32):
        slot = i & 7
        mat, j = i >> 3, i & 7
        later = min(i + 7, 31) - i
        a(f"s_waitcnt vmcnt({4*later})")
        a("s_barrier")
        if i == 0:
            Ls = a.newlabel("L_arr")
            a(f"s_cmp_eq_u32 {S(S_W)}, 0")
            a(f"s_cbranch_scc0 {Ls}")
            a(f"v_mov_b32 {V(T1)}, 1")
            a(f"s_mov_b64 exec, 1")
            a(f"s_mov_b32 {S(S_T0)}, 36")
            a(f"buffer_atomic_add {V(T1)}, off, {S(SRD_DBG,4)}, {S(S_T0)} sc1")
            a(f"s_mov_b64 exec, -1")
            a.label(Ls)
            for k in range(4):
                a(f"v_lshl_or_b32 {V(64+4*k)}, {V(65+4*k)}, 16, {V(64+4*k)}")
                a(f"v_lshl_or_b32 {V(65+4*k)}, {V(67+4*k)}, 16, {V(66+4*k)}")
                a(f"ds_write_b64 {V(107)}, {V(64+4*k,2)} offset:{k*2048}")
        if mat != 2:
            for fp in range(2):
                a(f"v_add_u32 {V(37+fp)}, {slot*16384}, {V(35+fp)}")
            for fp in range(2):
                for q in range(4):
                    off = (8 * (q >> 1) + 2 * (q & 1)) * 256
                    if mat == 0: dst = A((fp * 8 + j) * 8 + 2 * q, 2)
                    elif mat == 1: dst = A(128 + (fp * 8 + j) * 8 + 2 * q, 2)
                    else: dst = V(40 + 8 * fp + 2 * q, 2)
                    a(f"ds_read_b64_tr_b16 {dst}, {V(37+fp)} offset:{off}")
        else:
            Ls = a.newlabel("L_wo")
            T, wp = j >> 2, j & 3
            a(f"s_cmp_eq_u32 {S(S_W)}, {wp}")
            a(f"s_cbranch_scc0 {Ls}")
            for tau in range(8):
                a(f"v_xor_b32 {V(37)}, {32*tau}, {V(33)}")
                a(f"v_add_u32 {V(37)}, {V(37)}, {V(32)}")
                a(f"v_add_u32 {V(37)}, {slot*16384}, {V(37)}")
                for q in range(4):
                    off = (8 * (q >> 1) + 2 * (q & 1)) * 256
                    a(f"ds_read_b64_tr_b16 {V(WO + (tau*2+T)*8 + 2*q, 2)}, {V(37)} offset:{off}")
                if tau & 1:
                    a("s_waitcnt lgkmcnt(0)")
            a.label(Ls)
        a("s_waitcnt lgkmcnt(0)")
        a("s_barrier")
        if i == EARLY - 3:
            a(f"s_mov_b32 {S(S_T0)}, 32")
            a(f"buffer_load_dwordx4 {V(108,4)}, off, {S(SRD_DBG,4)}, {S(S_T0)} sc1")
        if i == EARLY:
            Le = a.newlabel("L_early")
            a("s_waitcnt vmcnt(0)")
            for k in range(3): a(f"v_readfirstlane_b32 s{68+k}, {V(108+k)}")
            a("s_nop 3")
            a(f"s_cmp_ge_u32 s69, 32")
            a(f"s_cselect_b32 {S(S_TOK)}, 1, 0")
            a(f"s_mov_b32 {S(S_DONE)}, 0")
            a(f"s_cmp_lt_u32 {S(S_W)}, 2")
            a(f"s_cbranch_scc1 {Le}")
            a(f"s_cmp_lt_u32 s68, {C0_TARGET}")
            a(f"s_cbranch_scc1 {Le}")
            a(f"s_lshr_b32 s70, s70, {S(S_H)}")
            a(f"s_bitcmp1_b32 s70, 0")
            a(f"s_cbranch_scc0 {Le}")
            first_kv(a)
            a(f"s_mov_b32 {S(S_DONE)}, 1")
            a.label(Le)
        if mat == 3:
            base = A_WQ0 if j < 4 else A_WQ1
            for fp in range(2):
                for half in range(2):
                    a(f"ds_write_b128 {V(base)}, {V(40+8*fp+4*half,4)} offset:{(j&3)*16384 + fp*2048 + half*1024}")
            a("s_waitcnt lgkmcnt(0)")
        if i + 8 < 32:
            dma_chunk(i + 8)

    Lp = a.newlabel("L_nof")
    a(f"s_cmp_lt_u32 {S(S_W)}, 2")
    a(f"s_cbranch_scc1 {Lp}")
    a(f"s_cmp_eq_u32 {S(S_DONE)}, 1")
    a(f"s_cbranch_scc1 {Lp}")
    poll_word(a, SRD_DBG, "32", f"s_cmp_ge_u32 {S(S_T0)}, {C0_TARGET}", T3, "c0")
    poll_word(a, SRD_WS, S(S_FLG), f"s_cmp_eq_u32 {S(S_T0)}, 1", T3, "kv0")
    first_kv(a)
    a.label(Lp)
    Lt = a.newlabel("L_tok")
    a(f"s_cmp_eq_u32 {S(S_TOK)}, 1")
    a(f"s_cbranch_scc1 {Lt}")
    poll_word(a, SRD_DBG, "36", f"s_cmp_ge_u32 {S(S_T0)}, 32", T3, "team")
    a.label(Lt)
    a("s_barrier")
    emit_idle_prep(a)
    a("s_waitcnt vmcnt(0) lgkmcnt(0)")


PARAM = dict(pre1=0, pre2=0)
ZT = (MF + 24, MF + 25)

def dma_list(lds_off, sreg):
    out = [f"s_and_b32 {S(S_T1)}, {S(S_W)}, 1",
           f"s_lshl_b32 {S(S_T1)}, {S(S_T1)}, 12",
           f"s_add_u32 m0, {S(S_T1)}, {HI + lds_off}",
           "s_nop 0"]
    for i in range(4):
        out.append(f"buffer_load_dwordx4 {V(HI16)}, {S(SRD_WS,4)}, {S(sreg)} offen offset:{i*1024} {PARAM.get('dmaf','')} lds")
    out.append(f"s_add_u32 {S(sreg)}, {S(sreg)}, 262144")
    return out

def kv_dma_list(kx_off, vx_off):
    return dma_list(kx_off, S_KD) + dma_list(vx_off, S_VD)


def idle_prep_list():
    out = []
    for phi in range(7):
        for half in range(2):
            out.append(wq_read(phi, half))
    for r in range(ACCQ, ACCV, 2):
        out.append(f"v_mov_b64 {V(r,2)}, 0")
    return out

def emit_idle_prep(a):
    for x in idle_prep_list(): a(x)


TS = 64
TACC = 84
def stamp(a, k, timing):
    if timing: a(f"s_memtime {S(TS+2*k,2)}")
    if timing and "trace" in OPT and k == 6: a(f"s_memrealtime {S(TS+14,2)}")
def stamp_acc(a, n, timing):
    if not timing: return
    for k in range(n - 1):
        a(f"s_sub_u32 {S(S_T0)}, {S(TS+2*(k+1))}, {S(TS+2*k)}")
        a(f"s_add_u32 {S(TACC+k)}, {S(TACC+k)}, {S(S_T0)}")


def smf(d, aa, b):
    return f"v_smfmac_f32_16x16x64_bf16 {V(d,4)}, {V(aa,4)}, {b}, {V(IDX)}"

def delay(a, cyc):
    n = cyc // 64
    for _ in range(n): a("s_nop 15")
    r = (cyc % 64) // 4
    if r: a(f"s_nop {r-1}")


def step(a, par, role, dbg=False, timing=False):
    P = role == "P"
    MR, VR = R_O[par], R_O[par ^ 1]
    LEND = a.newlabel("L_stepend")
    def tp(k):
        if f"trunc{k}" in OPT:
            if par == 1:
                a(f"s_cmp_eq_u32 {S(S_STEP)}, 63")
                a(f"s_cbranch_scc1 L_rec_fin")
            a(f"s_branch {LEND}")
    for T in range(8):
        for hf in range(2):
            a(f"ds_read_b64_tr_b16 {V(MF+4*T+2*hf,2)}, {V(A_MF)} offset:{MR + T*1024 + hf*256}")
    tp(0)
    order = []
    for T in range(8):
        if T < 7:
            order += [("q", 0, T), ("k", 0, T), ("q", 1, T), ("k", 1, T)]
        else:
            order += [("q", 0, T), ("q", 1, T), ("k", 0, T), ("k", 1, T)]
    mf = []
    for kind, tile, T in order:
        if kind == "q":
            mf.append(smf(ACCQ + 4 * tile, MF + 4 * T, V(RING + 8 * ((2 * T + tile) % 7), 8)))
        else:
            mf.append(smf(ACCK + 4 * tile, MF + 4 * T, A((tile * 8 + T) * 8, 8)))
    qpos = {2 * T + tile: mu for mu, (kind, tile, T) in enumerate(order) if kind == "q"}
    fillers = {}
    for phi in range(9):
        mu = qpos[phi]
        fillers[mu] = (wq_read(phi + 7, 0), ("wq", phi + 7))
        fillers[mu + 1] = (wq_read(phi + 7, 1), ("wq", phi + 7))
    kx = [(u, tt) for u in range(4) for tt in range(2)]
    for n_, (u, tt) in enumerate(kx):
        mu = qpos[9 + (n_ >> 1)] + (n_ & 1)
        fillers[mu] = (f"ds_read_b128 {V(KXF + 4*(2*u+tt), 4)}, {V(HI16)} offset:{KX_O + (tt*4+u)*1024}", ("kx", n_))
    tags = [("mf", T) for T in range(8) for _ in range(2)]
    waited = -1
    BM = PARAM.get("bm", 8)
    vx = []
    fx = (not P) and "nofx" not in OPT
    def early_extras():
        if fx:
            Lok = a.newlabel("L_kvok")
            a(f"v_readfirstlane_b32 {S(S_T0)}, {V(V_FL)}")
            a(mf[2]);
            if 2 in fillers:
                a(fillers[2][0]); tags.append(fillers[2][1])
            a(f"s_cmp_eq_u32 {S(S_T0)}, 1")
            a(f"s_cbranch_scc1 {Lok}")
            if not FAST:
                poll_word(a, SRD_WS, S(S_FLG), f"s_cmp_eq_u32 {S(S_T0)}, 1", V_FL, "kv")
            a.label(Lok)
            return True
        if P and "nokvm" not in OPT:
            Ls = a.newlabel("L_kvmf")
            a(f"s_cmp_eq_u32 {S(S_KVMF+1)}, 0")
            a(f"s_cbranch_scc1 {Ls}")
            a(f"buffer_store_dword {V(IDX)}, off, {S(SRD_WS,4)}, {S(S_KVMF)} sc1")
            a(f"s_add_u32 {S(S_KVMF)}, {S(S_KVMF)}, 128")
            a.label(Ls)
            a(f"s_mov_b32 {S(S_KVMF+1)}, {S(S_KVMF+2)}")
        return False
    if fx: vx = dma_list(MR, S_VD)
    for mu, (kind, tile, T) in enumerate(order):
        if mu == 2:
            if early_extras(): continue
        if mu == BM:
            n_after = min(len(tags) - 16, 15)
            a(f"s_waitcnt lgkmcnt({n_after})")
            waited = max(waited, len(tags) - 1 - n_after)
            a("s_barrier")
        need = [("mf", T)]
        if kind == "q" and 2 * T + tile >= 7: need.append(("wq", 2 * T + tile))
        idxs = [k for k, tg in enumerate(tags) if tg in need]
        last = max(idxs)
        if last > waited:
            n_after = min(len(tags) - 1 - last, 15)
            a(f"s_waitcnt lgkmcnt({n_after})")
            waited = len(tags) - 1 - n_after
        a(mf[mu])
        if mu in fillers:
            a(fillers[mu][0]); tags.append(fillers[mu][1])
        if mu == 1:
            a("s_waitcnt vmcnt(0)")
        if 3 <= mu <= 6: a(f"v_mov_b64 {V(ACCV + 2*(mu-3), 2)}, 0")
        if mu == 30: a(f"v_add_f32 {V(ACCQ)}, {V(ACCQ)}, {V(ACCQ+1)}")
        if mu == 31: a(f"v_add_f32 {V(ACCQ+2)}, {V(ACCQ+2)}, {V(ACCQ+3)}")
        if mu >= BM and vx and (mu - BM) % PARAM.get("vsp", 4) == 0:
            while vx:
                x = vx.pop(0); a(x)
                if x.startswith("buffer"): break
    for x in vx: a(x)
    if par == 1 and "nolast" not in OPT:
        a(f"s_cmp_eq_u32 {S(S_STEP)}, 63")
        a(f"s_cbranch_scc1 L_rec_last")
    tp(1)
    vm = []
    for T in range(8):
        for tile in range(2):
            vm.append(smf(ACCV + 4 * tile, MF + 4 * T, A(128 + (tile * 8 + T) * 8, 8)))
    def vmf(n=1):
        for _ in range(n):
            if vm: a(vm.pop(0))
    a(f"v_add_f32 {V(ACCQ+4)}, {V(ACCQ+4)}, {V(ACCQ+5)}")
    a(f"v_add_f32 {V(ACCQ+6)}, {V(ACCQ+6)}, {V(ACCQ+7)}")
    for tile in range(2):
        a(f"v_cvt_pk_bf16_f32 {V(ACCQ+4*tile+1)}, {V(ACCQ+4*tile)}, {V(ACCQ+4*tile+2)}")
    a(f"ds_write_b32 {V(A_QW)}, {V(ACCQ+1)} offset:{QT_O}")
    a(f"ds_write_b32 {V(A_QW)}, {V(ACCQ+5)} offset:{QT_O+256}")
    for tile in range(2):
        a(f"v_add_f32 {V(ACCK+4*tile)}, {V(ACCK+4*tile)}, {V(ACCK+4*tile+1)}")
        a(f"v_add_f32 {V(ACCK+4*tile+2)}, {V(ACCK+4*tile+2)}, {V(ACCK+4*tile+3)}")
    for tile in range(2):
        a(f"v_cvt_pk_bf16_f32 {V(KV4+tile)}, {V(ACCK+4*tile)}, {V(ACCK+4*tile+2)}")
    a(f"ds_write_b32 {V(A_KW)}, {V(KV4)} offset:{KT_O}")
    a(f"ds_write_b32 {V(A_KW)}, {V(KV4+1)} offset:{KT_O+512}")
    vmf(PARAM.get("v1", 3))
    stamp(a, 1, timing)
    a("s_waitcnt lgkmcnt(0)")
    tp(2)
    a("s_barrier")
    KM = (SENT, PT, KXF, KXF + 8)
    lds = []
    for u in range(4):
        for f in range(2):
            a(f"ds_read_b64_tr_b16 {V(QF[u]+2*f,2)}, {V(A_TRQ)} offset:{QT_O + u*512 + f*256}")
        lds += [("q", u)] * 2
        if u < 2:
            for f in range(2):
                a(f"ds_read_b64_tr_b16 {V(KM[u]+2*f,2)}, {V(A_TRK)} offset:{KT_O + u*1024 + f*512}")
            lds += [("km", u)] * 2
    ex = []
    if fx:
        ex = dma_list(KX_O, S_KD) + [f"s_min_u32 {S(S_T0)}, {S(S_STEP)}, 61", f"s_add_u32 {S(S_T0)}, {S(S_T0)}, 2",
                       f"s_lshl_b32 {S(S_T0)}, {S(S_T0)}, 7", f"s_add_u32 {S(S_FLG)}, {S(S_T0)}, {S(S_FLG0)}",
                       f"buffer_load_dword {V(V_FL)}, off, {S(SRD_WS,4)}, {S(S_FLG)} sc1"]
    def exf():
        while ex:
            x = ex.pop(0); a(x)
            if x.startswith("buffer"): break
    vmf(PARAM.get("v2", 1))
    exf()
    ST0, ST1, SM = ACCQ, ACCQ + 4, ACCK
    VXF = (76, 84)
    seq = [("t0", 0), ("t1", 0), ("m", 0), ("t0", 1), ("t1", 1), ("m", 1), ("t0", 2), ("t1", 2), ("t0", 3), ("t1", 3), ("m", 2), ("m", 3)]
    waited = -1
    for n_, (kind, u) in enumerate(seq):
        need = [("q", u)] + ([("km", u)] if kind == "m" else [])
        last = max(k for k, tg in enumerate(lds) if tg in need)
        if last > waited:
            n_after = len(lds) - 1 - last
            a(f"s_waitcnt lgkmcnt({n_after})")
            waited = last
        if kind == "t0":
            a(f"v_mfma_f32_16x16x32_bf16 {V(ST0,4)}, {V(KXF+8*u,4)}, {V(QF[u],4)}, {'0' if u == 0 else V(ST0,4)}")
        elif kind == "t1":
            a(f"v_mfma_f32_16x16x32_bf16 {V(ST1,4)}, {V(KXF+8*u+4,4)}, {V(QF[u],4)}, {'0' if u == 0 else V(ST1,4)}")
            if u < 2:
                for f in range(2):
                    a(f"ds_read_b64_tr_b16 {V(KM[u+2]+2*f,2)}, {V(A_TRK)} offset:{KT_O + (u+2)*1024 + f*512}")
                lds += [("km", u + 2)] * 2
            if u == 2:
                for f in range(2):
                    a(f"ds_read_b128 {V(VXF[f],4)}, {V(A_VX)} offset:{VR + f*1024}")
                lds += [("vx", 0)] * 2
        else:
            a(f"v_mfma_f32_16x16x32_bf16 {V(SM,4)}, {V(KM[u],4)}, {V(QF[u],4)}, {'0' if u == 0 else V(SM,4)}")
        if n_ % 2 == 1: exf()
    while ex: exf()
    tp(3)
    MX, MX2, LS, LS2 = 68, 69, 70, 71
    SV = [ST0, ST0+1, ST0+2, ST0+3, ST1, ST1+1, ST1+2, ST1+3, SM, SM+1]
    SN = 92
    a(f"v_max3_f32 {V(MX)}, {V(SV[0])}, {V(SV[1])}, {V(SV[2])}")
    a(f"v_max3_f32 {V(MX2)}, {V(SV[3])}, {V(SV[4])}, {V(SV[5])}")
    a(f"v_max3_f32 {V(MX)}, {V(MX)}, {V(SV[6])}, {V(SV[7])}")
    vmf(1)
    a("s_nop 1")
    if P and "nohop" not in OPT:
        a(f"v_mov_b32 {V(SN)}, -1")
        a(f"buffer_store_dword {V(SN)}, {V(G_PUB)}, {S(SRD_WS,4)}, {S(S_PUB+par)} offen")
    else:
        a("s_nop 1")
    a(f"v_max3_f32 {V(MX2)}, {V(MX2)}, {V(SV[8])}, {V(SV[9])}")
    a(f"v_max_f32 {V(LS)}, {V(MX)}, {V(MX2)}")
    a(f"v_max_f32 {V(MX)}, {V(MX)}, {V(MX2)}")
    vmf(1)
    a("s_nop 0")
    a(f"v_permlane32_swap_b32 {V(MX)}, {V(LS)}")
    a(f"v_max_f32 {V(MX2)}, {V(MX)}, {V(LS)}")
    a(f"v_max_f32 {V(MX)}, {V(MX)}, {V(LS)}")
    vmf(1)
    a("s_nop 0")
    a(f"v_permlane16_swap_b32 {V(MX)}, {V(MX2)}")
    a(f"v_max_f32 {V(MX)}, {V(MX)}, {V(MX2)}")
    a(f"v_mul_f32 {V(MX)}, {S(S_C)}, {V(MX)}")
    nv = len(vm)
    pos = set(PARAM.get("vpos", (1, 3, 5, 7, 9, 11, 13, 15, 16, 17)))
    seq2 = [f"v_fma_f32 {V(SV[k])}, {V(SV[k])}, {S(S_C)}, -{V(MX)}" for k in range(10)] + [f"v_exp_f32 {V(SV[k])}, {V(SV[k])}" for k in range(8)]
    for k, x in enumerate(seq2):
        a(x)
        if k in pos: vmf(1)
    vmf(16)
    tp(4)
    PM0, PM1 = 114, 64
    PTt = 72
    for k in range(4):
        a(f"v_cvt_pk_bf16_f32 {V(PTt+k)}, {V(SV[2*k])}, {V(SV[2*k+1])}")
    a(f"v_exp_f32 {V(SV[8])}, {V(SV[8])}")
    a("s_waitcnt lgkmcnt(0)")
    stamp(a, 2, timing)
    if timing: a("s_waitcnt lgkmcnt(0)")
    a(f"v_mfma_f32_16x16x32_bf16 {V(OACC,4)}, {V(VXF[0],4)}, {V(PTt,4)}, 0")
    a(f"v_exp_f32 {V(SV[9])}, {V(SV[9])}")
    a(f"v_mfma_f32_16x16x32_bf16 {V(OACC+4,4)}, {V(VXF[1],4)}, {V(PTt,4)}, 0")
    for tile in range(2):
        a(f"v_add_f32 {V(ACCV+4*tile)}, {V(ACCV+4*tile)}, {V(ACCV+4*tile+1)}")
        a(f"v_add_f32 {V(ACCV+4*tile+2)}, {V(ACCV+4*tile+2)}, {V(ACCV+4*tile+3)}")
    a(f"v_cvt_pk_bf16_f32 {V(PM0)}, {V(SV[8])}, {V(SV[9])}")
    a(f"v_cvt_pk_bf16_f32 {V(PM1+1)}, {V(SV[8])}, {V(SV[9])}")
    for tile in range(2):
        a(f"v_cvt_pk_bf16_f32 {V(KV4+2+tile)}, {V(ACCV+4*tile)}, {V(ACCV+4*tile+2)}")
    a(f"v_mov_b32 {V(PM0+1)}, 0")
    a(f"v_mov_b32 {V(PM1)}, 0")
    a(f"v_add_f32 {V(SV[0])}, {V(SV[0])}, {V(SV[1])}")
    a(f"v_add_f32 {V(SV[2])}, {V(SV[2])}, {V(SV[3])}")
    a(f"v_mfma_f32_16x16x16_bf16 {V(OACC,4)}, {V(KV4+2,2)}, {V(PM0,2)}, {V(OACC,4)}")
    a(f"v_add_f32 {V(SV[4])}, {V(SV[4])}, {V(SV[5])}")
    a(f"v_add_f32 {V(SV[6])}, {V(SV[6])}, {V(SV[7])}")
    a(f"v_mfma_f32_16x16x16_bf16 {V(OACC+4,4)}, {V(KV4+2,2)}, {V(PM1,2)}, {V(OACC+4,4)}")
    a(f"v_add_f32 {V(SV[8])}, {V(SV[8])}, {V(SV[9])}")
    a(f"v_add_f32 {V(SV[0])}, {V(SV[0])}, {V(SV[2])}")
    a(f"v_mfma_f32_32x32x1_2b_f32 {V(MF,32)}, {V(ZERO)}, {V(ZERO)}, 0")
    if "nokvm" not in OPT:
        a(f"buffer_store_dwordx4 {V(KV4,4)}, {V(HI16)}, {S(SRD_WS,4)}, {S(S_KVM)} offen sc1")
    if par == 1:
        a(f"s_cmp_eq_u32 {S(S_STEP)}, 63")
        a(f"s_cbranch_scc1 L_rec_fin")
    tp(5)
    a(f"v_add_f32 {V(SV[4])}, {V(SV[4])}, {V(SV[6])}")
    a(f"v_add_f32 {V(SV[0])}, {V(SV[0])}, {V(SV[8])}")
    a(f"v_add_f32 {V(LS)}, {V(SV[0])}, {V(SV[4])}")
    a(f"v_add_f32 {V(LS2)}, {V(SV[0])}, {V(SV[4])}")
    a(f"s_add_u32 {S(S_KVM)}, {S(S_KVM)}, 131072")
    a("s_nop 0")
    a(f"v_permlane32_swap_b32 {V(LS)}, {V(LS2)}")
    a(f"v_add_f32 {V(MX)}, {V(LS)}, {V(LS2)}")
    a(f"v_add_f32 {V(LS)}, {V(LS)}, {V(LS2)}")
    a("s_nop 1")
    a(f"v_permlane16_swap_b32 {V(LS)}, {V(MX)}")
    a(f"v_add_f32 {V(LS)}, {V(LS)}, {V(MX)}")
    a(f"v_rcp_f32 {V(LS)}, {V(LS)}")
    for r in range(4):
        a(f"v_cndmask_b32 {V(OACC+r)}, {V(OACC+r)}, {V(OACC+4+r)}, {S(S_ODD,2)}")
    for r in range(4):
        a(f"v_mul_f32 {V(OACC+r)}, {V(OACC+r)}, {V(LS)}")
    a(f"v_cvt_pk_bf16_f32 {V(OACC)}, {V(OACC)}, {V(OACC+1)}")
    a(f"v_cvt_pk_bf16_f32 {V(OACC+1)}, {V(OACC+2)}, {V(OACC+3)}")
    a(f"ds_write_b64 {V(A_OW)}, {V(OACC,2)}")
    stamp(a, 3, timing)
    if P and "nohop" not in OPT:
        a(f"s_waitcnt vmcnt({0 if 'nokvm' in OPT else 1}) lgkmcnt(0)")
    else:
        a("s_waitcnt lgkmcnt(0)")
    tp(6)
    a("s_barrier")
    for T in range(2):
        a(f"ds_read_b128 {V(OF+4*T,4)}, {V(HI16)} offset:{O_O + T*1024}")
    a("s_waitcnt lgkmcnt(0)")
    tp(7)
    PK = ACCQ
    mf = []
    for tau in range(8):
        for T in range(2):
            mf.append(smf(MF + 4 * tau, OF + 4 * T, V(WO + (tau * 2 + T) * 8, 8)))
    def post(tau):
        d = MF + 4 * tau
        r = [f"v_add_f32 {V(d)}, {V(d)}, {V(d+1)}",
             f"v_add_f32 {V(d+2)}, {V(d+2)}, {V(d+3)}",
             f"v_cvt_pk_bf16_f32 {V(PK+tau)}, {V(d)}, {V(d+2)}"]
        if tau % 4 == 0:
            r.append(f"v_or_b32 {V(PK+tau)}, 1, {V(PK+tau)}" if par else f"v_and_b32 {V(PK+tau)}, -2, {V(PK+tau)}")
        return r
    fl = []
    st = [f"buffer_store_dwordx4 {V(PK,4)}, {V(G_PST)}, {S(SRD_WS,4)}, {S(S_PST)} offen",
          f"buffer_store_dwordx4 {V(PK+4,4)}, {V(G_PST)}, {S(SRD_WS,4)}, {S(S_PST+1)} offen"]
    popped = 0
    for mu in range(16):
        a(mf[mu])
        if mu >= 3 and (mu - 3) % 2 == 0:
            fl += post((mu - 3) // 2)
        k = 2 if (mu >= 4 and mu % 2 == 0) else 1
        for _ in range(k):
            if fl:
                a(fl.pop(0)); popped += 1
                if popped == 13: a(st[0])
    while fl:
        a(fl.pop(0)); popped += 1
        if popped == 13: a(st[0])
    a("s_nop 3")
    for x in post(7): a(x)
    if "wo_nost" in OPT: st[1] = "s_nop 0"
    a(st[1])
    stamp(a, 4, timing)
    a.label(LEND)
    if "nohop" in OPT:
        emit_idle_prep(a)
        stamp(a, 5, timing); stamp(a, 6, timing)
        a("s_waitcnt lgkmcnt(0)" if "novm" in OPT else "s_waitcnt vmcnt(0) lgkmcnt(0)")
    else:
        ip = idle_prep_list()
        if P:
            hop1(a, par, ip[:14], timing)
            if timing: a(f"s_add_u32 {S(TACC+6)}, {S(TACC+6)}, {S(S_CNT)}")
            stamp(a, 5, timing)
            if dbg:
                a(f"s_lshl_b32 {S(S_T0)}, {S(S_STEP)}, 13")
                a(f"s_add_u32 {S(S_T0)}, {S(S_T0)}, {DBG_OFF}")
                a(f"buffer_store_dword {V(ACCQ)}, {V(G_PUB)}, {S(SRD_WS,4)}, {S(S_T0)} offen")
            if "bh" in OPT:
                a("s_barrier")
            else:
                a(f"v_mov_b32 {V(ACCK)}, {S(S_STEP)}")
                a(f"ds_write_b32 {V(HI16)}, {V(ACCK)} offset:{O_O}")
        else:
            for x in ip[:14]: a(x)
            stamp(a, 5, timing)
            if "bh" in OPT:
                a("s_barrier")
            else:
                Lh = a.newlabel("L_hint"); Lhd = Lh + "_d"
                a(f"s_mov_b32 {S(S_CNT)}, 0")
                a.label(Lh)
                a(f"ds_read_b32 {V(ACCK)}, {V(HI16)} offset:{O_O}")
                a("s_waitcnt lgkmcnt(0)")
                a(f"v_readfirstlane_b32 {S(S_T0)}, {V(ACCK)}")
                a(f"s_add_u32 {S(S_CNT)}, {S(S_CNT)}, 1")
                a(f"s_cmp_eq_u32 {S(S_T0)}, {S(S_STEP)}")
                a(f"s_cbranch_scc1 {Lhd}")
                a(f"s_cmp_lt_u32 {S(S_CNT)}, {4096}")
                a(f"s_cbranch_scc1 {Lh}")
                a.label(Lhd)
        hop2(a, par, VR, ip[14:])
        if timing: a(f"s_add_u32 {S(TACC+7)}, {S(TACC+7)}, {S(S_CNT)}")
        stamp(a, 6, timing)
        a("s_waitcnt lgkmcnt(0)")
    stamp_acc(a, 7, timing)
    if timing and "trace" in OPT:
        for k in range(7): a(f"v_mov_b32 {V(MF+16+k)}, {S(TS+2*k)}")
        a(f"v_mov_b32 {V(MF+23)}, {S(TS+14)}")
        a(f"s_lshl_b32 {S(S_T0)}, {S(S_STEP)}, 5")
        a(f"s_add_u32 {S(S_T0)}, {S(S_T0)}, {S(S_H)}")
        a(f"s_lshl_b32 {S(S_T0)}, {S(S_T0)}, 2")
        a(f"s_add_u32 {S(S_T0)}, {S(S_T0)}, {S(S_W)}")
        a(f"s_lshl_b32 {S(S_T0)}, {S(S_T0)}, 5")
        a(f"s_add_u32 {S(S_T0)}, {S(S_T0)}, {DBG_OFF + 0x300000}")
        a(f"buffer_store_dwordx4 {V(MF+16,4)}, off, {S(SRD_WS,4)}, {S(S_T0)}")
        a(f"buffer_store_dwordx4 {V(MF+20,4)}, off, {S(SRD_WS,4)}, {S(S_T0)} offset:16")
        a("s_nop 1")
    if timing:
        a(f"s_mov_b32 {S(TS)}, {S(TS+12)}")
    a(f"s_add_u32 {S(S_STEP)}, {S(S_STEP)}, 1")
    a("s_barrier")


def hop1(a, par, pre, timing, shadow=()):
    XS = (MF, MF + 16)
    RA = ACCQ
    SEL = ACCQ + 4
    t0 = ACCK
    two = "poll1" not in OPT
    for x in pre: a(x)
    for rr in range(4):
        a(f"v_cndmask_b32 {V(SEL+rr)}, {V(ZERO)}, {V(SV1)}, {S(S_SEL+2*rr,2)}")
    delay(a, PARAM["pre1"])
    L = a.newlabel("L_h1"); D = L + "_d"; RT = L + "_r"
    def issue(X):
        for i in range(4):
            a(f"buffer_load_dwordx4 {V(X+4*i,4)}, {V(HI16)}, {S(SRD_WS,4)}, {S(S_PLD)} offen offset:{i*1024} sc1")
    def consume(X, n):
        a(f"s_waitcnt vmcnt({n})")
        a("s_mov_b64 exec, -1")
        if par == 0:
            a(f"v_or3_b32 {V(t0)}, {V(X)}, {V(X+4)}, {V(X+8)}")
        else:
            a(f"v_bitop3_b32 {V(t0)}, {V(X)}, {V(X+4)}, {V(X+8)} bitop3:0x80")
        a(f"v_mfma_f32_16x16x32_bf16 {V(RA,4)}, {V(SEL,4)}, {V(X,4)}, 0")
        a(f"v_or_b32 {V(t0)}, {V(t0)}, {V(X+12)}" if par == 0 else f"v_and_b32 {V(t0)}, {V(t0)}, {V(X+12)}")
        a(f"v_mfma_f32_16x16x32_bf16 {V(RA,4)}, {V(SEL,4)}, {V(X+4,4)}, {V(RA,4)}")
        a(f"v_and_b32 {V(t0)}, 1, {V(t0)}")
        a(f"v_mfma_f32_16x16x32_bf16 {V(RA,4)}, {V(SEL,4)}, {V(X+8,4)}, {V(RA,4)}")
        a(f"v_cmp_ne_u32 vcc, {par}, {V(t0)}")
        a(f"v_mfma_f32_16x16x32_bf16 {V(RA,4)}, {V(SEL,4)}, {V(X+12,4)}, {V(RA,4)}")
        a(f"s_cbranch_vccz {D}")
    a(f"s_mov_b32 {S(S_CNT)}, 0")
    issue(XS[0])
    if two:
        delay(a, PARAM.get("d1", 64))
        issue(XS[1])
    a.label(RT)
    consume(XS[0], 4 if two else 0)
    if not FAST:
        a(f"s_cmp_eq_u32 {S(S_FAIL)}, 1")
        a(f"s_cbranch_scc1 {D}")
        a("s_mov_b64 exec, vcc")
        issue(XS[0])
        if two:
            consume(XS[1], 4)
            a("s_mov_b64 exec, vcc")
            issue(XS[1])
        emit_spin_check(a, RT, D)
        a("s_waitcnt vmcnt(0)")
        a("s_mov_b64 exec, -1")
    a.label(D)
    a("s_nop 6")
    for r in range(2):
        a(f"v_add_f32_dpp {V(RA+r)}, {V(RA+r)}, {V(RA+r)} row_ror:8 row_mask:0xf bank_mask:0xf")
    a(f"v_cvt_pk_bf16_f32 {V(RA)}, {V(RA)}, {V(RA+1)}")
    a(f"buffer_store_dword {V(RA)}, {V(G_PUB)}, {S(SRD_WS,4)}, {S(S_PUB+par)} offen")


def hop2(a, par, region, shadow=()):
    K = PARAM.get("k2", 2)
    XS = [MF, ACCV] if K == 2 else [MF + 8 * i for i in range(K)]
    delay(a, PARAM["pre2"])
    L = a.newlabel("L_h2"); RT = L + "_r"; J = L + "_j"
    D = [f"{L}_d{i}" for i in range(K)]
    t0, t1 = 56 + 0, 56 + 1
    def issue(X):
        for i in range(2):
            a(f"buffer_load_dwordx4 {V(X+4*i,4)}, {V(HI16)}, {S(SRD_WS,4)}, {S(S_MLD+par)} offen offset:{i*1024} sc1")
    T0, T1 = ZT
    def check_(X, n, Dl):
        a(f"s_waitcnt vmcnt({n})")
        a("s_mov_b64 exec, -1")
        a(f"v_max3_u32 {V(T0)}, {V(X)}, {V(X+1)}, {V(X+2)}")
        a(f"v_max3_u32 {V(T1)}, {V(X+3)}, {V(X+4)}, {V(X+5)}")
        a(f"v_max3_u32 {V(T0)}, {V(T0)}, {V(X+6)}, {V(X+7)}")
        a(f"v_max_u32 {V(T0)}, {V(T0)}, {V(T1)}")
        a(f"v_cmp_eq_u32 vcc, -1, {V(T0)}")
        a(f"s_cbranch_vccz {Dl}")
    def write(X):
        for i in range(2):
            a(f"ds_write_b128 {V(A_VX)}, {V(X+4*i,4)} offset:{region + i*1024}")
    a(f"s_mov_b32 {S(S_CNT)}, 0")
    issue(XS[0])
    for x in shadow: a(x)
    for i in range(1, K):
        delay(a, PARAM.get("d2", 48) if i == 1 else PARAM.get("d3", 96))
        issue(XS[i])
    a.label(RT)
    check_(XS[0], 2 * (K - 1), D[0])
    if not FAST:
        a(f"s_cmp_eq_u32 {S(S_FAIL)}, 1")
        a(f"s_cbranch_scc1 {D[0]}")
        a("s_mov_b64 exec, vcc")
        issue(XS[0])
        for i in range(1, K):
            check_(XS[i], 2 * (K - 1), D[i])
            a("s_mov_b64 exec, vcc")
            issue(XS[i])
        emit_spin_check(a, RT, D[0])
        a("s_waitcnt vmcnt(0)")
        a("s_mov_b64 exec, -1")
        a(f"s_branch {D[0]}")
        for i in range(1, K):
            a.label(D[i])
            write(XS[i])
            a(f"s_branch {J}")
    a.label(D[0])
    write(XS[0])
    a.label(J)
    if K != 2:
        a("s_waitcnt vmcnt(0)")


def loop(a, dbg=False, timing=False):
    if timing:
        for k in range(8): a(f"s_mov_b32 {S(TACC+k)}, 0")
        a(f"s_memtime {S(TS,2)}")
        a("s_waitcnt lgkmcnt(0)")
    a(f"s_cmp_eq_u32 {S(S_W)}, 0")
    a(f"s_cselect_b32 {S(S_KVMF+2)}, 1, 0")
    a(f"s_mov_b32 {S(S_KVMF+1)}, 0")
    a(f"s_sub_u32 {S(S_FLG0)}, {S(S_FLG)}, 128")
    a("s_barrier")
    a(f"s_cmp_ge_u32 {S(S_W)}, 2")
    a("s_cbranch_scc1 L_recF_loop")
    for role in "PF":
        a(".p2align 3")
        a.label(f"L_rec{role}_loop")
        for par in range(2):
            step(a, par, role, dbg, timing)
        a(f"s_branch L_rec{role}_loop")
    if "nolast" not in OPT:
        a.label("L_rec_last")
        for T in range(8):
            for tile in range(2):
                a(smf(ACCV + 4 * tile, MF + 4 * T, A(128 + (tile * 8 + T) * 8, 8)))
        for tile in range(2):
            a(f"v_add_f32 {V(ACCK+4*tile)}, {V(ACCK+4*tile)}, {V(ACCK+4*tile+1)}")
            a(f"v_add_f32 {V(ACCK+4*tile+2)}, {V(ACCK+4*tile+2)}, {V(ACCK+4*tile+3)}")
            a(f"v_cvt_pk_bf16_f32 {V(KV4+tile)}, {V(ACCK+4*tile)}, {V(ACCK+4*tile+2)}")
        a("s_nop 7")
        for tile in range(2):
            a(f"v_add_f32 {V(ACCV+4*tile)}, {V(ACCV+4*tile)}, {V(ACCV+4*tile+1)}")
            a(f"v_add_f32 {V(ACCV+4*tile+2)}, {V(ACCV+4*tile+2)}, {V(ACCV+4*tile+3)}")
            a(f"v_cvt_pk_bf16_f32 {V(KV4+2+tile)}, {V(ACCV+4*tile)}, {V(ACCV+4*tile+2)}")
        a(f"buffer_store_dwordx4 {V(KV4,4)}, {V(HI16)}, {S(SRD_WS,4)}, {S(S_KVM)} offen sc1")
    a.label("L_rec_fin")
    a("s_waitcnt vmcnt(0) lgkmcnt(0)")
    a("s_barrier")
    Ls = a.newlabel("L_fin")
    a(f"s_cmp_eq_u32 {S(S_W)}, 0")
    a(f"s_cbranch_scc0 {Ls}")
    a(f"v_mov_b32 {V(16)}, 1")
    a(f"buffer_store_dword {V(16)}, off, {S(SRD_WS,4)}, {S(S_KVMF)} sc1")
    a("s_waitcnt vmcnt(0)")
    a.label(Ls)
```

```python
from asm import *
from layout import *
import struct

def f2u(x): return struct.unpack("<I", struct.pack("<f", x))[0]

S_IDX, S_W, S_XCC = 4, 5, 6
SRD_WS, SRD_DBG = 8, 52
S_WK = 16
S_H1, S_SUB = 17, 18
S_FAIL, S_CNT = 19, 20
S_J, S_SEG = 21, 22
S_T0, S_T1, S_T2, S_T3 = 24, 25, 26, 27
SRD_A, SRD_B, SRD_C = 28, 32, 36
S_TEAM = 40
S_NSEG = 41
SPIN_MAX = 1 << 19
FAST = False
OPT = set()
W1_STRIDE = 3
W1_AHEAD = 9
STF = 'sc1'
PSTF = 'sc1'
OSTF = 'sc1'

def srd(a, dst, karg_off, nbytes, tmp=56):
    a(f"s_load_dwordx2 {S(tmp,2)}, s[0:1], {karg_off}")
    a("s_waitcnt lgkmcnt(0)")
    a(f"s_mov_b32 {S(dst)}, {S(tmp)}")
    a(f"s_and_b32 {S(dst+1)}, {S(tmp+1)}, 0xffff")
    a(f"s_mov_b32 {S(dst+2)}, {nbytes}")
    a(f"s_mov_b32 {S(dst+3)}, 0x20000")

def poll_word(a, srdn, soff_text, cond_text, vtmp, name, sleep=4):
    L = a.newlabel("L_wpw_" + name)
    D = L + "_d"
    a(f"s_mov_b32 {S(S_CNT)}, 0")
    a.label(L)
    a(f"s_cmp_eq_u32 {S(S_FAIL)}, 1")
    a(f"s_cbranch_scc1 {D}")
    a(f"buffer_load_dword {V(vtmp)}, off, {S(srdn,4)}, {soff_text} sc1")
    a("s_waitcnt vmcnt(0)")
    a(f"v_readfirstlane_b32 {S(S_T0)}, {V(vtmp)}")
    a("s_nop 3")
    a(cond_text)
    a(f"s_cbranch_scc1 {D}")
    a(f"s_sleep {sleep}")
    a(f"s_add_u32 {S(S_CNT)}, {S(S_CNT)}, 1")
    a(f"s_cmp_lt_u32 {S(S_CNT)}, {SPIN_MAX}")
    a(f"s_cbranch_scc1 {L}")
    a(f"s_mov_b32 {S(S_FAIL)}, 1")
    a.label(D)

def poll_wave0(a, srdn, soff_text, cond_text, vtmp, name, sleep=4):
    Lw0 = a.newlabel("L_pw0")
    a(f"s_cmp_eq_u32 {S(S_W)}, 0")
    a(f"s_cbranch_scc0 {Lw0}")
    poll_word(a, srdn, soff_text, cond_text, vtmp, name, sleep=sleep)
    a.label(Lw0)
    a("s_barrier")


def bf16_round(a, dst, src):
    a(f"v_cvt_pk_bf16_f32 {V(dst)}, {V(src)}, {V(src)}")
    a(f"v_lshlrev_b32 {V(dst)}, 16, {V(dst)}")

def wave_sum(a, regs, tmp):
    for sh in (1, 2, 4, 8):
        a("s_nop 1")
        for r in regs:
            a(f"v_add_f32_dpp {V(r)}, {V(r)}, {V(r)} row_ror:{sh} row_mask:0xf bank_mask:0xf")
    for sw in ("v_permlane16_swap_b32", "v_permlane32_swap_b32"):
        for k, r in enumerate(regs):
            a(f"v_mov_b32 {V(tmp+k)}, {V(r)}")
        a("s_nop 1")
        for k, r in enumerate(regs):
            a(f"{sw} {V(r)}, {V(tmp+k)}")
        for k, r in enumerate(regs):
            a(f"v_add_f32 {V(r)}, {V(r)}, {V(tmp+k)}")

def w0(a):
    a("; ===== W0: init + LayerNorm =====")
    a(f"s_mov_b32 {S(S_FAIL)}, 0")
    a(f"s_sub_u32 {S(S_TEAM)}, {S(S_XCC)}, 1")
    a(f"s_lshl_b32 {S(S_WK)}, {S(S_TEAM)}, 5")
    a(f"s_add_u32 {S(S_WK)}, {S(S_WK)}, {S(S_IDX)}")


def w0_ln(a):
    L = 100
    a(f"s_sub_u32 {S(S_WK)}, {S(S_WK)}, 96")
    a(f"v_and_b32 {V(L)}, 63, v0")
    Ls = a.newlabel("L_fz")
    a(f"s_cmp_eq_u32 {S(S_W)}, 0")
    a(f"s_cbranch_scc0 {Ls}")
    for i in range(4): a(f"v_mov_b32 {V(20+i)}, 0")
    a(f"v_lshlrev_b32 {V(24)}, 4, {V(L)}")
    a(f"v_mov_b32 {V(25)}, 0x7ff00000")
    a(f"v_cmp_gt_u32 vcc, 16, {V(L)}")
    a("s_nop 1")
    a(f"v_cndmask_b32 {V(24)}, {V(25)}, {V(24)}, vcc")
    a(f"s_lshl_b32 {S(S_T0)}, {S(S_WK)}, 8")
    a(f"s_add_u32 {S(S_T0)}, {S(S_T0)}, {FLAG_OFF}")
    a(f"buffer_store_dwordx4 {V(20,4)}, {V(24)}, {S(SRD_WS,4)}, {S(S_T0)} offen sc1")
    a.label(Ls)
    srd(a, SRD_A, 0, 2048 * 512 * 2)
    a(f"s_lshl_b32 {S(S_T0)}, {S(S_WK)}, 2")
    a(f"s_add_u32 {S(S_T0)}, {S(S_T0)}, {S(S_W)}")
    a(f"v_lshlrev_b32 {V(24)}, 4, {V(L)}")
    NR = 4
    X = [32 + 4 * k for k in range(NR)]
    F = [48 + 8 * k for k in range(NR)]
    for k in range(NR):
        a(f"s_add_u32 {S(S_T1)}, {S(S_T0)}, {512*k}")
        a(f"s_lshl_b32 {S(S_T1)}, {S(S_T1)}, 10")
        a(f"buffer_load_dwordx4 {V(X[k],4)}, {V(24)}, {S(SRD_A,4)}, {S(S_T1)} offen")
    a("s_waitcnt vmcnt(0)")
    SUM = [80 + k for k in range(NR)]
    TMP = 108
    for k in range(NR):
        for d in range(4):
            a(f"v_lshlrev_b32 {V(F[k]+2*d)}, 16, {V(X[k]+d)}")
            a(f"v_and_b32 {V(F[k]+2*d+1)}, 0xffff0000, {V(X[k]+d)}")
        a(f"v_add_f32 {V(SUM[k])}, {V(F[k])}, {V(F[k]+1)}")
        for d in range(2, 8):
            a(f"v_add_f32 {V(SUM[k])}, {V(SUM[k])}, {V(F[k]+d)}")
    wave_sum(a, SUM, TMP)
    MEAN = [88 + k for k in range(NR)]
    VAR = [92 + k for k in range(NR)]
    for k in range(NR):
        a(f"v_mul_f32 {V(MEAN[k])}, {f2u(1/512):#x}, {V(SUM[k])}")
        a(f"v_sub_f32 {V(TMP)}, {V(F[k])}, {V(MEAN[k])}")
        a(f"v_mul_f32 {V(VAR[k])}, {V(TMP)}, {V(TMP)}")
        for d in range(1, 8):
            a(f"v_sub_f32 {V(TMP)}, {V(F[k]+d)}, {V(MEAN[k])}")
            a(f"v_fmac_f32 {V(VAR[k])}, {V(TMP)}, {V(TMP)}")
    wave_sum(a, VAR, TMP)
    for k in range(NR):
        a(f"v_mul_f32 {V(VAR[k])}, {f2u(1/512):#x}, {V(VAR[k])}")
        bf16_round(a, VAR[k], VAR[k])
        a(f"v_add_f32 {V(VAR[k])}, {f2u(1e-5):#x}, {V(VAR[k])}")
        bf16_round(a, VAR[k], VAR[k])
        a(f"v_sqrt_f32 {V(VAR[k])}, {V(VAR[k])}")
        a("s_nop 0")
        bf16_round(a, VAR[k], VAR[k])
        a(f"v_rcp_f32 {V(96+k)}, {V(VAR[k])}")
        bf16_round(a, MEAN[k], MEAN[k])
        for d in range(8):
            a(f"v_sub_f32 {V(F[k]+d)}, {V(F[k]+d)}, {V(MEAN[k])}")
        for d in range(0, 8, 2):
            a(f"v_cvt_pk_bf16_f32 {V(TMP)}, {V(F[k]+d)}, {V(F[k]+d+1)}")
            a(f"v_lshlrev_b32 {V(F[k]+d)}, 16, {V(TMP)}")
            a(f"v_and_b32 {V(F[k]+d+1)}, 0xffff0000, {V(TMP)}")
        for d in range(8):
            a(f"v_mul_f32 {V(TMP)}, {V(F[k]+d)}, {V(96+k)}")
            a(f"v_fma_f32 {V(TMP+1)}, -{V(TMP)}, {V(VAR[k])}, {V(F[k]+d)}")
            a(f"v_fma_f32 {V(F[k]+d)}, {V(TMP+1)}, {V(96+k)}, {V(TMP)}")
        for d in range(4):
            a(f"v_cvt_pk_bf16_f32 {V(X[k]+d)}, {V(F[k]+2*d)}, {V(F[k]+2*d+1)}")
        a(f"s_add_u32 {S(S_T1)}, {S(S_T0)}, {512*k}")
        a(f"s_lshl_b32 {S(S_T1)}, {S(S_T1)}, 10")
        a(f"s_add_u32 {S(S_T1)}, {S(S_T1)}, {XN_OFF}")
        a(f"buffer_store_dwordx4 {V(X[k],4)}, {V(24)}, {S(SRD_WS,4)}, {S(S_T1)} offen sc1")
    a("s_waitcnt vmcnt(0)")
    a("s_barrier")
    Ls = a.newlabel("L_c0")
    a(f"s_cmp_eq_u32 {S(S_W)}, 0")
    a(f"s_cbranch_scc0 {Ls}")
    a("v_mov_b32 v20, 1")
    a("s_mov_b64 exec, 1")
    a(f"s_mov_b32 {S(S_T0)}, 32")
    a(f"buffer_atomic_add v20, off, {S(SRD_DBG,4)}, {S(S_T0)} sc1")
    a("s_mov_b64 exec, -1")
    a.label(Ls)


class Stager:
    def __init__(self, a, L=100, N=101, G=102):
        self.a = a; self.L, self.N, self.G = L, N, G
    def lane_ids(self):
        a = self.a
        a(f"v_and_b32 {V(self.L)}, 63, v0")
        a(f"v_and_b32 {V(self.N)}, 15, {V(self.L)}")
        a(f"v_lshrrev_b32 {V(self.G)}, 4, {V(self.L)}")
    def dma_voffsets(self, dst, stride, swz, t1=103, t2=104, t3=105):
        a = self.a
        a(f"v_and_b32 {V(t1)}, 3, {V(self.G)}")
        a(f"v_lshlrev_b32 {V(t1)}, 1, {V(t1)}")
        a(f"v_xor_b32 {V(t1)}, {V(t1)}, {V(self.N)}")
        a(f"s_lshl_b32 {S(S_T2)}, {S(S_W)}, 4")
        a(f"s_mov_b32 {S(S_T3)}, {stride}")
        for i in range(4):
            bit = ((i >> 1) & 1) if swz == "B" else (i & 1)
            a(f"v_xor_b32 {V(t2)}, {8*bit}, {V(t1)}")
            a(f"v_lshlrev_b32 {V(t2)}, 4, {V(t2)}")
            a(f"v_add_u32 {V(t3)}, {S(S_T2)}, {V(self.G)}")
            a(f"v_add_u32 {V(t3)}, {4*i}, {V(t3)}")
            a(f"v_mul_lo_u32 {V(dst+i)}, {S(S_T3)}, {V(t3)}")
            a(f"v_add_u32 {V(dst+i)}, {V(dst+i)}, {V(t2)}")
    def tr_base(self, dbase, dfs, swz, t1=103, t2=104, t3=105):
        a = self.a
        a(f"v_lshrrev_b32 {V(t1)}, 2, {V(self.N)}")
        a(f"v_and_b32 {V(t2)}, 3, {V(self.N)}")
        sh = 3 if swz == "B" else 2
        a(f"v_lshl_add_u32 {V(t3)}, {V(self.G)}, {sh}, {V(t1)}")
        a(f"v_lshlrev_b32 {V(dbase)}, 8, {V(t3)}")
        a(f"v_lshl_add_u32 {V(dbase)}, {V(t2)}, 3, {V(dbase)}")
        a(f"v_and_b32 {V(t3)}, 1, {V(self.G)}")
        a(f"v_lshlrev_b32 {V(t3)}, 2, {V(t3)}")
        a(f"v_add_u32 {V(t3)}, {V(t3)}, {V(t1)}")
        a(f"v_lshlrev_b32 {V(dfs)}, 5, {V(t3)}")
    def run(self, chunks, pre_wait=None, post=None):
        a = self.a
        n = len(chunks)
        pre_wait = pre_wait or {}; post = post or {}
        def dma(i):
            c = chunks[i]
            slot = i & 7
            for k in range(4):
                a(f"s_lshl_b32 {S(S_T0)}, {S(S_W)}, 12")
                a(f"s_add_u32 m0, {S(S_T0)}, {slot*16384 + k*1024}")
                for x in c["soff"]: a(x)
                a(f"buffer_load_dwordx4 {V(c['voff']+k)}, {S(c['srd'],4)}, {S(S_T1)} offen lds")
        for i in range(min(8, n)): dma(i)
        for i in range(n):
            later = min(i + 7, n - 1) - i
            a(f"s_waitcnt vmcnt({4*later})")
            a("s_barrier")
            chunks[i]["consume"]((i & 7) * 16384)
            if i in pre_wait: pre_wait[i]()
            a("s_waitcnt lgkmcnt(0)")
            a("s_barrier")
            if i + 8 < n: dma(i + 8)
            if i in post: post[i]()


XN_LDS = (0, 32768)

def xn_dma(a, buf, vsrc, sseg):
    a(f"s_lshl_b32 {S(S_T1)}, {S(sseg)}, 15")
    a(f"s_lshr_b32 {S(S_T2)}, {S(S_W)}, 1")
    a(f"s_lshl_b32 {S(S_T2)}, {S(S_T2)}, 14")
    a(f"s_add_u32 {S(S_T1)}, {S(S_T1)}, {S(S_T2)}")
    a(f"s_and_b32 {S(S_T2)}, {S(S_W)}, 1")
    a(f"s_lshl_b32 {S(S_T2)}, {S(S_T2)}, 9")
    a(f"s_add_u32 {S(S_T1)}, {S(S_T1)}, {S(S_T2)}")
    a(f"s_add_u32 {S(S_T1)}, {S(S_T1)}, {XN_OFF}")
    a(f"s_lshl_b32 {S(S_T0)}, {S(S_W)}, 13")
    a(f"s_add_u32 m0, {S(S_T0)}, {buf}")
    for k in range(8):
        a("s_nop 0")
        a(f"buffer_load_dwordx4 {V(vsrc)}, {S(SRD_WS,4)}, {S(S_T1)} offen lds")
        if k < 7:
            a(f"s_add_u32 m0, m0, 1024")
            a(f"s_add_u32 {S(S_T1)}, {S(S_T1)}, 64")


def w1_flag(a, sseg, kind):
    Lf = a.newlabel("L_w1_noflag")
    a(f"s_cmp_ge_u32 {S(sseg)}, 64")
    a(f"s_cbranch_scc1 {Lf}")
    a(f"s_cmp_eq_u32 {S(S_W)}, 0")
    a(f"s_cbranch_scc0 {Lf}")
    a(f"s_lshl_b32 {S(S_T0)}, {S(sseg)}, 5")
    a(f"s_add_u32 {S(S_T0)}, {S(S_T0)}, {S(S_H1)}")
    a(f"s_lshl_b32 {S(S_T0)}, {S(S_T0)}, 2")
    a(f"s_add_u32 {S(S_T0)}, {S(S_T0)}, {FLAG_OFF if kind == 'kv' else QFL_OFF}")
    a("v_mov_b32 v26, 1")
    a(f"buffer_store_dword v26, off, {S(SRD_WS,4)}, {S(S_T0)} sc1")
    if kind == "kv":
        a(f"s_cmp_eq_u32 {S(sseg)}, 0")
        a(f"s_cbranch_scc0 {Lf}")
        a(f"s_lshl_b32 {S(S_T0)}, 1, {S(S_H1)}")
        a(f"v_mov_b32 v26, {S(S_T0)}")
        a("s_mov_b64 exec, 1")
        a(f"s_mov_b32 {S(S_T0)}, 40")
        a(f"buffer_atomic_or v26, off, {S(SRD_DBG,4)}, {S(S_T0)} sc1")
        a("s_mov_b64 exec, -1")
    a.label(Lf)


def w1(a, kind):
    a(f"; ===== W1 ({kind}): projections, head stationary =====")
    mats = ("k", "v") if kind == "kv" else ("q",)
    stride = 2 if kind == "kv" else 1
    LP = f"L_w1{kind}"
    if kind == "kv":
        a(f"s_lshr_b32 {S(S_H1)}, {S(S_WK)}, 1")
        a(f"s_and_b32 {S(S_SUB)}, {S(S_WK)}, 1")
    else:
        a(f"s_sub_u32 {S(S_H1)}, {S(S_WK)}, 64")
        a(f"s_mov_b32 {S(S_SUB)}, 0")
    st = Stager(a)
    st.lane_ids()
    L, N, G = st.L, st.N, st.G
    if kind == "kv":
        srd(a, SRD_A, 24, 0x400000)
        srd(a, SRD_B, 32, 0x400000)
    else:
        srd(a, SRD_A, 16, 0x400000)
    VOFF = 24
    st.dma_voffsets(VOFF, 8192, "B")
    a(f"s_lshl_b32 {S(S_T2)}, {S(S_H1)}, 8")
    for i in range(4):
        a(f"v_add_u32 {V(VOFF+i)}, {S(S_T2)}, {V(VOFF+i)}")
    TB, FS = 32, 33
    st.tr_base(TB, FS, "B")
    TA = (34, 35)
    for f in range(2):
        a(f"s_lshl_b32 {S(S_T0)}, {S(S_W)}, 6")
        a(f"s_add_u32 {S(S_T0)}, {S(S_T0)}, {32*f}")
        a(f"v_xor_b32 {V(TA[f])}, {S(S_T0)}, {V(FS)}")
        a(f"v_add_u32 {V(TA[f])}, {V(TA[f])}, {V(TB)}")
    XS, L16, L16H = 40, 41, 42
    a(f"v_lshlrev_b32 {V(XS)}, 10, {V(N)}")
    a(f"v_lshl_add_u32 {V(XS)}, {V(G)}, 4, {V(XS)}")
    a(f"v_lshlrev_b32 {V(L16)}, 4, {V(L)}")
    a(f"v_add_u32 {V(L16H)}, 0x20000, {V(L16)}")
    XB = (131072, 0)
    XA = (L16H, L16)
    a(f"s_mov_b32 {S(S_SEG)}, {S(S_SUB)}")
    def frag(mi, f, u):
        k = 128 * mi + (f * 16 + u) * 4
        return lambda c: A(k + c[0], c[1])
    chunks = []
    for mi, mat in enumerate(mats):
        sr = (SRD_A, SRD_B)[mi]
        for T in range(8):
            def consume(slot, mi=mi, T=T):
                for f in range(2):
                    a(f"v_add_u32 {V(36+f)}, {slot}, {V(TA[f])}")
                for f in range(2):
                    for uu in range(2):
                        for hh in range(2):
                            a(f"ds_read_b64_tr_b16 {frag(mi, f, 2*T+uu)((2*hh, 2))}, {V(36+f)} offset:{(32*uu + 4*hh)*256}")
            chunks.append(dict(srd=sr, voff=VOFF, soff=[f"s_mov_b32 {S(S_T1)}, {T*524288}"], consume=consume))
    S_PF = 46
    EL = len(chunks) - 4
    def look():
        a(f"s_mov_b32 {S(S_T0)}, 32")
        a(f"buffer_load_dword {V(108)}, off, {S(SRD_DBG,4)}, {S(S_T0)} sc1")
    def early():
        Le = a.newlabel("L_xnearly")
        a("s_waitcnt vmcnt(0)")
        a(f"v_readfirstlane_b32 s47, {V(108)}")
        a(f"s_mov_b32 {S(S_PF)}, 0")
        a("s_nop 2")
        a(f"s_cmp_lt_u32 s47, 128")
        a(f"s_cbranch_scc1 {Le}")
        xn_dma(a, XB[0], XS, S_SEG)
        a(f"s_mov_b32 {S(S_PF)}, 1")
        a.label(Le)
    st.run(chunks, post={EL - 2: look, EL: early})
    if "time" in OPT:
        a("s_memrealtime s[60:61]")
        a("s_waitcnt lgkmcnt(0)")
    Lx = a.newlabel("L_xnlate")
    a(f"s_cmp_eq_u32 {S(S_PF)}, 1")
    a(f"s_cbranch_scc1 {Lx}")
    poll_word(a, SRD_DBG, "32", f"s_cmp_ge_u32 {S(S_T0)}, 128", 103, "c0", sleep=16)
    xn_dma(a, XB[0], XS, S_SEG)
    a.label(Lx)
    S_PREV = 42
    S_NEXT = 43
    a(f"s_mov_b32 {S(S_PREV)}, 64")
    NM = len(mats)
    ACC = 48
    XF = 80
    OUT = 96
    a.label(LP + "_loop")
    for par in range(2):
        a("s_waitcnt vmcnt(0)")
        a("s_barrier")
        if "time" in OPT and par == 0:
            Lt = a.newlabel("L_t0")
            a(f"s_cmp_eq_u32 {S(S_PREV)}, 64")
            a(f"s_cbranch_scc0 {Lt}")
            a("s_memrealtime s[62:63]")
            a("s_waitcnt lgkmcnt(0)")
            a.label(Lt)
        w1_flag(a, S_PREV, kind)
        if "time" in OPT and par == 1:
            Lt = a.newlabel("L_t1")
            a(f"s_cmp_eq_u32 {S(S_PREV)}, {S(S_SUB)}")
            a(f"s_cbranch_scc0 {Lt}")
            a("s_memrealtime s[58:59]")
            a("s_waitcnt lgkmcnt(0)")
            a.label(Lt)
        a(f"s_add_u32 {S(S_NEXT)}, {S(S_SEG)}, {stride}")
        a(f"s_min_u32 {S(44)}, {S(S_NEXT)}, 63")
        xn_dma(a, XB[par ^ 1], XS, 44)
        for r in range(ACC, ACC + 16 * NM, 2):
            a(f"v_mov_b64 {V(r,2)}, 0")
        def rd(u):
            b = XF + 8 * (u & 1)
            for tt in range(2):
                a(f"ds_read_b128 {V(b+4*tt,4)}, {V(XA[par])} offset:{(tt*16+u)*1024}")
        rd(0)
        for u in range(16):
            if u + 1 < 16:
                rd(u + 1)
                a("s_waitcnt lgkmcnt(2)")
            else:
                a("s_waitcnt lgkmcnt(0)")
            b = XF + 8 * (u & 1)
            for mi, mat in enumerate(mats):
                for f in range(2):
                    for tt in range(2):
                        acc = V(ACC + ((mi * 2 + f) * 2 + tt) * 4, 4)
                        wf = frag(mi, f, u)((0, 4))
                        xf = V(b + 4 * tt, 4)
                        if mat == "v":
                            a(f"v_mfma_f32_16x16x32_bf16 {acc}, {xf}, {wf}, {acc}")
                        else:
                            a(f"v_mfma_f32_16x16x32_bf16 {acc}, {wf}, {xf}, {acc}")
        a("s_nop 7")
        def acc(mi, f, tt): return ACC + ((mi * 2 + f) * 2 + tt) * 4
        for tt in range(2):
            o = OUT + tt * 4
            for f in range(2):
                for hp in range(2):
                    a(f"v_cvt_pk_bf16_f32 {V(o+2*f+hp)}, {V(acc(0,f,tt)+2*hp)}, {V(acc(0,f,tt)+2*hp+1)}")
        if kind == "kv":
            for f in range(2):
                o = OUT + 8 + f * 4
                for tt in range(2):
                    for hp in range(2):
                        a(f"v_cvt_pk_bf16_f32 {V(o+2*tt+hp)}, {V(acc(1,f,tt)+2*hp)}, {V(acc(1,f,tt)+2*hp+1)}")
        a(f"s_lshl_b32 {S(S_T0)}, {S(S_SEG)}, 5")
        a(f"s_add_u32 {S(S_T0)}, {S(S_T0)}, {S(S_H1)}")
        a(f"s_lshl_b32 {S(S_T0)}, {S(S_T0)}, 13")
        a(f"s_lshl_b32 {S(S_T1)}, {S(S_W)}, 10")
        a(f"s_add_u32 {S(S_T1)}, {S(S_T1)}, {S(S_T0)}")
        base = KF_OFF if kind == "kv" else QF_OFF
        for tt in range(2):
            a(f"s_add_u32 {S(S_T2)}, {S(S_T1)}, {base + tt*4096}")
            a(f"buffer_store_dwordx4 {V(OUT+tt*4,4)}, {V(L16)}, {S(SRD_WS,4)}, {S(S_T2)} offen {STF}")
        if kind == "kv":
            a(f"s_lshl_b32 {S(S_T1)}, {S(S_W)}, 11")
            a(f"s_add_u32 {S(S_T1)}, {S(S_T1)}, {S(S_T0)}")
            for f in range(2):
                a(f"s_add_u32 {S(S_T2)}, {S(S_T1)}, {VF_OFF + f*1024}")
                a(f"buffer_store_dwordx4 {V(OUT+8+f*4,4)}, {V(L16)}, {S(SRD_WS,4)}, {S(S_T2)} offen {STF}")
        a(f"s_mov_b32 {S(S_PREV)}, {S(S_SEG)}")
        a(f"s_mov_b32 {S(S_SEG)}, {S(S_NEXT)}")
        a(f"s_cmp_ge_u32 {S(S_SEG)}, 64")
        a(f"s_cbranch_scc1 {LP}_done")
    a(f"s_branch {LP}_loop")
    a.label(LP + "_done")
    a("s_waitcnt vmcnt(0)")
    a("s_barrier")
    w1_flag(a, S_PREV, kind)


NTEAM = 4
ACT_O, O_LDS, KT_LDS = 32768, 36864, 45056
C_SCALE = (128 ** -0.5) * 1.4426950408889634
LOG2E = 1.4426950408889634

def w2(a):
    a("; ===== W2: FFN + token attention + output projection, one team per XCD =====")
    st = Stager(a)
    st.lane_ids()
    L, N, G = st.L, st.N, st.G
    S_H = S_IDX
    a(f"s_sub_u32 {S(S_TEAM)}, {S(S_XCC)}, 4")
    if "nodefer" not in OPT:
        poll_wave0(a, SRD_DBG, "40", f"s_cmp_eq_u32 {S(S_T0)}, -1", 104, "defer", sleep=48)
    srd(a, SRD_A, 40, 0x400000)
    srd(a, SRD_B, 80, 1792 * 512 * 2)
    srd(a, SRD_C, 64, 512 * 1792 * 2)
    VO_C, VO_B = 24, 28
    st.dma_voffsets(VO_C, 1024, "C")
    st.dma_voffsets(VO_B, 3584, "B")
    TBC, FSC, TBB, FSB = 32, 33, 34, 35
    st.tr_base(TBC, FSC, "C")
    st.tr_base(TBB, FSB, "B")
    a(f"s_lshl_b32 {S(S_T0)}, {S(S_W)}, 5")
    a(f"v_xor_b32 {V(36)}, {S(S_T0)}, {V(FSB)}")
    a(f"v_add_u32 {V(36)}, {V(36)}, {V(TBB)}")
    S_FFN = 41
    a(f"s_cmp_lt_u32 {S(S_H)}, 28")
    a(f"s_cselect_b32 {S(S_FFN)}, 1, 0")
    S_HC = 42
    a(f"s_min_u32 {S(S_HC)}, {S(S_H)}, 27")
    chunks = []
    def own_wave(wp, body):
        Ls = a.newlabel("L_own")
        a(f"s_cmp_eq_u32 {S(S_W)}, {wp}")
        a(f"s_cbranch_scc0 {Ls}")
        body()
        a.label(Ls)
    for T in range(2):
        for wp in range(4):
            def consume(slot, T=T, wp=wp):
                def body():
                    for tau in range(8):
                        a(f"v_xor_b32 {V(37)}, {32*tau}, {V(FSC)}")
                        a(f"v_add_u32 {V(37)}, {V(37)}, {V(TBC)}")
                        a(f"v_add_u32 {V(37)}, {slot}, {V(37)}")
                        for uu in range(2):
                            for f in range(2):
                                a(f"ds_read_b64_tr_b16 {A((tau*4 + 2*T+uu)*4 + 2*f, 2)}, {V(37)} offset:{(32*uu + 16*f)*256}")
                        if tau & 1: a("s_waitcnt lgkmcnt(0)")
                own_wave(wp, body)
            chunks.append(dict(srd=SRD_A, voff=VO_C, consume=consume,
                               soff=[f"s_lshl_b32 {S(S_T1)}, {S(S_H)}, 17", f"s_add_u32 {S(S_T1)}, {S(S_T1)}, {T*65536 + wp*256}"]))
    for wp in range(4):
        def consume(slot, wp=wp):
            def body():
                for tau in range(8):
                    a(f"v_xor_b32 {V(37)}, {32*tau}, {V(FSC)}")
                    a(f"v_add_u32 {V(37)}, {V(37)}, {V(TBC)}")
                    a(f"v_add_u32 {V(37)}, {slot}, {V(37)}")
                    for uu in range(2):
                        for f in range(2):
                            a(f"ds_read_b64_tr_b16 {A(128 + (tau*2 + uu)*4 + 2*f, 2)}, {V(37)} offset:{(32*uu + 16*f)*256}")
                    if tau & 1: a("s_waitcnt lgkmcnt(0)")
            own_wave(wp, body)
        chunks.append(dict(srd=SRD_B, voff=VO_C, consume=consume,
                           soff=[f"s_lshl_b32 {S(S_T1)}, {S(S_HC)}, 16", f"s_add_u32 {S(S_T1)}, {S(S_T1)}, {wp*256}"]))
    for T in range(8):
        def consume(slot, T=T):
            a(f"v_add_u32 {V(37)}, {slot}, {V(36)}")
            for uu in range(2):
                for hh in range(2):
                    a(f"ds_read_b64_tr_b16 {A(192 + (2*T+uu)*4 + 2*hh, 2)}, {V(37)} offset:{(32*uu + 4*hh)*256}")
        chunks.append(dict(srd=SRD_C, voff=VO_B, consume=consume,
                           soff=[f"s_lshl_b32 {S(S_T1)}, {S(S_HC)}, 7", f"s_add_u32 {S(S_T1)}, {S(S_T1)}, {T*64*3584}"]))
    st.run(chunks)
    L16, XS, A_KW, A_TRK, G_PST, G_PLD, G_OUT = 0, 1, 2, 3, 4, 5, 6
    B1 = 8
    SEL = 12
    T1, T2, T3 = 103, 104, 105
    R_, C_ = 106, 107
    a(f"v_lshrrev_b32 {V(R_)}, 2, {V(N)}")
    a(f"v_and_b32 {V(C_)}, 3, {V(N)}")
    a(f"v_lshlrev_b32 {V(XS)}, 10, {V(N)}")
    a(f"v_lshl_add_u32 {V(XS)}, {V(G)}, 4, {V(XS)}")
    a(f"s_lshl_b32 {S(S_T0)}, {S(S_W)}, 5")
    a(f"v_add_u32 {V(T3)}, {S(S_T0)}, {V(N)}")
    a(f"v_lshlrev_b32 {V(A_KW)}, 5, {V(T3)}")
    a(f"v_add_u32 {V(T3)}, {V(G)}, {V(R_)}")
    a(f"v_and_b32 {V(T3)}, 3, {V(T3)}")
    a(f"v_lshl_add_u32 {V(A_KW)}, {V(T3)}, 3, {V(A_KW)}")
    a(f"v_add_u32 {V(A_KW)}, {KT_LDS}, {V(A_KW)}")
    a(f"v_lshl_add_u32 {V(T3)}, {V(G)}, 2, {V(R_)}")
    a(f"v_lshlrev_b32 {V(A_TRK)}, 5, {V(T3)}")
    a(f"v_add_u32 {V(T3)}, {V(C_)}, {V(G)}")
    a(f"v_and_b32 {V(T3)}, 3, {V(T3)}")
    a(f"v_lshl_add_u32 {V(A_TRK)}, {V(T3)}, 3, {V(A_TRK)}")
    a(f"v_add_u32 {V(A_TRK)}, {KT_LDS}, {V(A_TRK)}")
    a(f"v_lshlrev_b32 {V(G_PST)}, 15, {V(N)}")
    a(f"v_lshl_add_u32 {V(G_PST)}, {V(G)}, 4, {V(G_PST)}")
    a(f"v_lshlrev_b32 {V(G_PLD)}, 10, {V(G)}")
    a(f"v_lshl_add_u32 {V(G_PLD)}, {V(N)}, 4, {V(G_PLD)}")
    a(f"v_lshlrev_b32 {V(G_OUT)}, 6, {V(R_)}")
    a(f"v_lshl_add_u32 {V(G_OUT)}, {V(G)}, 5, {V(G_OUT)}")
    a(f"v_lshl_add_u32 {V(G_OUT)}, {V(C_)}, 3, {V(G_OUT)}")
    a(f"s_lshl_b32 {S(S_T0)}, {S(S_W)}, 8")
    a(f"v_add_u32 {V(G_OUT)}, {S(S_T0)}, {V(G_OUT)}")
    a(f"v_cmp_lt_u32 vcc, 1, {V(G)}")
    a(f"v_mov_b32 {V(T3)}, 0x7ff00000")
    a("s_nop 0")
    a(f"v_cndmask_b32 {V(G_OUT)}, {V(G_OUT)}, {V(T3)}, vcc")
    a(f"v_and_b32 {V(T1)}, 1, {V(N)}")
    a(f"v_lshlrev_b32 {V(T1)}, 4, {V(T1)}")
    a(f"v_mov_b32 {V(T2)}, 0x3f80")
    a(f"v_lshlrev_b32 {V(T2)}, {V(T1)}, {V(T2)}")
    a(f"v_bfe_u32 {V(T1)}, {V(N)}, 1, 2")
    for rr in range(4):
        a(f"v_cmp_eq_u32 vcc, {rr}, {V(T1)}")
        a(f"v_mov_b32 {V(SEL+rr)}, 0")
        a("s_nop 0")
        a(f"v_cndmask_b32 {V(SEL+rr)}, {V(SEL+rr)}, {V(T2)}, vcc")
    srd(a, SRD_C, 72, 1792 * 2)
    a(f"s_lshl_b32 {S(S_T0)}, {S(S_HC)}, 7")
    a(f"s_lshl_b32 {S(S_T1)}, {S(S_W)}, 5")
    a(f"s_add_u32 {S(S_T0)}, {S(S_T0)}, {S(S_T1)}")
    a(f"v_lshlrev_b32 {V(T1)}, 3, {V(G)}")
    a(f"buffer_load_dwordx2 {V(T2,2)}, {V(T1)}, {S(SRD_C,4)}, {S(S_T0)} offen")
    a("s_waitcnt vmcnt(0)")
    a(f"v_lshlrev_b32 {V(B1)}, 16, {V(T2)}")
    a(f"v_and_b32 {V(B1+1)}, 0xffff0000, {V(T2)}")
    a(f"v_lshlrev_b32 {V(B1+2)}, 16, {V(T3)}")
    a(f"v_and_b32 {V(B1+3)}, 0xffff0000, {V(T3)}")
    S_M0, S_M1 = 64, 72
    for r in range(4):
        a(f"v_lshl_add_u32 {V(T1)}, {V(G)}, 2, {r}")
        a(f"v_cmp_le_u32 {S(S_M1+2*r,2)}, {V(T1)}, {V(N)}")
    a("s_nop 3")
    a(f"s_cmp_ge_u32 {S(S_W)}, 2")
    for r in range(4):
        a(f"s_cselect_b64 {S(S_M0+2*r,2)}, -1, {S(S_M1+2*r,2)}")
        a(f"s_cselect_b64 {S(S_M1+2*r,2)}, {S(S_M1+2*r,2)}, 0")
    a(f"v_lshlrev_b32 {V(L16)}, 4, {V(L)}")
    a(f"v_and_b32 {V(7)}, 31, {V(L)}")
    a(f"v_lshlrev_b32 {V(7)}, 2, {V(7)}")
    srd(a, SRD_A, 0, 2048 * 512 * 2)
    srd(a, SRD_B, 88, 2048 * 512 * 2)
    S_C = 80
    a(f"s_mov_b32 {S(S_C)}, {f2u(C_SCALE):#x}")
    S_L2E = 81
    a(f"s_mov_b32 {S(S_L2E)}, {f2u(LOG2E):#x}")
    A_ACTW, A_OW = 16, 17
    a(f"s_lshr_b32 {S(S_T0)}, {S(S_W)}, 1")
    a(f"s_lshl_b32 {S(S_T0)}, {S(S_T0)}, 10")
    a(f"s_and_b32 {S(S_T1)}, {S(S_W)}, 1")
    a(f"s_lshl_b32 {S(S_T2)}, {S(S_T1)}, 3")
    a(f"s_add_u32 {S(S_T0)}, {S(S_T0)}, {S(S_T2)}")
    a(f"s_add_u32 {S(S_T0)}, {S(S_T0)}, {ACT_O}")
    a(f"v_add_u32 {V(A_ACTW)}, {S(S_T0)}, {V(L16)}")
    a(f"s_lshr_b32 {S(S_T0)}, {S(S_W)}, 1")
    a(f"s_lshl_b32 {S(S_T0)}, {S(S_T0)}, 12")
    a(f"s_lshl_b32 {S(S_T1)}, {S(S_T1)}, 11")
    a(f"s_add_u32 {S(S_T0)}, {S(S_T0)}, {S(S_T1)}")
    a(f"s_add_u32 {S(S_T0)}, {S(S_T0)}, {O_LDS}")
    a(f"v_add_u32 {V(A_OW)}, {S(S_T0)}, {V(L16)}")
    if "nodefer" in OPT:
        poll_wave0(a, SRD_DBG, "32", f"s_cmp_ge_u32 {S(S_T0)}, 128", T3, "c0b", sleep=16)
    a(f"s_mov_b32 {S(S_SEG)}, {S(S_TEAM)}")
    a(f"s_mov_b32 {S(S_J)}, 0")
    a("s_barrier")
    xn_dma(a, 0, XS, S_SEG)
    FA = 128
    XF = 32
    a.label("L_w2_loop")
    a("s_waitcnt vmcnt(0)")
    a("s_barrier")
    for r in range(FA, FA + 64, 2):
        a(f"v_mov_b64 {V(r,2)}, 0")
    Lnf = a.newlabel("L_w2_noffn")
    a(f"s_cmp_eq_u32 {S(S_FFN)}, 0")
    a(f"s_cbranch_scc1 {Lnf}")
    H = 48
    for r in range(H, H + 8, 2): a(f"v_mov_b64 {V(r,2)}, 0")
    def rdx(u):
        b = XF + 8 * (u & 1)
        for tt in range(2):
            a(f"ds_read_b128 {V(b+4*tt,4)}, {V(L16)} offset:{(tt*16+u)*1024}")
    rdx(0)
    for u in range(16):
        if u < 15:
            rdx(u + 1); a("s_waitcnt lgkmcnt(2)")
        else:
            a("s_waitcnt lgkmcnt(0)")
        b = XF + 8 * (u & 1)
        for tt in range(2):
            a(f"v_mfma_f32_16x16x32_bf16 {V(H+4*tt,4)}, {A(192+4*u,4)}, {V(b+4*tt,4)}, {V(H+4*tt,4)}")
    a("s_nop 7")
    U, NN, DD, T_ = 56, 57, 58, 59
    for tt in range(2):
        for r in range(4):
            h = H + 4 * tt + r
            a(f"v_add_f32 {V(h)}, {V(h)}, {V(B1+r)}")
            a(f"v_mul_f32 {V(U)}, {S(S_L2E)}, {V(h)}")
            a(f"v_exp_f32 {V(U)}, -|{V(U)}|")
            a(f"v_cmp_le_f32 vcc, 0, {V(h)}")
            a(f"v_add_f32 {V(T_)}, {V(U)}, {V(U)}")
            a(f"v_fma_f32 {V(NN)}, {V(U)}, {V(U)}, {V(T_)}")
            a(f"v_add_f32 {V(DD)}, 1.0, {V(T_)}")
            a(f"v_mul_f32 {V(T_)}, {V(T_)}, {V(U)}")
            a(f"v_cndmask_b32 {V(NN)}, {V(NN)}, {V(DD)}, vcc")
            a(f"v_cndmask_b32 {V(T_)}, 2.0, {V(T_)}, vcc")
            a(f"v_add_f32 {V(DD)}, {V(NN)}, {V(T_)}")
            a(f"v_rcp_f32 {V(DD)}, {V(DD)}")
            a(f"v_mul_f32 {V(NN)}, {V(NN)}, {V(h)}")
            a(f"v_mul_f32 {V(h)}, {V(NN)}, {V(DD)}")
        a(f"v_cvt_pk_bf16_f32 {V(H+4*tt)}, {V(H+4*tt)}, {V(H+4*tt+1)}")
        a(f"v_cvt_pk_bf16_f32 {V(H+4*tt+1)}, {V(H+4*tt+2)}, {V(H+4*tt+3)}")
        a(f"ds_write_b64 {V(A_ACTW)}, {V(H+4*tt,2)} offset:{tt*2048}")
    a.label(Lnf)
    a("s_waitcnt lgkmcnt(0)")
    a("s_barrier")
    a(f"s_add_u32 {S(S_T3)}, {S(S_SEG)}, {NTEAM}")
    a(f"s_min_u32 {S(44)}, {S(S_T3)}, 63")
    xn_dma(a, 0, XS, 44)
    Lnf = a.newlabel("L_w2_noffn2")
    a(f"s_cmp_eq_u32 {S(S_FFN)}, 0")
    a(f"s_cbranch_scc1 {Lnf}")
    for tt in range(2):
        for uu in range(2):
            a(f"ds_read_b128 {V(XF+4*(2*tt+uu),4)}, {V(L16)} offset:{ACT_O + (tt*2+uu)*1024}")
    a("s_waitcnt lgkmcnt(0)")
    for tt in range(2):
        for tau in range(8):
            for uu in range(2):
                acc = V(FA + (tt*8+tau)*4, 4)
                a(f"v_mfma_f32_16x16x32_bf16 {acc}, {A(128+(tau*2+uu)*4,4)}, {V(XF+4*(2*tt+uu),4)}, {acc}")
    a.label(Lnf)
    a(f"s_lshl_b32 {S(S_T1)}, {S(S_SEG)}, 5")
    a(f"s_add_u32 {S(S_T1)}, {S(S_T1)}, {S(S_H)}")
    a(f"s_mov_b32 {S(46)}, {S(S_T1)}")
    a(f"s_lshl_b32 {S(S_T1)}, {S(S_T1)}, 2")
    a(f"s_add_u32 {S(45)}, {S(S_T1)}, {FLAG_OFF}")
    def w0_polls(name, cond):
        Lw0 = a.newlabel("L_w2_w0")
        a(f"s_cmp_eq_u32 {S(S_W)}, 0")
        a(f"s_cbranch_scc0 {Lw0}")
        poll_word(a, SRD_WS, S(47), cond, T3, name, sleep=2)
        a.label(Lw0)
        a("s_barrier")
    a(f"s_mov_b32 {S(47)}, {S(45)}")
    w0_polls("kv", f"s_cmp_eq_u32 {S(S_T0)}, 1")
    a(f"s_add_u32 {S(47)}, {S(45)}, {QFL_OFF - FLAG_OFF}")
    w0_polls("q", f"s_cmp_eq_u32 {S(S_T0)}, 1")
    a(f"s_mov_b32 {S(47)}, {S(45)}")
    QF, KF0, KF1, VF, REC, VMR = 32, 48, 64, 80, 96, 98
    a(f"s_lshl_b32 {S(45)}, {S(46)}, 13")
    a(f"s_lshr_b32 {S(S_T0)}, {S(S_W)}, 1")
    a(f"s_lshl_b32 {S(S_T0)}, {S(S_T0)}, 12")
    a(f"s_add_u32 {S(S_T1)}, {S(45)}, {S(S_T0)}")
    a(f"s_add_u32 {S(S_T1)}, {S(S_T1)}, {QF_OFF}")
    for u in range(4):
        a(f"buffer_load_dwordx4 {V(QF+4*u,4)}, {V(L16)}, {S(SRD_WS,4)}, {S(S_T1)} offen offset:{u*1024} sc1")
    a(f"s_add_u32 {S(S_T1)}, {S(45)}, {KF_OFF}")
    for u in range(4):
        a(f"buffer_load_dwordx4 {V(KF0+4*u,4)}, {V(L16)}, {S(SRD_WS,4)}, {S(S_T1)} offen offset:{u*1024} sc1")
    a(f"s_add_u32 {S(S_T1)}, {S(S_T1)}, 4096")
    for u in range(4):
        a(f"buffer_load_dwordx4 {V(KF1+4*u,4)}, {V(L16)}, {S(SRD_WS,4)}, {S(S_T1)} offen offset:{u*1024} sc1")
    a(f"s_and_b32 {S(S_T0)}, {S(S_W)}, 1")
    a(f"s_lshl_b32 {S(S_T2)}, {S(S_T0)}, 12")
    a(f"s_add_u32 {S(S_T1)}, {S(45)}, {S(S_T2)}")
    a(f"s_add_u32 {S(S_T1)}, {S(S_T1)}, {VF_OFF}")
    for t in range(4):
        a(f"buffer_load_dwordx4 {V(VF+4*t,4)}, {V(L16)}, {S(SRD_WS,4)}, {S(S_T1)} offen offset:{t*1024} sc1")
    a(f"s_add_u32 {S(47)}, {S(47)}, {KVMF_OFF - FLAG_OFF}")
    w0_polls("kvm", f"s_cmp_lg_u32 {S(S_T0)}, 0")
    a(f"s_lshl_b32 {S(45)}, {S(46)}, 12")
    a(f"s_add_u32 {S(45)}, {S(45)}, {KVM_OFF}")
    a(f"s_lshl_b32 {S(S_T1)}, {S(S_W)}, 10")
    a(f"s_add_u32 {S(S_T1)}, {S(S_T1)}, {S(45)}")
    a(f"buffer_load_dwordx2 {V(REC,2)}, {V(L16)}, {S(SRD_WS,4)}, {S(S_T1)} offen sc1")
    a(f"s_and_b32 {S(S_T0)}, {S(S_W)}, 1")
    a(f"s_lshl_b32 {S(S_T1)}, {S(S_T0)}, 11")
    a(f"s_add_u32 {S(S_T1)}, {S(S_T1)}, {S(45)}")
    for k in range(2):
        a(f"buffer_load_dwordx2 {V(VMR+2*k,2)}, {V(L16)}, {S(SRD_WS,4)}, {S(S_T1)} offen offset:{k*1024+8} sc1")
    a("s_waitcnt vmcnt(2)")
    a(f"ds_write_b32 {V(A_KW)}, {V(REC)}")
    a(f"ds_write_b32 {V(A_KW)}, {V(REC+1)} offset:512")
    a("s_waitcnt vmcnt(0) lgkmcnt(0)")
    a("s_barrier")
    KM = 104
    for u in range(4):
        for f in range(2):
            a(f"ds_read_b64_tr_b16 {V(KM+4*u+2*f,2)}, {V(A_TRK)} offset:{u*1024 + f*512}")
    ST0, ST1, SM = 20, 24, 28
    for u in range(4):
        a(f"v_mfma_f32_16x16x32_bf16 {V(ST0,4)}, {V(KF0+4*u,4)}, {V(QF+4*u,4)}, {'0' if u == 0 else V(ST0,4)}")
        a(f"v_mfma_f32_16x16x32_bf16 {V(ST1,4)}, {V(KF1+4*u,4)}, {V(QF+4*u,4)}, {'0' if u == 0 else V(ST1,4)}")
    a("s_waitcnt lgkmcnt(0)")
    for u in range(4):
        a(f"v_mfma_f32_16x16x32_bf16 {V(SM,4)}, {V(KM+4*u,4)}, {V(QF+4*u,4)}, {'0' if u == 0 else V(SM,4)}")
    NEG, MX, MX2, LS, LS2 = 120, 121, 122, 123, 124
    a(f"v_mov_b32 {V(NEG)}, 0xf149f2ca")
    a("s_nop 6")
    for r in range(4):
        a(f"v_cndmask_b32 {V(ST0+r)}, {V(NEG)}, {V(ST0+r)}, {S(S_M0+2*r,2)}")
        a(f"v_cndmask_b32 {V(ST1+r)}, {V(NEG)}, {V(ST1+r)}, {S(S_M1+2*r,2)}")
    SV = [ST0, ST0+1, ST0+2, ST0+3, ST1, ST1+1, ST1+2, ST1+3, SM, SM+1]
    a(f"v_max3_f32 {V(MX)}, {V(SV[0])}, {V(SV[1])}, {V(SV[2])}")
    a(f"v_max3_f32 {V(MX2)}, {V(SV[3])}, {V(SV[4])}, {V(SV[5])}")
    a(f"v_max3_f32 {V(MX)}, {V(MX)}, {V(SV[6])}, {V(SV[7])}")
    a(f"v_max3_f32 {V(MX2)}, {V(MX2)}, {V(SV[8])}, {V(SV[9])}")
    a(f"v_max_f32 {V(MX)}, {V(MX)}, {V(MX2)}")
    for sw in ("v_permlane32_swap_b32", "v_permlane16_swap_b32"):
        a(f"v_mov_b32 {V(MX2)}, {V(MX)}")
        a("s_nop 1")
        a(f"{sw} {V(MX)}, {V(MX2)}")
        a(f"v_max_f32 {V(MX)}, {V(MX)}, {V(MX2)}")
    a(f"v_mul_f32 {V(MX)}, {S(S_C)}, {V(MX)}")
    for k in range(10):
        a(f"v_fma_f32 {V(SV[k])}, {V(SV[k])}, {S(S_C)}, -{V(MX)}")
    for k in range(10):
        a(f"v_exp_f32 {V(SV[k])}, {V(SV[k])}")
    PT, PM0, PM1 = 32, 36, 38
    a("s_nop 0")
    for k in range(4):
        a(f"v_cvt_pk_bf16_f32 {V(PT+k)}, {V(SV[2*k])}, {V(SV[2*k+1])}")
    a(f"v_cvt_pk_bf16_f32 {V(PM0)}, {V(SV[8])}, {V(SV[9])}")
    a(f"v_cvt_pk_bf16_f32 {V(PM1+1)}, {V(SV[8])}, {V(SV[9])}")
    a(f"v_mov_b32 {V(PM0+1)}, 0")
    a(f"v_mov_b32 {V(PM1)}, 0")
    OA = 48
    a("s_nop 1")
    for t in range(4):
        a(f"v_mfma_f32_16x16x32_bf16 {V(OA+4*t,4)}, {V(VF+4*t,4)}, {V(PT,4)}, 0")
    for t in range(4):
        a(f"v_mfma_f32_16x16x16_bf16 {V(OA+4*t,4)}, {V(VMR+2*(t>>1),2)}, {V(PM0 if t % 2 == 0 else PM1,2)}, {V(OA+4*t,4)}")
    a(f"v_add_f32 {V(LS)}, {V(SV[0])}, {V(SV[1])}")
    for k in range(2, 10):
        a(f"v_add_f32 {V(LS)}, {V(LS)}, {V(SV[k])}")
    for sw in ("v_permlane32_swap_b32", "v_permlane16_swap_b32"):
        a(f"v_mov_b32 {V(LS2)}, {V(LS)}")
        a("s_nop 1")
        a(f"{sw} {V(LS)}, {V(LS2)}")
        a(f"v_add_f32 {V(LS)}, {V(LS)}, {V(LS2)}")
    a(f"v_rcp_f32 {V(LS)}, {V(LS)}")
    a("s_nop 3")
    for k in range(16):
        a(f"v_mul_f32 {V(OA+k)}, {V(OA+k)}, {V(LS)}")
    for t in range(4):
        a(f"v_cvt_pk_bf16_f32 {V(OA+4*t)}, {V(OA+4*t)}, {V(OA+4*t+1)}")
        a(f"v_cvt_pk_bf16_f32 {V(OA+4*t+1)}, {V(OA+4*t+2)}, {V(OA+4*t+3)}")
        a(f"ds_write_b64 {V(A_OW)}, {V(OA+4*t,2)} offset:{(t>>1)*1024 + (t&1)*8}")
    a("s_waitcnt lgkmcnt(0)")
    a("s_barrier")
    OF = 64
    for tt in range(2):
        for u in range(4):
            a(f"ds_read_b128 {V(OF+4*(tt*4+u),4)}, {V(L16)} offset:{O_LDS + (tt*4+u)*1024}")
    a("s_waitcnt lgkmcnt(0)")
    for tt in range(2):
        for tau in range(8):
            for u in range(4):
                acc = V(FA + (tt*8+tau)*4, 4)
                a(f"v_mfma_f32_16x16x32_bf16 {acc}, {A((tau*4+u)*4,4)}, {V(OF+4*(tt*4+u),4)}, {acc}")
    a("s_nop 7")
    S_SLOT = 47
    a(f"s_and_b32 {S(S_T0)}, {S(S_J)}, 1")
    a(f"s_lshl_b32 {S(S_T0)}, {S(S_T0)}, 20")
    a(f"s_lshl_b32 {S(S_T1)}, {S(S_TEAM)}, 21")
    a(f"s_add_u32 {S(S_T0)}, {S(S_T0)}, {S(S_T1)}")
    a(f"s_add_u32 {S(S_SLOT)}, {S(S_T0)}, {W2P_OFF}")
    a(f"s_lshl_b32 {S(S_T0)}, {S(S_H)}, 10")
    a(f"s_lshl_b32 {S(S_T1)}, {S(S_W)}, 8")
    a(f"s_add_u32 {S(S_T0)}, {S(S_T0)}, {S(S_T1)}")
    a(f"s_add_u32 {S(S_T0)}, {S(S_T0)}, {S(S_SLOT)}")
    PKD = 32
    for tt in range(2):
        for tp in range(4):
            o = PKD + 4 * ((tt * 4 + tp) % 8)
            for k in range(2):
                acc = FA + (tt*8 + 2*tp + k) * 4
                a(f"v_cvt_pk_bf16_f32 {V(o+2*k)}, {V(acc)}, {V(acc+1)}")
                a(f"v_cvt_pk_bf16_f32 {V(o+2*k+1)}, {V(acc+2)}, {V(acc+3)}")
            a(f"buffer_store_dwordx4 {V(o,4)}, {V(G_PST)}, {S(SRD_WS,4)}, {S(S_T0)} offen offset:{tp*64} {PSTF}")
        if tt == 0: a(f"s_add_u32 {S(S_T0)}, {S(S_T0)}, {16*32768}")
    XR = 64
    a(f"s_lshl_b32 {S(S_T1)}, {S(S_SEG)}, 5")
    a(f"s_add_u32 {S(S_T1)}, {S(S_T1)}, {S(S_H)}")
    a(f"s_lshl_b32 {S(46)}, {S(S_T1)}, 10")
    a(f"buffer_load_dwordx2 {V(XR,2)}, {V(G_OUT)}, {S(SRD_A,4)}, {S(46)} offen")
    a("s_waitcnt vmcnt(0)")
    a("s_barrier")
    a(f"s_add_u32 {S(S_J)}, {S(S_J)}, 1")
    Lf = a.newlabel("L_w2_flag")
    a(f"s_lshl_b32 {S(45)}, {S(S_TEAM)}, 7")
    a(f"s_add_u32 {S(45)}, {S(45)}, {W2F_OFF}")
    a(f"s_cmp_eq_u32 {S(S_W)}, 0")
    a(f"s_cbranch_scc0 {Lf}")
    a(f"v_mov_b32 {V(T3)}, {S(S_J)}")
    a(f"s_lshl_b32 {S(S_T0)}, {S(S_H)}, 2")
    a(f"s_add_u32 {S(S_T0)}, {S(S_T0)}, {S(45)}")
    a(f"buffer_store_dword {V(T3)}, off, {S(SRD_WS,4)}, {S(S_T0)}")
    a.label(Lf)
    Lp = a.newlabel("L_w2_poll"); Ld = Lp + "_d"
    a(f"s_mov_b32 {S(S_CNT)}, 0")
    a.label(Lp)
    a(f"s_cmp_eq_u32 {S(S_FAIL)}, 1")
    a(f"s_cbranch_scc1 {Ld}")
    a(f"buffer_load_dword {V(T2)}, {V(7)}, {S(SRD_WS,4)}, {S(45)} offen sc1")
    a("s_waitcnt vmcnt(0)")
    a(f"v_cmp_gt_u32 vcc, {S(S_J)}, {V(T2)}")
    a(f"s_cbranch_vccz {Ld}")
    a("s_sleep 1")
    a(f"s_add_u32 {S(S_CNT)}, {S(S_CNT)}, 1")
    a(f"s_cmp_lt_u32 {S(S_CNT)}, {SPIN_MAX}")
    a(f"s_cbranch_scc1 {Lp}")
    a(f"s_mov_b32 {S(S_FAIL)}, 1")
    a.label(Ld)
    IN = 32
    a(f"s_lshl_b32 {S(S_T0)}, {S(S_H)}, 15")
    a(f"s_lshl_b32 {S(S_T1)}, {S(S_W)}, 8")
    a(f"s_add_u32 {S(S_T0)}, {S(S_T0)}, {S(S_T1)}")
    a(f"s_add_u32 {S(S_T0)}, {S(S_T0)}, {S(S_SLOT)}")
    for i in range(8):
        a(f"buffer_load_dwordx4 {V(IN+4*i,4)}, {V(G_PLD)}, {S(SRD_WS,4)}, {S(S_T0)} offen sc1")
        if i < 7: a(f"s_add_u32 {S(S_T0)}, {S(S_T0)}, 4096")
    RA = 68
    for i in range(8):
        a(f"s_waitcnt vmcnt({7-i})")
        a(f"v_mfma_f32_16x16x32_bf16 {V(RA,4)}, {V(SEL,4)}, {V(IN+4*i,4)}, {'0' if i == 0 else V(RA,4)}")
    a(f"v_lshlrev_b32 {V(72)}, 16, {V(XR)}")
    a(f"v_and_b32 {V(73)}, 0xffff0000, {V(XR)}")
    a(f"v_lshlrev_b32 {V(74)}, 16, {V(XR+1)}")
    a(f"v_and_b32 {V(75)}, 0xffff0000, {V(XR+1)}")
    a("s_nop 4")
    for r in range(4):
        a(f"v_add_f32 {V(RA+r)}, {V(RA+r)}, {V(72+r)}")
    a(f"v_cvt_pk_bf16_f32 {V(RA)}, {V(RA)}, {V(RA+1)}")
    a(f"v_cvt_pk_bf16_f32 {V(RA+1)}, {V(RA+2)}, {V(RA+3)}")
    a(f"buffer_store_dwordx2 {V(RA,2)}, {V(G_OUT)}, {S(SRD_B,4)}, {S(46)} offen {OSTF}")
    a(f"s_add_u32 {S(S_SEG)}, {S(S_SEG)}, {NTEAM}")
    a(f"s_cmp_lt_u32 {S(S_SEG)}, 64")
    a("s_cbranch_scc1 L_w2_loop")
    a("s_waitcnt vmcnt(0)")
```

```python
import sys
from asm import *
from common import *
import rec3 as rec
import wk
def build(dbg=False, timing=False, stamps=False):
    a = Asm()
    if stamps: a("s_memrealtime s[86:87]")
    entry(a)
    if stamps: a("s_memrealtime s[92:93]")
    a("s_cmp_eq_u32 s6, 0")
    a("s_cbranch_scc0 L_worker")
    rec.prologue(a, dbg)
    if stamps:
        a("s_memrealtime s[94:95]")
        a("s_memtime s[88:89]")
        a("s_waitcnt lgkmcnt(0)")
        a("s_mov_b32 s93, s88")
    rec.loop(a, dbg, timing)
    if timing:
        for k in range(8): a(f"v_mov_b32 v{24+k}, s{rec.TACC+k}")
        a("s_lshl_b32 s40, s4, 2")
        a("s_add_u32 s40, s40, s5")
        a("s_lshl_b32 s40, s40, 5")
        a(f"s_add_u32 s40, s40, {DBG_OFF + 0x110000}")
        a("buffer_store_dwordx4 v[24:27], off, s[8:11], s40")
        a("buffer_store_dwordx4 v[28:31], off, s[8:11], s40 offset:16")
        a("s_waitcnt vmcnt(0)")
    if stamps:
        a("s_memtime s[88:89]")
        a("s_waitcnt lgkmcnt(0)")
        a("s_sub_u32 s17, s88, s93")
    a("s_branch L_fin_all")
    a.label("L_worker")
    wk.w0(a)
    a("s_cmp_ge_u32 s6, 4")
    a("s_cbranch_scc1 L_w2")
    a("s_cmp_ge_u32 s6, 3")
    a("s_cbranch_scc1 L_w1q")
    wk.w1(a, "kv")
    a("s_branch L_w1_end")
    a.label("L_w1q")
    wk.w1(a, "q")
    a.label("L_w1_end")
    if "time" in wk.OPT:
        a("s_mov_b32 s94, s60")
        a("s_mov_b32 s17, s58")
        a("s_mov_b32 s86, s62")
    else:
        a("s_mov_b32 s94, s92")
    a("s_branch L_fin_all")
    a.label("L_w2")
    wk.w0_ln(a)
    if "now2" not in wk.OPT: wk.w2(a)
    a("s_mov_b32 s94, s92")
    a.label("L_fin_all")
    if "wbl2" in wk.OPT:
        a("buffer_wbl2 sc1")
        a("s_waitcnt vmcnt(0)")
    if stamps:
        a("s_memrealtime s[90:91]")
        a("s_waitcnt lgkmcnt(0)")
        a("s_cmp_eq_u32 s5, 0")
        a("s_cbranch_scc0 L_end")
        a("v_mov_b32 v20, s92")
        a("v_mov_b32 v21, s94")
        a("v_mov_b32 v22, s90")
        a("v_mov_b32 v23, s17")
        a("v_mov_b32 v24, s86")
        a("s_lshl_b32 s40, s6, 5")
        a("s_add_u32 s40, s40, s4")
        a("s_lshl_b32 s40, s40, 4")
        a(f"s_add_u32 s40, s40, {DBG_OFF + 0x200000}")
        a("buffer_store_dwordx4 v[20:23], off, s[8:11], s40")
        a("s_lshl_b32 s41, s6, 5")
        a("s_add_u32 s41, s41, s4")
        a("s_lshl_b32 s41, s41, 2")
        a(f"s_add_u32 s41, s41, {DBG_OFF + 0x210000}")
        a("buffer_store_dword v24, off, s[8:11], s41")
        a("s_waitcnt vmcnt(0)")
    a.label("L_end")
    a("s_endpgm")
    return a
if __name__ == "__main__":
    out = sys.argv[1]
    for x in sys.argv:
        if x.startswith("p:"):
            k, v = x[2:].split("="); rec.PARAM[k] = int(v) if v.isdigit() else v
    rec.PARAM.setdefault("pre1", 0)
    rec.OPT = set(x[4:] for x in sys.argv if x.startswith("opt:"))
    wk.OPT = set(x[5:] for x in sys.argv if x.startswith("wopt:"))
    if "pplain" in wk.OPT: wk.PSTF = ""
    if "oplain" in wk.OPT: wk.OSTF = ""
    t = Asm(); wk.w2(t); check(t.lines, "w2")
    t = Asm(); wk.w1(t, "kv"); check(t.lines, "w1kv")
    t = Asm(); wk.w1(t, "q"); check(t.lines, "w1q")
    a = build(dbg="dbg" in sys.argv, timing="timing" in sys.argv, stamps="stamps" in sys.argv)
    a.lines, st = align_pass(a.lines, min_run=int(next((x[3:] for x in sys.argv if x.startswith('mr:')), 6))); print("align", st, "lines", len(a.lines))
    txt = HEADER.format(name=NAME) + a.text() + FOOTER.format(name=NAME)
    open(out, "w").write(txt)
    print("bytes", len(txt))
```

```python
from asm import *
from layout import *

IDX, A_MF, A_WQ0, A_WQ1, HI16, A_VX, A_QW, A_KW, A_TRQ, A_TRK, A_OW, G_PST = range(12)
G_PUB, V_FL = 12, 13
ZERO = 14
SV1 = 15
MF = 16
RING = 48
ACCQ, ACCK, ACCV = 104, 112, 120
WO = 128
KXF = 64
QF = (96, 100, 48, 52)
KV4 = 56
SENT = 60
PT = 116
OACC = 96
OF = 48

S_H, S_W = 4, 5
SRD_WS = 8
S_STEP = 16
S_FAIL = 17
S_CNT = 18
S_C = 20
S_ODD = 22
S_PST = 24
S_PLD = 28
S_MLD = 30
S_PUB = 32
S_KVM = 34
S_KD = 35
S_VD = 36
S_FLG = 37
S_KVMF = 38
S_SEL = 56
S_T0, S_T1, S_T2 = 41, 42, 43
S_FLG0 = 19
S_TM = 44
SRD_W = 48
SRD_DBG = 52
SPIN_MAX = 1 << 19
FAST = False
OPT = set()

C_SCALE = (128 ** -0.5) * 1.4426950408889634


def f2u(x):
    import struct
    return struct.unpack("<I", struct.pack("<f", x))[0]


def weave(a, mf, fill, per=1):
    fill = list(fill)
    for m in mf:
        a(m)
        for _ in range(per):
            if fill:
                x = fill.pop(0)
                if x is not None:
                    a(x)
    for x in fill:
        if x is not None:
            a(x)


def wq_read(phi, half):
    T, tile = phi >> 1, phi & 1
    slot = phi % 7
    r = RING + 8 * slot + 4 * half
    base = A_WQ0 if T < 4 else A_WQ1
    off = (T & 3) * 16384 + tile * 2048 + half * 1024
    return f"ds_read_b128 {V(r,4)}, {V(base)} offset:{off}"


def lane_setup(a, l):
    a(f"v_and_b32 {V(l)}, 63, v0")


def emit_spin_check(a, lab_retry, lab_done):
    a(f"s_add_u32 {S(S_CNT)}, {S(S_CNT)}, 1")
    a(f"s_cmp_lt_u32 {S(S_CNT)}, {SPIN_MAX}")
    a(f"s_cbranch_scc1 {lab_retry}")
    a(f"s_mov_b32 {S(S_FAIL)}, 1")


def poll_word(a, srd, soff_text, cond_text, vtmp, name):
    L = a.newlabel("L_pw_" + name)
    D = L + "_d"
    a(f"s_mov_b32 {S(S_CNT)}, 0")
    a.label(L)
    a(f"s_cmp_eq_u32 {S(S_FAIL)}, 1")
    a(f"s_cbranch_scc1 {D}")
    a(f"buffer_load_dword {V(vtmp)}, off, {S(srd,4)}, {soff_text} sc1")
    a("s_waitcnt vmcnt(0)")
    a(f"v_readfirstlane_b32 {S(S_T0)}, {V(vtmp)}")
    a("s_nop 3")
    a(cond_text)
    a(f"s_cbranch_scc1 {D}")
    a("s_sleep 2")
    emit_spin_check(a, L, D)
    a.label(D)


EARLY = 29
C0_TARGET = 128

def first_kv(a):
    for x in kv_dma_list(KX_O, R_O[1]): a(x)
    a(f"s_add_u32 {S(S_FLG)}, {S(S_FLG)}, 128")
    a(f"buffer_load_dword {V(V_FL)}, off, {S(SRD_WS,4)}, {S(S_FLG)} sc1")


def prologue(a, dbg=False):
    L, N, G, T1, T2, T3 = 100, 101, 102, 103, 104, 105
    a(f"s_mov_b32 {S(S_FAIL)}, 0")
    a(f"v_and_b32 {V(L)}, 63, v0")
    a(f"v_and_b32 {V(N)}, 15, {V(L)}")
    a(f"v_lshrrev_b32 {V(G)}, 4, {V(L)}")
    for i in range(4):
        a(f"v_mov_b32 {V(20+i)}, -1")
    a(f"s_lshl_b32 {S(S_T0)}, {S(S_H)}, 13")
    a(f"s_lshl_b32 {S(S_T1)}, {S(S_W)}, 11")
    a(f"s_add_u32 {S(S_T0)}, {S(S_T0)}, {S(S_T1)}")
    a(f"s_add_u32 {S(S_T0)}, {S(S_T0)}, {P_OFF}")
    a(f"s_add_u32 {S(S_T1)}, {S(S_T0)}, 262144")
    a(f"v_lshlrev_b32 {V(T1)}, 4, {V(L)}")
    for i in range(2):
        a(f"buffer_store_dwordx4 {V(20,4)}, {V(T1)}, {S(SRD_WS,4)}, {S(S_T0)} offen offset:{i*1024}")
    a(f"v_lshlrev_b32 {V(T1)}, 13, {V(G)}")
    a(f"v_lshlrev_b32 {V(T2)}, 4, {V(N)}")
    a(f"v_add_u32 {V(T1)}, {V(T1)}, {V(T2)}")
    a(f"v_mov_b32 {V(T2)}, 0x7ff00000")
    a(f"v_cmp_gt_u32 vcc, 32, {V(L)}")
    a("s_nop 1")
    a(f"v_cndmask_b32 {V(T1)}, {V(T2)}, {V(T1)}, vcc")
    a(f"s_lshl_b32 {S(S_T0)}, {S(S_H)}, 8")
    a(f"s_add_u32 {S(S_T0)}, {S(S_T0)}, {M_OFF}")
    a(f"buffer_store_dwordx4 {V(20,4)}, {V(T1)}, {S(SRD_WS,4)}, {S(S_T0)} offen")
    a("s_load_dwordx2 s[56:57], s[0:1], 8")
    a("s_load_dwordx2 s[58:59], s[0:1], 16")
    a("s_load_dwordx2 s[60:61], s[0:1], 24")
    a("s_load_dwordx2 s[62:63], s[0:1], 32")
    a("s_load_dwordx2 s[64:65], s[0:1], 40")
    a(f"v_and_b32 {V(T1)}, 3, v0")
    a(f"v_lshlrev_b32 {V(T1)}, 11, {V(T1)}")
    a(f"v_bfe_u32 {V(T2)}, v0, 2, 1")
    a(f"v_lshlrev_b32 {V(T2)}, 6, {V(T2)}")
    a(f"v_add_u32 {V(T1)}, {V(T1)}, {V(T2)}")
    a(f"v_bfe_u32 {V(T2)}, v0, 3, 4")
    a(f"v_lshlrev_b32 {V(T2)}, 1, {V(T2)}")
    a(f"v_add_u32 {V(T1)}, {V(T1)}, {V(T2)}")
    a(f"v_lshrrev_b32 {V(T2)}, 7, v0")
    a(f"v_lshlrev_b32 {V(T2)}, 7, {V(T2)}")
    a(f"v_add_u32 {V(T1)}, {V(T1)}, {V(T2)}")
    a("s_waitcnt lgkmcnt(0)")
    a(f"s_mov_b32 {S(SRD_W)}, s56")
    a(f"s_and_b32 {S(SRD_W+1)}, s57, 0xffff")
    a(f"s_mov_b32 {S(SRD_W+2)}, 8192")
    a(f"s_mov_b32 {S(SRD_W+3)}, 0x20000")
    for k in range(4):
        for e, off in enumerate((0, 32, 1024, 1024 + 32)):
            a(f"buffer_load_ushort {V(64+4*k+e)}, {V(T1)}, {S(SRD_W,4)}, 0 offen offset:{k*256+off}")
    for dst, src in ((68, 60), (72, 62), (76, 64), (80, 58)):
        a(f"s_mov_b32 {S(dst)}, {S(src)}")
        a(f"s_and_b32 {S(dst+1)}, {S(src+1)}, 0xffff")
        a(f"s_mov_b32 {S(dst+2)}, 0x400000")
        a(f"s_mov_b32 {S(dst+3)}, 0x20000")
    a(f"s_and_b32 {S(S_T0)}, {S(S_W)}, 1")
    a(f"s_lshl_b32 {S(S_T0)}, {S(S_T0)}, 3")
    a(f"v_and_b32 {V(T1)}, 1, {V(G)}")
    a(f"v_lshlrev_b32 {V(T1)}, 1, {V(T1)}")
    a(f"v_or_b32 {V(T1)}, {S(S_T0)}, {V(T1)}")
    a(f"v_xor_b32 {V(T1)}, {V(T1)}, {V(N)}")
    a(f"s_lshl_b32 {S(S_T1)}, {S(S_W)}, 4")
    a(f"s_lshl_b32 {S(S_T2)}, {S(S_H)}, 8")
    for i in range(4):
        a(f"v_xor_b32 {V(T2)}, {4*(i&1)}, {V(T1)}")
        a(f"v_lshlrev_b32 {V(T2)}, 4, {V(T2)}")
        a(f"v_add_u32 {V(T3)}, {S(S_T1)}, {V(G)}")
        a(f"v_add_u32 {V(T3)}, {4*i}, {V(T3)}")
        a(f"v_lshlrev_b32 {V(24+i)}, 13, {V(T3)}")
        a(f"v_add_u32 {V(24+i)}, {V(24+i)}, {V(T2)}")
        a(f"v_add_u32 {V(24+i)}, {S(S_T2)}, {V(24+i)}")
        a(f"v_lshlrev_b32 {V(28+i)}, 10, {V(T3)}")
        a(f"v_add_u32 {V(28+i)}, {V(28+i)}, {V(T2)}")
    a(f"v_lshrrev_b32 {V(T1)}, 2, {V(N)}")
    a(f"v_and_b32 {V(T2)}, 3, {V(N)}")
    a(f"v_lshrrev_b32 {V(T3)}, 1, {V(G)}")
    a(f"v_lshlrev_b32 {V(32)}, 5, {V(T3)}")
    a(f"v_and_b32 {V(T3)}, 1, {V(G)}")
    a(f"v_lshlrev_b32 {V(33)}, 2, {V(T3)}")
    a(f"v_add_u32 {V(32)}, {V(32)}, {V(33)}")
    a(f"v_lshrrev_b32 {V(T3)}, 1, {V(T1)}")
    a(f"v_lshlrev_b32 {V(34)}, 4, {V(T3)}")
    a(f"v_add_u32 {V(32)}, {V(32)}, {V(34)}")
    a(f"v_lshlrev_b32 {V(34)}, 3, {V(T3)}")
    a(f"v_add_u32 {V(33)}, {V(33)}, {V(34)}")
    a(f"v_and_b32 {V(T3)}, 1, {V(T1)}")
    a(f"v_add_u32 {V(32)}, {V(32)}, {V(T3)}")
    a(f"v_lshlrev_b32 {V(34)}, 1, {V(T3)}")
    a(f"v_add_u32 {V(33)}, {V(33)}, {V(34)}")
    a(f"v_lshlrev_b32 {V(32)}, 8, {V(32)}")
    a(f"v_lshlrev_b32 {V(34)}, 3, {V(T2)}")
    a(f"v_add_u32 {V(32)}, {V(32)}, {V(34)}")
    a(f"v_lshlrev_b32 {V(33)}, 4, {V(33)}")
    for fp in range(2):
        a(f"s_lshl_b32 {S(S_T0)}, {S(S_W)}, 6")
        a(f"s_add_u32 {S(S_T0)}, {S(S_T0)}, {32*fp}")
        a(f"v_xor_b32 {V(35+fp)}, {S(S_T0)}, {V(33)}")
        a(f"v_add_u32 {V(35+fp)}, {V(35+fp)}, {V(32)}")
    a(f"s_lshl_b32 {S(S_T0)}, {S(S_W)}, 12")
    a(f"v_lshlrev_b32 {V(T1)}, 4, {V(L)}")
    a(f"v_add_u32 {V(A_WQ0)}, {S(S_T0)}, {V(T1)}")
    a(f"v_add_u32 {V(A_WQ1)}, 0x10000, {V(A_WQ0)}")
    a(f"v_add_u32 {V(HI16)}, {HI}, {V(T1)}")

    def persistent_setup():
        R_, C_ = T1, T2
        a(f"v_and_b32 {V(L)}, 63, v0")
        a(f"v_lshrrev_b32 {V(R_)}, 2, {V(N)}")
        a(f"v_and_b32 {V(C_)}, 3, {V(N)}")
        a(f"v_and_b32 {V(T3)}, 1, {V(L)}")
        a(f"v_cmp_eq_u32 vcc, 1, {V(T3)}")
        a(f"v_mov_b32 {V(IDX)}, 0x44444444")
        a(f"v_mov_b32 {V(T3)}, 0xeeeeeeee")
        a(f"v_cndmask_b32 {V(IDX)}, {V(IDX)}, {V(T3)}, vcc")
        a(f"v_lshrrev_b32 {V(T3)}, 1, {V(G)}")
        a(f"v_lshlrev_b32 {V(T3)}, 3, {V(T3)}")
        a(f"v_add_u32 {V(T3)}, {V(T3)}, {V(R_)}")
        a(f"v_lshlrev_b32 {V(A_MF)}, 6, {V(T3)}")
        a(f"v_and_b32 {V(T3)}, 1, {V(G)}")
        a(f"v_lshlrev_b32 {V(T3)}, 5, {V(T3)}")
        a(f"v_add_u32 {V(A_MF)}, {V(A_MF)}, {V(T3)}")
        a(f"v_lshlrev_b32 {V(T3)}, 3, {V(C_)}")
        a(f"v_add_u32 {V(A_MF)}, {V(A_MF)}, {V(T3)}")
        a(f"v_add_u32 {V(A_MF)}, {HI}, {V(A_MF)}")
        a(f"s_lshl_b32 {S(S_T0)}, {S(S_W)}, 11")
        a(f"v_add_u32 {V(A_VX)}, {S(S_T0)}, {V(HI16)}")
        a(f"s_lshl_b32 {S(S_T0)}, {S(S_W)}, 5")
        a(f"v_add_u32 {V(T3)}, {S(S_T0)}, {V(N)}")
        a(f"v_lshlrev_b32 {V(A_QW)}, 4, {V(T3)}")
        a(f"v_lshl_add_u32 {V(A_QW)}, {V(G)}, 2, {V(A_QW)}")
        a(f"v_add_u32 {V(A_QW)}, {HI}, {V(A_QW)}")
        a(f"v_lshlrev_b32 {V(A_KW)}, 5, {V(T3)}")
        a(f"v_add_u32 {V(T3)}, {V(G)}, {V(R_)}")
        a(f"v_and_b32 {V(T3)}, 3, {V(T3)}")
        a(f"v_lshl_add_u32 {V(A_KW)}, {V(T3)}, 3, {V(A_KW)}")
        a(f"v_add_u32 {V(A_KW)}, {HI}, {V(A_KW)}")
        a(f"v_lshl_add_u32 {V(T3)}, {V(G)}, 2, {V(R_)}")
        a(f"v_lshlrev_b32 {V(A_TRQ)}, 4, {V(T3)}")
        a(f"v_lshlrev_b32 {V(A_TRK)}, 5, {V(T3)}")
        a(f"v_and_b32 {V(T3)}, 1, {V(C_)}")
        a(f"v_lshl_add_u32 {V(A_TRQ)}, {V(T3)}, 3, {V(A_TRQ)}")
        a(f"v_add_u32 {V(A_TRQ)}, {HI}, {V(A_TRQ)}")
        a(f"v_add_u32 {V(T3)}, {V(C_)}, {V(G)}")
        a(f"v_and_b32 {V(T3)}, 3, {V(T3)}")
        a(f"v_lshl_add_u32 {V(A_TRK)}, {V(T3)}, 3, {V(A_TRK)}")
        a(f"v_add_u32 {V(A_TRK)}, {HI}, {V(A_TRK)}")
        a(f"v_lshrrev_b32 {V(T3)}, 1, {V(G)}")
        a(f"v_lshlrev_b32 {V(A_OW)}, 9, {V(T3)}")
        a(f"v_and_b32 {V(T3)}, 1, {V(G)}")
        a(f"v_lshl_add_u32 {V(A_OW)}, {V(T3)}, 3, {V(A_OW)}")
        a(f"v_and_b32 {V(T3)}, 7, {V(N)}")
        a(f"v_lshl_add_u32 {V(A_OW)}, {V(T3)}, 5, {V(A_OW)}")
        a(f"v_lshrrev_b32 {V(T3)}, 3, {V(N)}")
        a(f"v_lshl_add_u32 {V(A_OW)}, {V(T3)}, 4, {V(A_OW)}")
        a(f"s_lshr_b32 {S(S_T0)}, {S(S_W)}, 1")
        a(f"s_lshl_b32 {S(S_T0)}, {S(S_T0)}, 10")
        a(f"s_and_b32 {S(S_T1)}, {S(S_W)}, 1")
        a(f"s_lshl_b32 {S(S_T1)}, {S(S_T1)}, 8")
        a(f"s_add_u32 {S(S_T0)}, {S(S_T0)}, {S(S_T1)}")
        a(f"s_add_u32 {S(S_T0)}, {S(S_T0)}, {HI + O_O}")
        a(f"v_add_u32 {V(A_OW)}, {S(S_T0)}, {V(A_OW)}")
        a(f"s_lshl_b32 {S(S_T0)}, {S(S_W)}, 3")
        a(f"v_add_u32 {V(T3)}, {S(S_T0)}, {V(R_)}")
        a(f"v_lshlrev_b32 {V(G_PST)}, 13, {V(T3)}")
        a(f"v_bfe_u32 {V(T3)}, {V(N)}, 1, 1")
        a(f"v_lshl_add_u32 {V(G_PST)}, {V(T3)}, 12, {V(G_PST)}")
        if "norot" not in OPT:
            a(f"v_lshl_add_u32 {V(T3)}, {V(R_)}, 1, {V(T3)}")
            a(f"s_add_u32 {S(S_T0)}, {S(S_T0)}, {S(S_H)}")
            a(f"v_add_u32 {V(T3)}, {S(S_T0)}, {V(T3)}")
            a(f"v_and_b32 {V(T3)}, 31, {V(T3)}")
        else:
            a(f"v_mov_b32 {V(T3)}, {S(S_H)}")
        a(f"v_lshl_add_u32 {V(G_PST)}, {V(T3)}, 7, {V(G_PST)}")
        a(f"v_and_b32 {V(T3)}, 1, {V(N)}")
        a(f"v_lshl_add_u32 {V(G_PST)}, {V(T3)}, 6, {V(G_PST)}")
        a(f"v_lshl_add_u32 {V(G_PST)}, {V(G)}, 4, {V(G_PST)}")
        a(f"v_mov_b32 {V(ZERO)}, 0")
        a(f"v_and_b32 {V(T3)}, 8, {V(L)}")
        a(f"v_cmp_ne_u32 {S(S_ODD,2)}, 0, {V(T3)}")
        a(f"s_mov_b32 {S(S_C)}, {f2u(C_SCALE):#x}")
        a(f"s_mov_b32 {S(S_C+1)}, {f2u(C_SCALE):#x}")
        for par in range(2):
            for i in range(2):
                a(f"s_mov_b32 {S(S_PST+2*par+i)}, {P_OFF + i*32768}")
            a(f"s_mov_b32 {S(S_PUB+par)}, {M_OFF + par*8192}")
        a(f"s_lshl_b32 {S(S_T0)}, {S(S_H)}, 13")
        a(f"s_and_b32 {S(S_T1)}, {S(S_W)}, 1")
        a(f"s_lshl_b32 {S(S_T1)}, {S(S_T1)}, 12")
        a(f"s_add_u32 {S(S_T0)}, {S(S_T0)}, {S(S_T1)}")
        a(f"s_add_u32 {S(S_PLD)}, {S(S_T0)}, {P_OFF - HI}")
        a(f"s_add_u32 {S(S_KD)}, {S(S_T0)}, {KF_OFF - HI}")
        a(f"s_add_u32 {S(S_VD)}, {S(S_T0)}, {VF_OFF - HI}")
        a(f"s_lshl_b32 {S(S_T2)}, {S(S_W)}, 11")
        for par in range(2):
            a(f"s_add_u32 {S(S_MLD+par)}, {S(S_T2)}, {M_OFF + par*8192 - HI}")
        a(f"s_lshl_b32 {S(S_T0)}, {S(S_H)}, 12")
        a(f"s_lshl_b32 {S(S_T2)}, {S(S_W)}, 10")
        a(f"s_add_u32 {S(S_T0)}, {S(S_T0)}, {S(S_T2)}")
        a(f"s_add_u32 {S(S_KVM)}, {S(S_T0)}, {KVM_OFF - HI}")
        a(f"s_lshl_b32 {S(S_T0)}, {S(S_H)}, 2")
        a(f"s_add_u32 {S(S_FLG)}, {S(S_T0)}, {FLAG_OFF}")
        a(f"s_add_u32 {S(S_KVMF)}, {S(S_T0)}, {KVMF_OFF}")
        a(f"s_mov_b32 {S(S_STEP)}, 0")
        a(f"v_lshrrev_b32 {V(T3)}, 1, {V(G)}")
        a(f"v_lshlrev_b32 {V(G_PUB)}, 5, {V(T3)}")
        a(f"v_lshl_add_u32 {V(G_PUB)}, {V(C_)}, 3, {V(G_PUB)}")
        a(f"v_and_b32 {V(T3)}, 1, {V(G)}")
        a(f"v_lshl_add_u32 {V(G_PUB)}, {V(T3)}, 2, {V(G_PUB)}")
        a(f"v_bfe_u32 {V(T3)}, {V(N)}, 2, 1")
        a(f"v_lshl_add_u32 {V(G_PUB)}, {V(T3)}, 6, {V(G_PUB)}")
        a(f"s_lshl_b32 {S(S_T0)}, {S(S_H)}, 8")
        a(f"s_and_b32 {S(S_T2)}, {S(S_W)}, 1")
        a(f"s_lshl_b32 {S(S_T2)}, {S(S_T2)}, 7")
        a(f"s_add_u32 {S(S_T0)}, {S(S_T0)}, {S(S_T2)}")
        a(f"v_add_u32 {V(G_PUB)}, {S(S_T0)}, {V(G_PUB)}")
        a(f"v_and_b32 {V(T3)}, 8, {V(L)}")
        a(f"v_cmp_ne_u32 vcc, 0, {V(T3)}")
        a(f"v_mov_b32 {V(T3)}, 0x7ff00000")
        a("s_nop 0")
        a(f"v_cndmask_b32 {V(G_PUB)}, {V(G_PUB)}, {V(T3)}, vcc")
        a(f"v_bfe_u32 {V(T3)}, {V(N)}, 2, 1")
        a(f"v_lshlrev_b32 {V(T3)}, 4, {V(T3)}")
        a(f"v_mov_b32 {V(SV1)}, 0x3f80")
        a(f"v_lshlrev_b32 {V(SV1)}, {V(T3)}, {V(SV1)}")
        a(f"v_lshrrev_b32 {V(T3)}, 3, {V(N)}")
        a(f"v_lshlrev_b32 {V(T3)}, 1, {V(T3)}")
        a(f"v_and_b32 {V(106)}, 3, {V(N)}")
        a(f"v_add_u32 {V(T3)}, {V(T3)}, {V(106)}")
        a(f"v_bfe_u32 {V(106)}, {V(N)}, 1, 1")
        a(f"v_lshlrev_b32 {V(106)}, 4, {V(106)}")
        a(f"v_add_u32 {V(T3)}, {V(T3)}, {V(106)}")
        for rho in range(4):
            a(f"v_cmp_eq_u32 {S(S_SEL+2*rho,2)}, {rho}, {V(T3)}")

    def dma_chunk(i):
        slot = i & 7
        mat, j = i >> 3, i & 7
        for k in range(4):
            a(f"s_lshl_b32 {S(S_T0)}, {S(S_W)}, 12")
            a(f"s_add_u32 m0, {S(S_T0)}, {slot*16384 + k*1024}")
            if mat == 2:
                a(f"s_lshl_b32 {S(S_T1)}, {S(S_H)}, 17")
                a(f"s_add_u32 {S(S_T1)}, {S(S_T1)}, {(j>>2)*65536 + (j&3)*256}")
                a(f"buffer_load_dwordx4 {V(28+k)}, {S(76,4)}, {S(S_T1)} offen lds")
            else:
                srd = {0: 68, 1: 72, 3: 80}[mat]
                a(f"s_mov_b32 {S(S_T1)}, {j*524288}")
                a(f"buffer_load_dwordx4 {V(24+k)}, {S(srd,4)}, {S(S_T1)} offen lds")

    a(f"v_lshlrev_b32 {V(107)}, 3, v0")
    a(f"v_add_u32 {V(107)}, {HI + R_O[0]}, {V(107)}")
    for i in range(8):
        dma_chunk(i)
    persistent_setup()
    if "nocodepf" not in OPT:
        a("s_getpc_b64 s[66:67]")
        a.label("L_pc_ref")
        a(f"s_add_u32 s66, s66, L_recP_loop-L_pc_ref")
        a(f"s_addc_u32 s67, s67, 0")
        a(f"s_lshl_b32 {S(S_T0)}, {S(S_H)}, 10")
        a(f"s_lshl_b32 {S(S_T1)}, {S(S_W)}, 8")
        a(f"s_add_u32 {S(S_T0)}, {S(S_T0)}, {S(S_T1)}")
        a(f"v_lshlrev_b32 {V(108)}, 2, {V(L)}")
        a(f"v_add_u32 {V(108)}, {S(S_T0)}, {V(108)}")
        a(f"global_load_dword {V(109)}, {V(108)}, s[66:67]")
    S_DONE, S_TOK = 72, 73
    for i in range(32):
        slot = i & 7
        mat, j = i >> 3, i & 7
        later = min(i + 7, 31) - i
        a(f"s_waitcnt vmcnt({4*later})")
        a("s_barrier")
        if i == 0:
            Ls = a.newlabel("L_arr")
            a(f"s_cmp_eq_u32 {S(S_W)}, 0")
            a(f"s_cbranch_scc0 {Ls}")
            a(f"v_mov_b32 {V(T1)}, 1")
            a(f"s_mov_b64 exec, 1")
            a(f"s_mov_b32 {S(S_T0)}, 36")
            a(f"buffer_atomic_add {V(T1)}, off, {S(SRD_DBG,4)}, {S(S_T0)} sc1")
            a(f"s_mov_b64 exec, -1")
            a.label(Ls)
            for k in range(4):
                a(f"v_lshl_or_b32 {V(64+4*k)}, {V(65+4*k)}, 16, {V(64+4*k)}")
                a(f"v_lshl_or_b32 {V(65+4*k)}, {V(67+4*k)}, 16, {V(66+4*k)}")
                a(f"ds_write_b64 {V(107)}, {V(64+4*k,2)} offset:{k*2048}")
        if mat != 2:
            for fp in range(2):
                a(f"v_add_u32 {V(37+fp)}, {slot*16384}, {V(35+fp)}")
            for fp in range(2):
                for q in range(4):
                    off = (8 * (q >> 1) + 2 * (q & 1)) * 256
                    if mat == 0: dst = A((fp * 8 + j) * 8 + 2 * q, 2)
                    elif mat == 1: dst = A(128 + (fp * 8 + j) * 8 + 2 * q, 2)
                    else: dst = V(40 + 8 * fp + 2 * q, 2)
                    a(f"ds_read_b64_tr_b16 {dst}, {V(37+fp)} offset:{off}")
        else:
            Ls = a.newlabel("L_wo")
            T, wp = j >> 2, j & 3
            a(f"s_cmp_eq_u32 {S(S_W)}, {wp}")
            a(f"s_cbranch_scc0 {Ls}")
            for tau in range(8):
                a(f"v_xor_b32 {V(37)}, {32*tau}, {V(33)}")
                a(f"v_add_u32 {V(37)}, {V(37)}, {V(32)}")
                a(f"v_add_u32 {V(37)}, {slot*16384}, {V(37)}")
                for q in range(4):
                    off = (8 * (q >> 1) + 2 * (q & 1)) * 256
                    a(f"ds_read_b64_tr_b16 {V(WO + (tau*2+T)*8 + 2*q, 2)}, {V(37)} offset:{off}")
                if tau & 1:
                    a("s_waitcnt lgkmcnt(0)")
            a.label(Ls)
        a("s_waitcnt lgkmcnt(0)")
        a("s_barrier")
        if i == EARLY - 3:
            a(f"s_mov_b32 {S(S_T0)}, 32")
            a(f"buffer_load_dwordx4 {V(108,4)}, off, {S(SRD_DBG,4)}, {S(S_T0)} sc1")
        if i == EARLY:
            Le = a.newlabel("L_early")
            a("s_waitcnt vmcnt(0)")
            for k in range(3): a(f"v_readfirstlane_b32 s{68+k}, {V(108+k)}")
            a("s_nop 3")
            a(f"s_cmp_ge_u32 s69, 32")
            a(f"s_cselect_b32 {S(S_TOK)}, 1, 0")
            a(f"s_mov_b32 {S(S_DONE)}, 0")
            a(f"s_cmp_lt_u32 {S(S_W)}, 2")
            a(f"s_cbranch_scc1 {Le}")
            a(f"s_cmp_lt_u32 s68, {C0_TARGET}")
            a(f"s_cbranch_scc1 {Le}")
            a(f"s_lshr_b32 s70, s70, {S(S_H)}")
            a(f"s_bitcmp1_b32 s70, 0")
            a(f"s_cbranch_scc0 {Le}")
            first_kv(a)
            a(f"s_mov_b32 {S(S_DONE)}, 1")
            a.label(Le)
        if mat == 3:
            base = A_WQ0 if j < 4 else A_WQ1
            for fp in range(2):
                for half in range(2):
                    a(f"ds_write_b128 {V(base)}, {V(40+8*fp+4*half,4)} offset:{(j&3)*16384 + fp*2048 + half*1024}")
            a("s_waitcnt lgkmcnt(0)")
        if i + 8 < 32:
            dma_chunk(i + 8)

    Lp = a.newlabel("L_nof")
    a(f"s_cmp_lt_u32 {S(S_W)}, 2")
    a(f"s_cbranch_scc1 {Lp}")
    a(f"s_cmp_eq_u32 {S(S_DONE)}, 1")
    a(f"s_cbranch_scc1 {Lp}")
    poll_word(a, SRD_DBG, "32", f"s_cmp_ge_u32 {S(S_T0)}, {C0_TARGET}", T3, "c0")
    poll_word(a, SRD_WS, S(S_FLG), f"s_cmp_eq_u32 {S(S_T0)}, 1", T3, "kv0")
    first_kv(a)
    a.label(Lp)
    Lt = a.newlabel("L_tok")
    a(f"s_cmp_eq_u32 {S(S_TOK)}, 1")
    a(f"s_cbranch_scc1 {Lt}")
    poll_word(a, SRD_DBG, "36", f"s_cmp_ge_u32 {S(S_T0)}, 32", T3, "team")
    a.label(Lt)
    a("s_barrier")
    emit_idle_prep(a)
    a("s_waitcnt vmcnt(0) lgkmcnt(0)")


PARAM = dict(pre1=0, pre2=0)
ZT = (MF + 24, MF + 25)

def dma_list(lds_off, sreg):
    out = [f"s_and_b32 {S(S_T1)}, {S(S_W)}, 1",
           f"s_lshl_b32 {S(S_T1)}, {S(S_T1)}, 12",
           f"s_add_u32 m0, {S(S_T1)}, {HI + lds_off}",
           "s_nop 0"]
    for i in range(4):
        out.append(f"buffer_load_dwordx4 {V(HI16)}, {S(SRD_WS,4)}, {S(sreg)} offen offset:{i*1024} {PARAM.get('dmaf','')} lds")
    out.append(f"s_add_u32 {S(sreg)}, {S(sreg)}, 262144")
    return out

def kv_dma_list(kx_off, vx_off):
    return dma_list(kx_off, S_KD) + dma_list(vx_off, S_VD)


def idle_prep_list():
    out = []
    for phi in range(7):
        for half in range(2):
            out.append(wq_read(phi, half))
    for r in range(ACCQ, ACCV, 2):
        out.append(f"v_mov_b64 {V(r,2)}, 0")
    return out

def emit_idle_prep(a):
    for x in idle_prep_list(): a(x)


TS = 64
TACC = 84
def stamp(a, k, timing):
    if timing: a(f"s_memtime {S(TS+2*k,2)}")
    if timing and "trace" in OPT and k == 6: a(f"s_memrealtime {S(TS+14,2)}")
def stamp_acc(a, n, timing):
    if not timing: return
    for k in range(n - 1):
        a(f"s_sub_u32 {S(S_T0)}, {S(TS+2*(k+1))}, {S(TS+2*k)}")
        a(f"s_add_u32 {S(TACC+k)}, {S(TACC+k)}, {S(S_T0)}")


def smf(d, aa, b):
    return f"v_smfmac_f32_16x16x64_bf16 {V(d,4)}, {V(aa,4)}, {b}, {V(IDX)}"

def delay(a, cyc):
    n = cyc // 64
    for _ in range(n): a("s_nop 15")
    r = (cyc % 64) // 4
    if r: a(f"s_nop {r-1}")


def step(a, par, role, dbg=False, timing=False):
    P = role == "P"
    MR, VR = R_O[par], R_O[par ^ 1]
    LEND = a.newlabel("L_stepend")
    def tp(k):
        if f"trunc{k}" in OPT:
            if par == 1:
                a(f"s_cmp_eq_u32 {S(S_STEP)}, 63")
                a(f"s_cbranch_scc1 L_rec_fin")
            a(f"s_branch {LEND}")
    for T in range(8):
        for hf in range(2):
            a(f"ds_read_b64_tr_b16 {V(MF+4*T+2*hf,2)}, {V(A_MF)} offset:{MR + T*1024 + hf*256}")
    tp(0)
    order = []
    for T in range(8):
        if T < 7:
            order += [("q", 0, T), ("k", 0, T), ("q", 1, T), ("k", 1, T)]
        else:
            order += [("q", 0, T), ("q", 1, T), ("k", 0, T), ("k", 1, T)]
    mf = []
    for kind, tile, T in order:
        if kind == "q":
            mf.append(smf(ACCQ + 4 * tile, MF + 4 * T, V(RING + 8 * ((2 * T + tile) % 7), 8)))
        else:
            mf.append(smf(ACCK + 4 * tile, MF + 4 * T, A((tile * 8 + T) * 8, 8)))
    qpos = {2 * T + tile: mu for mu, (kind, tile, T) in enumerate(order) if kind == "q"}
    fillers = {}
    for phi in range(9):
        mu = qpos[phi]
        fillers[mu] = (wq_read(phi + 7, 0), ("wq", phi + 7))
        fillers[mu + 1] = (wq_read(phi + 7, 1), ("wq", phi + 7))
    kx = [(u, tt) for u in range(4) for tt in range(2)]
    for n_, (u, tt) in enumerate(kx):
        mu = qpos[9 + (n_ >> 1)] + (n_ & 1)
        fillers[mu] = (f"ds_read_b128 {V(KXF + 4*(2*u+tt), 4)}, {V(HI16)} offset:{KX_O + (tt*4+u)*1024}", ("kx", n_))
    tags = [("mf", T) for T in range(8) for _ in range(2)]
    waited = -1
    BM = PARAM.get("bm", 8)
    vx = []
    fx = (not P) and "nofx" not in OPT
    def early_extras():
        if fx:
            Lok = a.newlabel("L_kvok")
            a(f"v_readfirstlane_b32 {S(S_T0)}, {V(V_FL)}")
            a(mf[2]);
            if 2 in fillers:
                a(fillers[2][0]); tags.append(fillers[2][1])
            a(f"s_cmp_eq_u32 {S(S_T0)}, 1")
            a(f"s_cbranch_scc1 {Lok}")
            if not FAST:
                poll_word(a, SRD_WS, S(S_FLG), f"s_cmp_eq_u32 {S(S_T0)}, 1", V_FL, "kv")
            a.label(Lok)
            return True
        if P and "nokvm" not in OPT:
            Ls = a.newlabel("L_kvmf")
            a(f"s_cmp_eq_u32 {S(S_KVMF+1)}, 0")
            a(f"s_cbranch_scc1 {Ls}")
            a(f"buffer_store_dword {V(IDX)}, off, {S(SRD_WS,4)}, {S(S_KVMF)} sc1")
            a(f"s_add_u32 {S(S_KVMF)}, {S(S_KVMF)}, 128")
            a.label(Ls)
            a(f"s_mov_b32 {S(S_KVMF+1)}, {S(S_KVMF+2)}")
        return False
    if fx: vx = dma_list(MR, S_VD)
    for mu, (kind, tile, T) in enumerate(order):
        if mu == 2:
            if early_extras(): continue
        if mu == BM:
            n_after = min(len(tags) - 16, 15)
            a(f"s_waitcnt lgkmcnt({n_after})")
            waited = max(waited, len(tags) - 1 - n_after)
            a("s_barrier")
        need = [("mf", T)]
        if kind == "q" and 2 * T + tile >= 7: need.append(("wq", 2 * T + tile))
        idxs = [k for k, tg in enumerate(tags) if tg in need]
        last = max(idxs)
        if last > waited:
            n_after = min(len(tags) - 1 - last, 15)
            a(f"s_waitcnt lgkmcnt({n_after})")
            waited = len(tags) - 1 - n_after
        a(mf[mu])
        if mu in fillers:
            a(fillers[mu][0]); tags.append(fillers[mu][1])
        if mu == 1:
            a("s_waitcnt vmcnt(0)")
        if 3 <= mu <= 6: a(f"v_mov_b64 {V(ACCV + 2*(mu-3), 2)}, 0")
        if mu == 30: a(f"v_add_f32 {V(ACCQ)}, {V(ACCQ)}, {V(ACCQ+1)}")
        if mu == 31: a(f"v_add_f32 {V(ACCQ+2)}, {V(ACCQ+2)}, {V(ACCQ+3)}")
        if mu >= BM and vx and (mu - BM) % PARAM.get("vsp", 4) == 0:
            while vx:
                x = vx.pop(0); a(x)
                if x.startswith("buffer"): break
    for x in vx: a(x)
    if par == 1 and "nolast" not in OPT:
        a(f"s_cmp_eq_u32 {S(S_STEP)}, 63")
        a(f"s_cbranch_scc1 L_rec_last")
    tp(1)
    vm = []
    for T in range(8):
        for tile in range(2):
            vm.append(smf(ACCV + 4 * tile, MF + 4 * T, A(128 + (tile * 8 + T) * 8, 8)))
    def vmf(n=1):
        for _ in range(n):
            if vm: a(vm.pop(0))
    a(f"v_add_f32 {V(ACCQ+4)}, {V(ACCQ+4)}, {V(ACCQ+5)}")
    a(f"v_add_f32 {V(ACCQ+6)}, {V(ACCQ+6)}, {V(ACCQ+7)}")
    for tile in range(2):
        a(f"v_cvt_pk_bf16_f32 {V(ACCQ+4*tile+1)}, {V(ACCQ+4*tile)}, {V(ACCQ+4*tile+2)}")
    a(f"ds_write_b32 {V(A_QW)}, {V(ACCQ+1)} offset:{QT_O}")
    a(f"ds_write_b32 {V(A_QW)}, {V(ACCQ+5)} offset:{QT_O+256}")
    for tile in range(2):
        a(f"v_add_f32 {V(ACCK+4*tile)}, {V(ACCK+4*tile)}, {V(ACCK+4*tile+1)}")
        a(f"v_add_f32 {V(ACCK+4*tile+2)}, {V(ACCK+4*tile+2)}, {V(ACCK+4*tile+3)}")
    for tile in range(2):
        a(f"v_cvt_pk_bf16_f32 {V(KV4+tile)}, {V(ACCK+4*tile)}, {V(ACCK+4*tile+2)}")
    a(f"ds_write_b32 {V(A_KW)}, {V(KV4)} offset:{KT_O}")
    a(f"ds_write_b32 {V(A_KW)}, {V(KV4+1)} offset:{KT_O+512}")
    vmf(PARAM.get("v1", 3))
    stamp(a, 1, timing)
    a("s_waitcnt lgkmcnt(0)")
    tp(2)
    a("s_barrier")
    KM = (SENT, PT, KXF, KXF + 8)
    lds = []
    for u in range(4):
        for f in range(2):
            a(f"ds_read_b64_tr_b16 {V(QF[u]+2*f,2)}, {V(A_TRQ)} offset:{QT_O + u*512 + f*256}")
        lds += [("q", u)] * 2
        if u < 2:
            for f in range(2):
                a(f"ds_read_b64_tr_b16 {V(KM[u]+2*f,2)}, {V(A_TRK)} offset:{KT_O + u*1024 + f*512}")
            lds += [("km", u)] * 2
    ex = []
    if fx:
        ex = dma_list(KX_O, S_KD) + [f"s_min_u32 {S(S_T0)}, {S(S_STEP)}, 61", f"s_add_u32 {S(S_T0)}, {S(S_T0)}, 2",
                       f"s_lshl_b32 {S(S_T0)}, {S(S_T0)}, 7", f"s_add_u32 {S(S_FLG)}, {S(S_T0)}, {S(S_FLG0)}",
                       f"buffer_load_dword {V(V_FL)}, off, {S(SRD_WS,4)}, {S(S_FLG)} sc1"]
    def exf():
        while ex:
            x = ex.pop(0); a(x)
            if x.startswith("buffer"): break
    vmf(PARAM.get("v2", 1))
    exf()
    ST0, ST1, SM = ACCQ, ACCQ + 4, ACCK
    VXF = (76, 84)
    ONE2 = SENT
    seq = [("t0", 0), ("t1", 0), ("m", 0), ("t0", 1), ("t1", 1), ("m", 1), ("t0", 2), ("t1", 2), ("t0", 3), ("t1", 3), ("m", 2), ("m", 3)]
    waited = -1
    for n_, (kind, u) in enumerate(seq):
        need = [("q", u)] + ([("km", u)] if kind == "m" else [])
        last = max(k for k, tg in enumerate(lds) if tg in need)
        if last > waited:
            n_after = len(lds) - 1 - last
            a(f"s_waitcnt lgkmcnt({n_after})")
            waited = last
        if kind == "t0":
            a(f"v_mfma_f32_16x16x32_bf16 {V(ST0,4)}, {V(KXF+8*u,4)}, {V(QF[u],4)}, {'0' if u == 0 else V(ST0,4)}")
        elif kind == "t1":
            a(f"v_mfma_f32_16x16x32_bf16 {V(ST1,4)}, {V(KXF+8*u+4,4)}, {V(QF[u],4)}, {'0' if u == 0 else V(ST1,4)}")
            if u < 2:
                for f in range(2):
                    a(f"ds_read_b64_tr_b16 {V(KM[u+2]+2*f,2)}, {V(A_TRK)} offset:{KT_O + (u+2)*1024 + f*512}")
                lds += [("km", u + 2)] * 2
            if u == 2:
                for f in range(2):
                    a(f"ds_read_b128 {V(VXF[f],4)}, {V(A_VX)} offset:{VR + f*1024}")
                lds += [("vx", 0)] * 2
        else:
            a(f"v_mfma_f32_16x16x32_bf16 {V(SM,4)}, {V(KM[u],4)}, {V(QF[u],4)}, {'0' if u == 0 else V(SM,4)}")
            if u == 1 and "lvalu" not in OPT:
                a(f"v_mov_b32 {V(ONE2)}, 0x3f803f80")
                a(f"v_mov_b32 {V(ONE2+1)}, 0x3f803f80")
        if n_ % 2 == 1: exf()
    while ex: exf()
    tp(3)
    MX, MX2, LS, LS2 = 68, 69, 70, 71
    SV = [ST0, ST0+1, ST0+2, ST0+3, ST1, ST1+1, ST1+2, ST1+3, SM, SM+1]
    SN = 92
    a(f"v_max3_f32 {V(MX)}, {V(SV[0])}, {V(SV[1])}, {V(SV[2])}")
    a(f"v_max3_f32 {V(MX2)}, {V(SV[3])}, {V(SV[4])}, {V(SV[5])}")
    a(f"v_max3_f32 {V(MX)}, {V(MX)}, {V(SV[6])}, {V(SV[7])}")
    vmf(1)
    a("s_nop 1")
    if P and "nohop" not in OPT:
        a(f"v_mov_b32 {V(SN)}, -1")
        a(f"buffer_store_dword {V(SN)}, {V(G_PUB)}, {S(SRD_WS,4)}, {S(S_PUB+par)} offen")
    else:
        a("s_nop 1")
    a(f"v_max3_f32 {V(MX2)}, {V(MX2)}, {V(SV[8])}, {V(SV[9])}")
    a(f"v_max_f32 {V(LS)}, {V(MX)}, {V(MX2)}")
    a(f"v_max_f32 {V(MX)}, {V(MX)}, {V(MX2)}")
    vmf(1)
    a("s_nop 0")
    a(f"v_permlane32_swap_b32 {V(MX)}, {V(LS)}")
    a(f"v_max_f32 {V(MX2)}, {V(MX)}, {V(LS)}")
    a(f"v_max_f32 {V(MX)}, {V(MX)}, {V(LS)}")
    vmf(1)
    a("s_nop 0")
    a(f"v_permlane16_swap_b32 {V(MX)}, {V(MX2)}")
    a(f"v_max_f32 {V(MX)}, {V(MX)}, {V(MX2)}")
    a(f"v_mul_f32 {V(MX)}, {S(S_C)}, {V(MX)}")
    nv = len(vm)
    pos = set(PARAM.get("vpos", (1, 3, 5, 7, 9, 11, 13, 15, 16, 17)))
    seq2 = [f"v_fma_f32 {V(SV[k])}, {V(SV[k])}, {S(S_C)}, -{V(MX)}" for k in range(10)] + [f"v_exp_f32 {V(SV[k])}, {V(SV[k])}" for k in range(8)]
    for k, x in enumerate(seq2):
        a(x)
        if k in pos: vmf(1)
    vmf(16)
    tp(4)
    PM0, PM1 = 114, 64
    PTt = 72
    for k in range(4):
        a(f"v_cvt_pk_bf16_f32 {V(PTt+k)}, {V(SV[2*k])}, {V(SV[2*k+1])}")
    a(f"v_exp_f32 {V(SV[8])}, {V(SV[8])}")
    a("s_waitcnt lgkmcnt(0)")
    stamp(a, 2, timing)
    if timing: a("s_waitcnt lgkmcnt(0)")
    if "lvalu" in OPT:
        a(f"v_mfma_f32_16x16x32_bf16 {V(OACC,4)}, {V(VXF[0],4)}, {V(PTt,4)}, 0")
        a(f"v_exp_f32 {V(SV[9])}, {V(SV[9])}")
        a(f"v_mfma_f32_16x16x32_bf16 {V(OACC+4,4)}, {V(VXF[1],4)}, {V(PTt,4)}, 0")
        for tile in range(2):
            a(f"v_add_f32 {V(ACCV+4*tile)}, {V(ACCV+4*tile)}, {V(ACCV+4*tile+1)}")
            a(f"v_add_f32 {V(ACCV+4*tile+2)}, {V(ACCV+4*tile+2)}, {V(ACCV+4*tile+3)}")
        a(f"v_cvt_pk_bf16_f32 {V(PM0)}, {V(SV[8])}, {V(SV[9])}")
        a(f"v_cvt_pk_bf16_f32 {V(PM1+1)}, {V(SV[8])}, {V(SV[9])}")
        for tile in range(2):
            a(f"v_cvt_pk_bf16_f32 {V(KV4+2+tile)}, {V(ACCV+4*tile)}, {V(ACCV+4*tile+2)}")
        a(f"v_mov_b32 {V(PM0+1)}, 0")
        a(f"v_mov_b32 {V(PM1)}, 0")
        a(f"v_add_f32 {V(SV[0])}, {V(SV[0])}, {V(SV[1])}")
        a(f"v_add_f32 {V(SV[2])}, {V(SV[2])}, {V(SV[3])}")
        a(f"v_mfma_f32_16x16x16_bf16 {V(OACC,4)}, {V(KV4+2,2)}, {V(PM0,2)}, {V(OACC,4)}")
        a(f"v_add_f32 {V(SV[4])}, {V(SV[4])}, {V(SV[5])}")
        a(f"v_add_f32 {V(SV[6])}, {V(SV[6])}, {V(SV[7])}")
        a(f"v_mfma_f32_16x16x16_bf16 {V(OACC+4,4)}, {V(KV4+2,2)}, {V(PM1,2)}, {V(OACC+4,4)}")
        a(f"v_add_f32 {V(SV[8])}, {V(SV[8])}, {V(SV[9])}")
        a(f"v_add_f32 {V(SV[0])}, {V(SV[0])}, {V(SV[2])}")
        a(f"v_mfma_f32_32x32x1_2b_f32 {V(MF,32)}, {V(ZERO)}, {V(ZERO)}, 0")
        if "nokvm" not in OPT:
            a(f"buffer_store_dwordx4 {V(KV4,4)}, {V(HI16)}, {S(SRD_WS,4)}, {S(S_KVM)} offen sc1")
        if par == 1:
            a(f"s_cmp_eq_u32 {S(S_STEP)}, 63")
            a(f"s_cbranch_scc1 L_rec_fin")
        tp(5)
        a(f"v_add_f32 {V(SV[4])}, {V(SV[4])}, {V(SV[6])}")
        a(f"v_add_f32 {V(SV[0])}, {V(SV[0])}, {V(SV[8])}")
        a(f"v_add_f32 {V(LS)}, {V(SV[0])}, {V(SV[4])}")
        a(f"v_add_f32 {V(LS2)}, {V(SV[0])}, {V(SV[4])}")
        a(f"s_add_u32 {S(S_KVM)}, {S(S_KVM)}, 131072")
        a("s_nop 0")
        a(f"v_permlane32_swap_b32 {V(LS)}, {V(LS2)}")
        a(f"v_add_f32 {V(MX)}, {V(LS)}, {V(LS2)}")
        a(f"v_add_f32 {V(LS)}, {V(LS)}, {V(LS2)}")
        a("s_nop 1")
        a(f"v_permlane16_swap_b32 {V(LS)}, {V(MX)}")
        a(f"v_add_f32 {V(LS)}, {V(LS)}, {V(MX)}")
        a(f"v_rcp_f32 {V(LS)}, {V(LS)}")
        for r in range(4):
            a(f"v_cndmask_b32 {V(OACC+r)}, {V(OACC+r)}, {V(OACC+4+r)}, {S(S_ODD,2)}")
        for r in range(4):
            a(f"v_mul_f32 {V(OACC+r)}, {V(OACC+r)}, {V(LS)}")
        a(f"v_cvt_pk_bf16_f32 {V(OACC)}, {V(OACC)}, {V(OACC+1)}")
        a(f"v_cvt_pk_bf16_f32 {V(OACC+1)}, {V(OACC+2)}, {V(OACC+3)}")
    else:
        LA = 92
        a(f"v_mfma_f32_16x16x32_bf16 {V(OACC,4)}, {V(VXF[0],4)}, {V(PTt,4)}, 0")
        a(f"v_exp_f32 {V(SV[9])}, {V(SV[9])}")
        a(f"v_mfma_f32_16x16x32_bf16 {V(OACC+4,4)}, {V(VXF[1],4)}, {V(PTt,4)}, 0")
        a(f"v_add_f32 {V(ACCV)}, {V(ACCV)}, {V(ACCV+1)}")
        a(f"v_add_f32 {V(ACCV+2)}, {V(ACCV+2)}, {V(ACCV+3)}")
        a(f"v_mfma_f32_16x16x16_bf16 {V(LA,4)}, {V(ONE2,2)}, {V(PTt,2)}, 0")
        a(f"v_add_f32 {V(ACCV+4)}, {V(ACCV+4)}, {V(ACCV+5)}")
        a(f"v_add_f32 {V(ACCV+6)}, {V(ACCV+6)}, {V(ACCV+7)}")
        a(f"v_mfma_f32_16x16x16_bf16 {V(LA,4)}, {V(ONE2,2)}, {V(PTt+2,2)}, {V(LA,4)}")
        a(f"v_cvt_pk_bf16_f32 {V(PM0)}, {V(SV[8])}, {V(SV[9])}")
        a(f"v_mov_b32 {V(PM0+1)}, 0")
        a(f"v_cvt_pk_bf16_f32 {V(KV4+2)}, {V(ACCV)}, {V(ACCV+2)}")
        a(f"v_cvt_pk_bf16_f32 {V(KV4+3)}, {V(ACCV+4)}, {V(ACCV+6)}")
        a(f"v_mfma_f32_16x16x16_bf16 {V(LA,4)}, {V(ONE2,2)}, {V(PM0,2)}, {V(LA,4)}")
        a(f"v_cvt_pk_bf16_f32 {V(PM1+1)}, {V(SV[8])}, {V(SV[9])}")
        a(f"v_mov_b32 {V(PM1)}, 0")
        a(f"v_mfma_f32_16x16x16_bf16 {V(OACC,4)}, {V(KV4+2,2)}, {V(PM0,2)}, {V(OACC,4)}")
        a("s_nop 0")
        a(f"v_mfma_f32_16x16x16_bf16 {V(OACC+4,4)}, {V(KV4+2,2)}, {V(PM1,2)}, {V(OACC+4,4)}")
        a(f"v_mfma_f32_32x32x1_2b_f32 {V(MF,32)}, {V(ZERO)}, {V(ZERO)}, 0")
        if "nokvm" not in OPT:
            a(f"buffer_store_dwordx4 {V(KV4,4)}, {V(HI16)}, {S(SRD_WS,4)}, {S(S_KVM)} offen sc1")
        if par == 1 and "nolast" in OPT:
            a(f"s_cmp_eq_u32 {S(S_STEP)}, 63")
            a(f"s_cbranch_scc1 L_rec_fin")
        tp(5)
        a(f"s_add_u32 {S(S_KVM)}, {S(S_KVM)}, 131072")
        a("s_nop 1")
        a(f"v_rcp_f32 {V(LS)}, {V(LA)}")
        a("s_nop 0")
        for r in range(4):
            a(f"v_cndmask_b32 {V(OACC+r)}, {V(OACC+r)}, {V(OACC+4+r)}, {S(S_ODD,2)}")
        for r in range(4):
            a(f"v_mul_f32 {V(OACC+r)}, {V(OACC+r)}, {V(LS)}")
        a(f"v_cvt_pk_bf16_f32 {V(OACC)}, {V(OACC)}, {V(OACC+1)}")
        a(f"v_cvt_pk_bf16_f32 {V(OACC+1)}, {V(OACC+2)}, {V(OACC+3)}")
    a(f"ds_write_b64 {V(A_OW)}, {V(OACC,2)}")
    stamp(a, 3, timing)
    if P and "nohop" not in OPT:
        a(f"s_waitcnt vmcnt({0 if 'nokvm' in OPT else 1}) lgkmcnt(0)")
    else:
        a("s_waitcnt lgkmcnt(0)")
    tp(6)
    a("s_barrier")
    for T in range(2):
        a(f"ds_read_b128 {V(OF+4*T,4)}, {V(HI16)} offset:{O_O + T*1024}")
    a("s_waitcnt lgkmcnt(0)")
    tp(7)
    PK = ACCQ
    mf = []
    for tau in range(8):
        for T in range(2):
            mf.append(smf(MF + 4 * tau, OF + 4 * T, V(WO + (tau * 2 + T) * 8, 8)))
    def post(tau):
        d = MF + 4 * tau
        r = [f"v_add_f32 {V(d)}, {V(d)}, {V(d+1)}",
             f"v_add_f32 {V(d+2)}, {V(d+2)}, {V(d+3)}",
             f"v_cvt_pk_bf16_f32 {V(PK+tau)}, {V(d)}, {V(d+2)}"]
        if tau % 4 == 0:
            r.append(f"v_or_b32 {V(PK+tau)}, 1, {V(PK+tau)}" if par else f"v_and_b32 {V(PK+tau)}, -2, {V(PK+tau)}")
        return r
    fl = []
    st = [f"buffer_store_dwordx4 {V(PK,4)}, {V(G_PST)}, {S(SRD_WS,4)}, {S(S_PST)} offen",
          f"buffer_store_dwordx4 {V(PK+4,4)}, {V(G_PST)}, {S(SRD_WS,4)}, {S(S_PST+1)} offen"]
    popped = 0
    for mu in range(16):
        a(mf[mu])
        if mu >= 3 and (mu - 3) % 2 == 0:
            fl += post((mu - 3) // 2)
        k = 2 if (mu >= 4 and mu % 2 == 0) else 1
        for _ in range(k):
            if fl:
                a(fl.pop(0)); popped += 1
                if popped == 13: a(st[0])
    while fl:
        a(fl.pop(0)); popped += 1
        if popped == 13: a(st[0])
    a("s_nop 3")
    for x in post(7): a(x)
    if "wo_nost" in OPT: st[1] = "s_nop 0"
    a(st[1])
    stamp(a, 4, timing)
    a.label(LEND)
    if "nohop" in OPT:
        emit_idle_prep(a)
        stamp(a, 5, timing); stamp(a, 6, timing)
        a("s_waitcnt lgkmcnt(0)" if "novm" in OPT else "s_waitcnt vmcnt(0) lgkmcnt(0)")
    else:
        ip = idle_prep_list()
        if P:
            hop1(a, par, ip[:14], timing)
            if timing: a(f"s_add_u32 {S(TACC+6)}, {S(TACC+6)}, {S(S_CNT)}")
            stamp(a, 5, timing)
            if dbg:
                a(f"s_lshl_b32 {S(S_T0)}, {S(S_STEP)}, 13")
                a(f"s_add_u32 {S(S_T0)}, {S(S_T0)}, {DBG_OFF}")
                a(f"buffer_store_dword {V(ACCQ)}, {V(G_PUB)}, {S(SRD_WS,4)}, {S(S_T0)} offen")
            if "bh" in OPT:
                a("s_barrier")
            else:
                a(f"v_mov_b32 {V(ACCK)}, {S(S_STEP)}")
                a(f"ds_write_b32 {V(HI16)}, {V(ACCK)} offset:{O_O}")
        else:
            for x in ip[:14]: a(x)
            stamp(a, 5, timing)
            if "bh" in OPT:
                a("s_barrier")
            else:
                Lh = a.newlabel("L_hint"); Lhd = Lh + "_d"
                a(f"s_mov_b32 {S(S_CNT)}, 0")
                a.label(Lh)
                a(f"ds_read_b32 {V(ACCK)}, {V(HI16)} offset:{O_O}")
                a("s_waitcnt lgkmcnt(0)")
                a(f"v_readfirstlane_b32 {S(S_T0)}, {V(ACCK)}")
                a(f"s_add_u32 {S(S_CNT)}, {S(S_CNT)}, 1")
                a(f"s_cmp_eq_u32 {S(S_T0)}, {S(S_STEP)}")
                a(f"s_cbranch_scc1 {Lhd}")
                a(f"s_cmp_lt_u32 {S(S_CNT)}, {4096}")
                a(f"s_cbranch_scc1 {Lh}")
                a.label(Lhd)
        hop2(a, par, VR, ip[14:])
        if timing: a(f"s_add_u32 {S(TACC+7)}, {S(TACC+7)}, {S(S_CNT)}")
        stamp(a, 6, timing)
        a("s_waitcnt lgkmcnt(0)")
    stamp_acc(a, 7, timing)
    if timing and "trace" in OPT:
        for k in range(7): a(f"v_mov_b32 {V(MF+16+k)}, {S(TS+2*k)}")
        a(f"v_mov_b32 {V(MF+23)}, {S(TS+14)}")
        a(f"s_lshl_b32 {S(S_T0)}, {S(S_STEP)}, 5")
        a(f"s_add_u32 {S(S_T0)}, {S(S_T0)}, {S(S_H)}")
        a(f"s_lshl_b32 {S(S_T0)}, {S(S_T0)}, 2")
        a(f"s_add_u32 {S(S_T0)}, {S(S_T0)}, {S(S_W)}")
        a(f"s_lshl_b32 {S(S_T0)}, {S(S_T0)}, 5")
        a(f"s_add_u32 {S(S_T0)}, {S(S_T0)}, {DBG_OFF + 0x300000}")
        a(f"buffer_store_dwordx4 {V(MF+16,4)}, off, {S(SRD_WS,4)}, {S(S_T0)}")
        a(f"buffer_store_dwordx4 {V(MF+20,4)}, off, {S(SRD_WS,4)}, {S(S_T0)} offset:16")
        a("s_nop 1")
    if timing:
        a(f"s_mov_b32 {S(TS)}, {S(TS+12)}")
    a(f"s_add_u32 {S(S_STEP)}, {S(S_STEP)}, 1")
    a("s_barrier")


def hop1(a, par, pre, timing, shadow=()):
    XS = (MF, MF + 16)
    RA = ACCQ
    SEL = ACCQ + 4
    t0 = ACCK
    two = "poll1" not in OPT
    for x in pre: a(x)
    for rr in range(4):
        a(f"v_cndmask_b32 {V(SEL+rr)}, {V(ZERO)}, {V(SV1)}, {S(S_SEL+2*rr,2)}")
    delay(a, PARAM["pre1"])
    L = a.newlabel("L_h1"); D = L + "_d"; RT = L + "_r"
    def issue(X):
        for i in range(4):
            a(f"buffer_load_dwordx4 {V(X+4*i,4)}, {V(HI16)}, {S(SRD_WS,4)}, {S(S_PLD)} offen offset:{i*1024} sc1")
    def consume(X, n):
        a(f"s_waitcnt vmcnt({n})")
        a("s_mov_b64 exec, -1")
        if par == 0:
            a(f"v_or3_b32 {V(t0)}, {V(X)}, {V(X+4)}, {V(X+8)}")
        else:
            a(f"v_bitop3_b32 {V(t0)}, {V(X)}, {V(X+4)}, {V(X+8)} bitop3:0x80")
        a(f"v_mfma_f32_16x16x32_bf16 {V(RA,4)}, {V(SEL,4)}, {V(X,4)}, 0")
        a(f"v_or_b32 {V(t0)}, {V(t0)}, {V(X+12)}" if par == 0 else f"v_and_b32 {V(t0)}, {V(t0)}, {V(X+12)}")
        a(f"v_mfma_f32_16x16x32_bf16 {V(RA,4)}, {V(SEL,4)}, {V(X+4,4)}, {V(RA,4)}")
        a(f"v_and_b32 {V(t0)}, 1, {V(t0)}")
        a(f"v_mfma_f32_16x16x32_bf16 {V(RA,4)}, {V(SEL,4)}, {V(X+8,4)}, {V(RA,4)}")
        a(f"v_cmp_ne_u32 vcc, {par}, {V(t0)}")
        a(f"v_mfma_f32_16x16x32_bf16 {V(RA,4)}, {V(SEL,4)}, {V(X+12,4)}, {V(RA,4)}")
        a(f"s_cbranch_vccz {D}")
    a(f"s_mov_b32 {S(S_CNT)}, 0")
    issue(XS[0])
    if two:
        delay(a, PARAM.get("d1", 64))
        issue(XS[1])
    a.label(RT)
    consume(XS[0], 4 if two else 0)
    if not FAST:
        a(f"s_cmp_eq_u32 {S(S_FAIL)}, 1")
        a(f"s_cbranch_scc1 {D}")
        a("s_mov_b64 exec, vcc")
        issue(XS[0])
        if two:
            consume(XS[1], 4)
            a("s_mov_b64 exec, vcc")
            issue(XS[1])
        emit_spin_check(a, RT, D)
        a("s_waitcnt vmcnt(0)")
        a("s_mov_b64 exec, -1")
    a.label(D)
    a("s_nop 6")
    for r in range(2):
        a(f"v_add_f32_dpp {V(RA+r)}, {V(RA+r)}, {V(RA+r)} row_ror:8 row_mask:0xf bank_mask:0xf")
    a(f"v_cvt_pk_bf16_f32 {V(RA)}, {V(RA)}, {V(RA+1)}")
    a(f"buffer_store_dword {V(RA)}, {V(G_PUB)}, {S(SRD_WS,4)}, {S(S_PUB+par)} offen")


def hop2(a, par, region, shadow=()):
    K = PARAM.get("k2", 2)
    XS = [MF, ACCV] if K == 2 else [MF + 8 * i for i in range(K)]
    delay(a, PARAM["pre2"])
    L = a.newlabel("L_h2"); RT = L + "_r"; J = L + "_j"
    D = [f"{L}_d{i}" for i in range(K)]
    t0, t1 = 56 + 0, 56 + 1
    def issue(X):
        for i in range(2):
            a(f"buffer_load_dwordx4 {V(X+4*i,4)}, {V(HI16)}, {S(SRD_WS,4)}, {S(S_MLD+par)} offen offset:{i*1024} sc1")
    T0, T1 = ZT
    def check_(X, n, Dl):
        a(f"s_waitcnt vmcnt({n})")
        a("s_mov_b64 exec, -1")
        a(f"v_max3_u32 {V(T0)}, {V(X)}, {V(X+1)}, {V(X+2)}")
        a(f"v_max3_u32 {V(T1)}, {V(X+3)}, {V(X+4)}, {V(X+5)}")
        a(f"v_max3_u32 {V(T0)}, {V(T0)}, {V(X+6)}, {V(X+7)}")
        a(f"v_max_u32 {V(T0)}, {V(T0)}, {V(T1)}")
        a(f"v_cmp_eq_u32 vcc, -1, {V(T0)}")
        a(f"s_cbranch_vccz {Dl}")
    def write(X):
        for i in range(2):
            a(f"ds_write_b128 {V(A_VX)}, {V(X+4*i,4)} offset:{region + i*1024}")
    a(f"s_mov_b32 {S(S_CNT)}, 0")
    issue(XS[0])
    for x in shadow: a(x)
    for i in range(1, K):
        delay(a, PARAM.get("d2", 48) if i == 1 else PARAM.get("d3", 96))
        issue(XS[i])
    a.label(RT)
    check_(XS[0], 2 * (K - 1), D[0])
    if not FAST:
        a(f"s_cmp_eq_u32 {S(S_FAIL)}, 1")
        a(f"s_cbranch_scc1 {D[0]}")
        a("s_mov_b64 exec, vcc")
        issue(XS[0])
        for i in range(1, K):
            check_(XS[i], 2 * (K - 1), D[i])
            a("s_mov_b64 exec, vcc")
            issue(XS[i])
        emit_spin_check(a, RT, D[0])
        a("s_waitcnt vmcnt(0)")
        a("s_mov_b64 exec, -1")
        a(f"s_branch {D[0]}")
        for i in range(1, K):
            a.label(D[i])
            write(XS[i])
            a(f"s_branch {J}")
    a.label(D[0])
    write(XS[0])
    a.label(J)
    if K != 2:
        a("s_waitcnt vmcnt(0)")


def loop(a, dbg=False, timing=False):
    if timing:
        for k in range(8): a(f"s_mov_b32 {S(TACC+k)}, 0")
        a(f"s_memtime {S(TS,2)}")
        a("s_waitcnt lgkmcnt(0)")
    a(f"s_cmp_eq_u32 {S(S_W)}, 0")
    a(f"s_cselect_b32 {S(S_KVMF+2)}, 1, 0")
    a(f"s_mov_b32 {S(S_KVMF+1)}, 0")
    a(f"s_sub_u32 {S(S_FLG0)}, {S(S_FLG)}, 128")
    a("s_barrier")
    a(f"s_cmp_ge_u32 {S(S_W)}, 2")
    a("s_cbranch_scc1 L_recF_loop")
    for role in "PF":
        a(".p2align 3")
        a.label(f"L_rec{role}_loop")
        for par in range(2):
            step(a, par, role, dbg, timing)
        a(f"s_branch L_rec{role}_loop")
    if "nolast" not in OPT:
        a.label("L_rec_last")
        for T in range(8):
            for tile in range(2):
                a(smf(ACCV + 4 * tile, MF + 4 * T, A(128 + (tile * 8 + T) * 8, 8)))
        for tile in range(2):
            a(f"v_add_f32 {V(ACCK+4*tile)}, {V(ACCK+4*tile)}, {V(ACCK+4*tile+1)}")
            a(f"v_add_f32 {V(ACCK+4*tile+2)}, {V(ACCK+4*tile+2)}, {V(ACCK+4*tile+3)}")
            a(f"v_cvt_pk_bf16_f32 {V(KV4+tile)}, {V(ACCK+4*tile)}, {V(ACCK+4*tile+2)}")
        a("s_nop 7")
        for tile in range(2):
            a(f"v_add_f32 {V(ACCV+4*tile)}, {V(ACCV+4*tile)}, {V(ACCV+4*tile+1)}")
            a(f"v_add_f32 {V(ACCV+4*tile+2)}, {V(ACCV+4*tile+2)}, {V(ACCV+4*tile+3)}")
            a(f"v_cvt_pk_bf16_f32 {V(KV4+2+tile)}, {V(ACCV+4*tile)}, {V(ACCV+4*tile+2)}")
        a(f"buffer_store_dwordx4 {V(KV4,4)}, {V(HI16)}, {S(SRD_WS,4)}, {S(S_KVM)} offen sc1")
    a.label("L_rec_fin")
    a("s_waitcnt vmcnt(0) lgkmcnt(0)")
    a("s_barrier")
    Ls = a.newlabel("L_fin")
    a(f"s_cmp_eq_u32 {S(S_W)}, 0")
    a(f"s_cbranch_scc0 {Ls}")
    a(f"v_mov_b32 {V(16)}, 1")
    a(f"buffer_store_dword {V(16)}, off, {S(SRD_WS,4)}, {S(S_KVMF)} sc1")
    a("s_waitcnt vmcnt(0)")
    a.label(Ls)
```

```python
from asm import *
from layout import *
import struct

def f2u(x): return struct.unpack("<I", struct.pack("<f", x))[0]

S_IDX, S_W, S_XCC = 4, 5, 6
SRD_WS, SRD_DBG = 8, 52
S_WK = 16
S_H1, S_SUB = 17, 18
S_FAIL, S_CNT = 19, 20
S_J, S_SEG = 21, 22
S_T0, S_T1, S_T2, S_T3 = 24, 25, 26, 27
SRD_A, SRD_B, SRD_C = 28, 32, 36
S_TEAM = 40
S_NSEG = 41
SPIN_MAX = 1 << 19
FAST = False
OPT = set()
W1_STRIDE = 3
W1_AHEAD = 9
STF = 'sc1'
PSTF = 'sc1'
OSTF = 'sc1'

def srd(a, dst, karg_off, nbytes, tmp=56):
    a(f"s_load_dwordx2 {S(tmp,2)}, s[0:1], {karg_off}")
    a("s_waitcnt lgkmcnt(0)")
    a(f"s_mov_b32 {S(dst)}, {S(tmp)}")
    a(f"s_and_b32 {S(dst+1)}, {S(tmp+1)}, 0xffff")
    a(f"s_mov_b32 {S(dst+2)}, {nbytes}")
    a(f"s_mov_b32 {S(dst+3)}, 0x20000")

def poll_word(a, srdn, soff_text, cond_text, vtmp, name, sleep=4):
    L = a.newlabel("L_wpw_" + name)
    D = L + "_d"
    a(f"s_mov_b32 {S(S_CNT)}, 0")
    a.label(L)
    a(f"s_cmp_eq_u32 {S(S_FAIL)}, 1")
    a(f"s_cbranch_scc1 {D}")
    a(f"buffer_load_dword {V(vtmp)}, off, {S(srdn,4)}, {soff_text} sc1")
    a("s_waitcnt vmcnt(0)")
    a(f"v_readfirstlane_b32 {S(S_T0)}, {V(vtmp)}")
    a("s_nop 3")
    a(cond_text)
    a(f"s_cbranch_scc1 {D}")
    a(f"s_sleep {sleep}")
    a(f"s_add_u32 {S(S_CNT)}, {S(S_CNT)}, 1")
    a(f"s_cmp_lt_u32 {S(S_CNT)}, {SPIN_MAX}")
    a(f"s_cbranch_scc1 {L}")
    a(f"s_mov_b32 {S(S_FAIL)}, 1")
    a.label(D)

def poll_wave0(a, srdn, soff_text, cond_text, vtmp, name, sleep=4):
    Lw0 = a.newlabel("L_pw0")
    a(f"s_cmp_eq_u32 {S(S_W)}, 0")
    a(f"s_cbranch_scc0 {Lw0}")
    poll_word(a, srdn, soff_text, cond_text, vtmp, name, sleep=sleep)
    a.label(Lw0)
    a("s_barrier")


def bf16_round(a, dst, src):
    a(f"v_cvt_pk_bf16_f32 {V(dst)}, {V(src)}, {V(src)}")
    a(f"v_lshlrev_b32 {V(dst)}, 16, {V(dst)}")

def wave_sum(a, regs, tmp):
    for sh in (1, 2, 4, 8):
        a("s_nop 1")
        for r in regs:
            a(f"v_add_f32_dpp {V(r)}, {V(r)}, {V(r)} row_ror:{sh} row_mask:0xf bank_mask:0xf")
    for sw in ("v_permlane16_swap_b32", "v_permlane32_swap_b32"):
        for k, r in enumerate(regs):
            a(f"v_mov_b32 {V(tmp+k)}, {V(r)}")
        a("s_nop 1")
        for k, r in enumerate(regs):
            a(f"{sw} {V(r)}, {V(tmp+k)}")
        for k, r in enumerate(regs):
            a(f"v_add_f32 {V(r)}, {V(r)}, {V(tmp+k)}")

def w0(a):
    a("; ===== W0: init + LayerNorm =====")
    a(f"s_mov_b32 {S(S_FAIL)}, 0")
    a(f"s_sub_u32 {S(S_TEAM)}, {S(S_XCC)}, 1")
    a(f"s_lshl_b32 {S(S_WK)}, {S(S_TEAM)}, 5")
    a(f"s_add_u32 {S(S_WK)}, {S(S_WK)}, {S(S_IDX)}")


def w0_ln(a):
    L = 100
    a(f"s_sub_u32 {S(S_WK)}, {S(S_WK)}, 96")
    a(f"v_and_b32 {V(L)}, 63, v0")
    Ls = a.newlabel("L_fz")
    a(f"s_cmp_eq_u32 {S(S_W)}, 0")
    a(f"s_cbranch_scc0 {Ls}")
    for i in range(4): a(f"v_mov_b32 {V(20+i)}, 0")
    a(f"v_lshlrev_b32 {V(24)}, 4, {V(L)}")
    a(f"v_mov_b32 {V(25)}, 0x7ff00000")
    a(f"v_cmp_gt_u32 vcc, 16, {V(L)}")
    a("s_nop 1")
    a(f"v_cndmask_b32 {V(24)}, {V(25)}, {V(24)}, vcc")
    a(f"s_lshl_b32 {S(S_T0)}, {S(S_WK)}, 8")
    a(f"s_add_u32 {S(S_T0)}, {S(S_T0)}, {FLAG_OFF}")
    a(f"buffer_store_dwordx4 {V(20,4)}, {V(24)}, {S(SRD_WS,4)}, {S(S_T0)} offen sc1")
    a.label(Ls)
    srd(a, SRD_A, 0, 2048 * 512 * 2)
    a(f"s_lshl_b32 {S(S_T0)}, {S(S_WK)}, 2")
    a(f"s_add_u32 {S(S_T0)}, {S(S_T0)}, {S(S_W)}")
    a(f"v_lshlrev_b32 {V(24)}, 4, {V(L)}")
    NR = 4
    X = [32 + 4 * k for k in range(NR)]
    F = [48 + 8 * k for k in range(NR)]
    for k in range(NR):
        a(f"s_add_u32 {S(S_T1)}, {S(S_T0)}, {512*k}")
        a(f"s_lshl_b32 {S(S_T1)}, {S(S_T1)}, 10")
        a(f"buffer_load_dwordx4 {V(X[k],4)}, {V(24)}, {S(SRD_A,4)}, {S(S_T1)} offen")
    a("s_waitcnt vmcnt(0)")
    SUM = [80 + k for k in range(NR)]
    TMP = 108
    for k in range(NR):
        for d in range(4):
            a(f"v_lshlrev_b32 {V(F[k]+2*d)}, 16, {V(X[k]+d)}")
            a(f"v_and_b32 {V(F[k]+2*d+1)}, 0xffff0000, {V(X[k]+d)}")
        a(f"v_add_f32 {V(SUM[k])}, {V(F[k])}, {V(F[k]+1)}")
        for d in range(2, 8):
            a(f"v_add_f32 {V(SUM[k])}, {V(SUM[k])}, {V(F[k]+d)}")
    wave_sum(a, SUM, TMP)
    MEAN = [88 + k for k in range(NR)]
    VAR = [92 + k for k in range(NR)]
    for k in range(NR):
        a(f"v_mul_f32 {V(MEAN[k])}, {f2u(1/512):#x}, {V(SUM[k])}")
        a(f"v_sub_f32 {V(TMP)}, {V(F[k])}, {V(MEAN[k])}")
        a(f"v_mul_f32 {V(VAR[k])}, {V(TMP)}, {V(TMP)}")
        for d in range(1, 8):
            a(f"v_sub_f32 {V(TMP)}, {V(F[k]+d)}, {V(MEAN[k])}")
            a(f"v_fmac_f32 {V(VAR[k])}, {V(TMP)}, {V(TMP)}")
    wave_sum(a, VAR, TMP)
    for k in range(NR):
        a(f"v_mul_f32 {V(VAR[k])}, {f2u(1/512):#x}, {V(VAR[k])}")
        bf16_round(a, VAR[k], VAR[k])
        a(f"v_add_f32 {V(VAR[k])}, {f2u(1e-5):#x}, {V(VAR[k])}")
        bf16_round(a, VAR[k], VAR[k])
        a(f"v_sqrt_f32 {V(VAR[k])}, {V(VAR[k])}")
        a("s_nop 0")
        bf16_round(a, VAR[k], VAR[k])
        a(f"v_rcp_f32 {V(96+k)}, {V(VAR[k])}")
        bf16_round(a, MEAN[k], MEAN[k])
        for d in range(8):
            a(f"v_sub_f32 {V(F[k]+d)}, {V(F[k]+d)}, {V(MEAN[k])}")
        for d in range(0, 8, 2):
            a(f"v_cvt_pk_bf16_f32 {V(TMP)}, {V(F[k]+d)}, {V(F[k]+d+1)}")
            a(f"v_lshlrev_b32 {V(F[k]+d)}, 16, {V(TMP)}")
            a(f"v_and_b32 {V(F[k]+d+1)}, 0xffff0000, {V(TMP)}")
        for d in range(8):
            a(f"v_mul_f32 {V(TMP)}, {V(F[k]+d)}, {V(96+k)}")
            a(f"v_fma_f32 {V(TMP+1)}, -{V(TMP)}, {V(VAR[k])}, {V(F[k]+d)}")
            a(f"v_fma_f32 {V(F[k]+d)}, {V(TMP+1)}, {V(96+k)}, {V(TMP)}")
        for d in range(4):
            a(f"v_cvt_pk_bf16_f32 {V(X[k]+d)}, {V(F[k]+2*d)}, {V(F[k]+2*d+1)}")
        a(f"s_add_u32 {S(S_T1)}, {S(S_T0)}, {512*k}")
        a(f"s_lshl_b32 {S(S_T1)}, {S(S_T1)}, 10")
        a(f"s_add_u32 {S(S_T1)}, {S(S_T1)}, {XN_OFF}")
        a(f"buffer_store_dwordx4 {V(X[k],4)}, {V(24)}, {S(SRD_WS,4)}, {S(S_T1)} offen sc1")
    a("s_waitcnt vmcnt(0)")
    a("s_barrier")
    Ls = a.newlabel("L_c0")
    a(f"s_cmp_eq_u32 {S(S_W)}, 0")
    a(f"s_cbranch_scc0 {Ls}")
    a("v_mov_b32 v20, 1")
    a("s_mov_b64 exec, 1")
    a(f"s_mov_b32 {S(S_T0)}, 32")
    a(f"buffer_atomic_add v20, off, {S(SRD_DBG,4)}, {S(S_T0)} sc1")
    a("s_mov_b64 exec, -1")
    a.label(Ls)


class Stager:
    def __init__(self, a, L=100, N=101, G=102):
        self.a = a; self.L, self.N, self.G = L, N, G
    def lane_ids(self):
        a = self.a
        a(f"v_and_b32 {V(self.L)}, 63, v0")
        a(f"v_and_b32 {V(self.N)}, 15, {V(self.L)}")
        a(f"v_lshrrev_b32 {V(self.G)}, 4, {V(self.L)}")
    def dma_voffsets(self, dst, stride, swz, t1=103, t2=104, t3=105):
        a = self.a
        a(f"v_and_b32 {V(t1)}, 3, {V(self.G)}")
        a(f"v_lshlrev_b32 {V(t1)}, 1, {V(t1)}")
        a(f"v_xor_b32 {V(t1)}, {V(t1)}, {V(self.N)}")
        a(f"s_lshl_b32 {S(S_T2)}, {S(S_W)}, 4")
        a(f"s_mov_b32 {S(S_T3)}, {stride}")
        for i in range(4):
            bit = ((i >> 1) & 1) if swz == "B" else (i & 1)
            a(f"v_xor_b32 {V(t2)}, {8*bit}, {V(t1)}")
            a(f"v_lshlrev_b32 {V(t2)}, 4, {V(t2)}")
            a(f"v_add_u32 {V(t3)}, {S(S_T2)}, {V(self.G)}")
            a(f"v_add_u32 {V(t3)}, {4*i}, {V(t3)}")
            a(f"v_mul_lo_u32 {V(dst+i)}, {S(S_T3)}, {V(t3)}")
            a(f"v_add_u32 {V(dst+i)}, {V(dst+i)}, {V(t2)}")
    def tr_base(self, dbase, dfs, swz, t1=103, t2=104, t3=105):
        a = self.a
        a(f"v_lshrrev_b32 {V(t1)}, 2, {V(self.N)}")
        a(f"v_and_b32 {V(t2)}, 3, {V(self.N)}")
        sh = 3 if swz == "B" else 2
        a(f"v_lshl_add_u32 {V(t3)}, {V(self.G)}, {sh}, {V(t1)}")
        a(f"v_lshlrev_b32 {V(dbase)}, 8, {V(t3)}")
        a(f"v_lshl_add_u32 {V(dbase)}, {V(t2)}, 3, {V(dbase)}")
        a(f"v_and_b32 {V(t3)}, 1, {V(self.G)}")
        a(f"v_lshlrev_b32 {V(t3)}, 2, {V(t3)}")
        a(f"v_add_u32 {V(t3)}, {V(t3)}, {V(t1)}")
        a(f"v_lshlrev_b32 {V(dfs)}, 5, {V(t3)}")
    def run(self, chunks, pre_wait=None, post=None):
        a = self.a
        n = len(chunks)
        pre_wait = pre_wait or {}; post = post or {}
        def dma(i):
            c = chunks[i]
            slot = i & 7
            for k in range(4):
                a(f"s_lshl_b32 {S(S_T0)}, {S(S_W)}, 12")
                a(f"s_add_u32 m0, {S(S_T0)}, {slot*16384 + k*1024}")
                for x in c["soff"]: a(x)
                a(f"buffer_load_dwordx4 {V(c['voff']+k)}, {S(c['srd'],4)}, {S(S_T1)} offen lds")
        for i in range(min(8, n)): dma(i)
        for i in range(n):
            later = min(i + 7, n - 1) - i
            a(f"s_waitcnt vmcnt({4*later})")
            a("s_barrier")
            chunks[i]["consume"]((i & 7) * 16384)
            if i in pre_wait: pre_wait[i]()
            a("s_waitcnt lgkmcnt(0)")
            a("s_barrier")
            if i + 8 < n: dma(i + 8)
            if i in post: post[i]()


XN_LDS = (0, 32768)

def xn_dma(a, buf, vsrc, sseg):
    a(f"s_lshl_b32 {S(S_T1)}, {S(sseg)}, 15")
    a(f"s_lshr_b32 {S(S_T2)}, {S(S_W)}, 1")
    a(f"s_lshl_b32 {S(S_T2)}, {S(S_T2)}, 14")
    a(f"s_add_u32 {S(S_T1)}, {S(S_T1)}, {S(S_T2)}")
    a(f"s_and_b32 {S(S_T2)}, {S(S_W)}, 1")
    a(f"s_lshl_b32 {S(S_T2)}, {S(S_T2)}, 9")
    a(f"s_add_u32 {S(S_T1)}, {S(S_T1)}, {S(S_T2)}")
    a(f"s_add_u32 {S(S_T1)}, {S(S_T1)}, {XN_OFF}")
    a(f"s_lshl_b32 {S(S_T0)}, {S(S_W)}, 13")
    a(f"s_add_u32 m0, {S(S_T0)}, {buf}")
    for k in range(8):
        a("s_nop 0")
        a(f"buffer_load_dwordx4 {V(vsrc)}, {S(SRD_WS,4)}, {S(S_T1)} offen lds")
        if k < 7:
            a(f"s_add_u32 m0, m0, 1024")
            a(f"s_add_u32 {S(S_T1)}, {S(S_T1)}, 64")


def w1_flag(a, sseg, kind):
    Lf = a.newlabel("L_w1_noflag")
    a(f"s_cmp_ge_u32 {S(sseg)}, 64")
    a(f"s_cbranch_scc1 {Lf}")
    a(f"s_cmp_eq_u32 {S(S_W)}, 0")
    a(f"s_cbranch_scc0 {Lf}")
    a(f"s_lshl_b32 {S(S_T0)}, {S(sseg)}, 5")
    a(f"s_add_u32 {S(S_T0)}, {S(S_T0)}, {S(S_H1)}")
    a(f"s_lshl_b32 {S(S_T0)}, {S(S_T0)}, 2")
    a(f"s_add_u32 {S(S_T0)}, {S(S_T0)}, {FLAG_OFF if kind == 'kv' else QFL_OFF}")
    a("v_mov_b32 v26, 1")
    a(f"buffer_store_dword v26, off, {S(SRD_WS,4)}, {S(S_T0)} sc1")
    if kind == "kv":
        a(f"s_cmp_eq_u32 {S(sseg)}, 0")
        a(f"s_cbranch_scc0 {Lf}")
        a(f"s_lshl_b32 {S(S_T0)}, 1, {S(S_H1)}")
        a(f"v_mov_b32 v26, {S(S_T0)}")
        a("s_mov_b64 exec, 1")
        a(f"s_mov_b32 {S(S_T0)}, 40")
        a(f"buffer_atomic_or v26, off, {S(SRD_DBG,4)}, {S(S_T0)} sc1")
        a("s_mov_b64 exec, -1")
    a.label(Lf)


def w1(a, kind):
    a(f"; ===== W1 ({kind}): projections, head stationary =====")
    mats = ("k", "v") if kind == "kv" else ("q",)
    stride = 2 if kind == "kv" else 1
    LP = f"L_w1{kind}"
    if kind == "kv":
        a(f"s_lshr_b32 {S(S_H1)}, {S(S_WK)}, 1")
        a(f"s_and_b32 {S(S_SUB)}, {S(S_WK)}, 1")
    else:
        a(f"s_sub_u32 {S(S_H1)}, {S(S_WK)}, 64")
        a(f"s_mov_b32 {S(S_SUB)}, 0")
    st = Stager(a)
    st.lane_ids()
    L, N, G = st.L, st.N, st.G
    if kind == "kv":
        srd(a, SRD_A, 24, 0x400000)
        srd(a, SRD_B, 32, 0x400000)
    else:
        srd(a, SRD_A, 16, 0x400000)
    VOFF = 24
    st.dma_voffsets(VOFF, 8192, "B")
    a(f"s_lshl_b32 {S(S_T2)}, {S(S_H1)}, 8")
    for i in range(4):
        a(f"v_add_u32 {V(VOFF+i)}, {S(S_T2)}, {V(VOFF+i)}")
    TB, FS = 32, 33
    st.tr_base(TB, FS, "B")
    TA = (34, 35)
    for f in range(2):
        a(f"s_lshl_b32 {S(S_T0)}, {S(S_W)}, 6")
        a(f"s_add_u32 {S(S_T0)}, {S(S_T0)}, {32*f}")
        a(f"v_xor_b32 {V(TA[f])}, {S(S_T0)}, {V(FS)}")
        a(f"v_add_u32 {V(TA[f])}, {V(TA[f])}, {V(TB)}")
    XS, L16, L16H = 40, 41, 42
    a(f"v_lshlrev_b32 {V(XS)}, 10, {V(N)}")
    a(f"v_lshl_add_u32 {V(XS)}, {V(G)}, 4, {V(XS)}")
    a(f"v_lshlrev_b32 {V(L16)}, 4, {V(L)}")
    a(f"v_add_u32 {V(L16H)}, 0x20000, {V(L16)}")
    XB = (131072, 0)
    XA = (L16H, L16)
    a(f"s_mov_b32 {S(S_SEG)}, {S(S_SUB)}")
    def frag(mi, f, u):
        k = 128 * mi + (f * 16 + u) * 4
        return lambda c: A(k + c[0], c[1])
    chunks = []
    for mi, mat in enumerate(mats):
        sr = (SRD_A, SRD_B)[mi]
        for T in range(8):
            def consume(slot, mi=mi, T=T):
                for f in range(2):
                    a(f"v_add_u32 {V(36+f)}, {slot}, {V(TA[f])}")
                for f in range(2):
                    for uu in range(2):
                        for hh in range(2):
                            a(f"ds_read_b64_tr_b16 {frag(mi, f, 2*T+uu)((2*hh, 2))}, {V(36+f)} offset:{(32*uu + 4*hh)*256}")
            chunks.append(dict(srd=sr, voff=VOFF, soff=[f"s_mov_b32 {S(S_T1)}, {T*524288}"], consume=consume))
    S_PF = 46
    EL = len(chunks) - 4
    def look():
        a(f"s_mov_b32 {S(S_T0)}, 32")
        a(f"buffer_load_dword {V(108)}, off, {S(SRD_DBG,4)}, {S(S_T0)} sc1")
    def early():
        Le = a.newlabel("L_xnearly")
        a("s_waitcnt vmcnt(0)")
        a(f"v_readfirstlane_b32 s47, {V(108)}")
        a(f"s_mov_b32 {S(S_PF)}, 0")
        a("s_nop 2")
        a(f"s_cmp_lt_u32 s47, 128")
        a(f"s_cbranch_scc1 {Le}")
        xn_dma(a, XB[0], XS, S_SEG)
        a(f"s_mov_b32 {S(S_PF)}, 1")
        a.label(Le)
    st.run(chunks, post={EL - 2: look, EL: early})
    if "time" in OPT:
        a("s_memrealtime s[60:61]")
        a("s_waitcnt lgkmcnt(0)")
    Lx = a.newlabel("L_xnlate")
    a(f"s_cmp_eq_u32 {S(S_PF)}, 1")
    a(f"s_cbranch_scc1 {Lx}")
    poll_word(a, SRD_DBG, "32", f"s_cmp_ge_u32 {S(S_T0)}, 128", 103, "c0", sleep=16)
    xn_dma(a, XB[0], XS, S_SEG)
    a.label(Lx)
    S_PREV = 42
    S_NEXT = 43
    a(f"s_mov_b32 {S(S_PREV)}, 64")
    NM = len(mats)
    ACC = 48
    XF = 80
    OUT = 96
    a.label(LP + "_loop")
    for par in range(2):
        a("s_waitcnt vmcnt(0)")
        a("s_barrier")
        if "time" in OPT and par == 0:
            Lt = a.newlabel("L_t0")
            a(f"s_cmp_eq_u32 {S(S_PREV)}, 64")
            a(f"s_cbranch_scc0 {Lt}")
            a("s_memrealtime s[62:63]")
            a("s_waitcnt lgkmcnt(0)")
            a.label(Lt)
        w1_flag(a, S_PREV, kind)
        if "time" in OPT and par == 1:
            Lt = a.newlabel("L_t1")
            a(f"s_cmp_eq_u32 {S(S_PREV)}, {S(S_SUB)}")
            a(f"s_cbranch_scc0 {Lt}")
            a("s_memrealtime s[58:59]")
            a("s_waitcnt lgkmcnt(0)")
            a.label(Lt)
        a(f"s_add_u32 {S(S_NEXT)}, {S(S_SEG)}, {stride}")
        a(f"s_min_u32 {S(44)}, {S(S_NEXT)}, 63")
        xn_dma(a, XB[par ^ 1], XS, 44)
        for r in range(ACC, ACC + 16 * NM, 2):
            a(f"v_mov_b64 {V(r,2)}, 0")
        def rd(u):
            b = XF + 8 * (u & 1)
            for tt in range(2):
                a(f"ds_read_b128 {V(b+4*tt,4)}, {V(XA[par])} offset:{(tt*16+u)*1024}")
        rd(0)
        for u in range(16):
            if u + 1 < 16:
                rd(u + 1)
                a("s_waitcnt lgkmcnt(2)")
            else:
                a("s_waitcnt lgkmcnt(0)")
            b = XF + 8 * (u & 1)
            for mi, mat in enumerate(mats):
                for f in range(2):
                    for tt in range(2):
                        acc = V(ACC + ((mi * 2 + f) * 2 + tt) * 4, 4)
                        wf = frag(mi, f, u)((0, 4))
                        xf = V(b + 4 * tt, 4)
                        if mat == "v":
                            a(f"v_mfma_f32_16x16x32_bf16 {acc}, {xf}, {wf}, {acc}")
                        else:
                            a(f"v_mfma_f32_16x16x32_bf16 {acc}, {wf}, {xf}, {acc}")
        a("s_nop 7")
        def acc(mi, f, tt): return ACC + ((mi * 2 + f) * 2 + tt) * 4
        for tt in range(2):
            o = OUT + tt * 4
            for f in range(2):
                for hp in range(2):
                    a(f"v_cvt_pk_bf16_f32 {V(o+2*f+hp)}, {V(acc(0,f,tt)+2*hp)}, {V(acc(0,f,tt)+2*hp+1)}")
        if kind == "kv":
            for f in range(2):
                o = OUT + 8 + f * 4
                for tt in range(2):
                    for hp in range(2):
                        a(f"v_cvt_pk_bf16_f32 {V(o+2*tt+hp)}, {V(acc(1,f,tt)+2*hp)}, {V(acc(1,f,tt)+2*hp+1)}")
        a(f"s_lshl_b32 {S(S_T0)}, {S(S_SEG)}, 5")
        a(f"s_add_u32 {S(S_T0)}, {S(S_T0)}, {S(S_H1)}")
        a(f"s_lshl_b32 {S(S_T0)}, {S(S_T0)}, 13")
        a(f"s_lshl_b32 {S(S_T1)}, {S(S_W)}, 10")
        a(f"s_add_u32 {S(S_T1)}, {S(S_T1)}, {S(S_T0)}")
        base = KF_OFF if kind == "kv" else QF_OFF
        for tt in range(2):
            a(f"s_add_u32 {S(S_T2)}, {S(S_T1)}, {base + tt*4096}")
            a(f"buffer_store_dwordx4 {V(OUT+tt*4,4)}, {V(L16)}, {S(SRD_WS,4)}, {S(S_T2)} offen {STF}")
        if kind == "kv":
            a(f"s_lshl_b32 {S(S_T1)}, {S(S_W)}, 11")
            a(f"s_add_u32 {S(S_T1)}, {S(S_T1)}, {S(S_T0)}")
            for f in range(2):
                a(f"s_add_u32 {S(S_T2)}, {S(S_T1)}, {VF_OFF + f*1024}")
                a(f"buffer_store_dwordx4 {V(OUT+8+f*4,4)}, {V(L16)}, {S(SRD_WS,4)}, {S(S_T2)} offen {STF}")
        a(f"s_mov_b32 {S(S_PREV)}, {S(S_SEG)}")
        a(f"s_mov_b32 {S(S_SEG)}, {S(S_NEXT)}")
        a(f"s_cmp_ge_u32 {S(S_SEG)}, 64")
        a(f"s_cbranch_scc1 {LP}_done")
    a(f"s_branch {LP}_loop")
    a.label(LP + "_done")
    a("s_waitcnt vmcnt(0)")
    a("s_barrier")
    w1_flag(a, S_PREV, kind)


NTEAM = 4
ACT_O, O_LDS, KT_LDS = 32768, 36864, 45056
C_SCALE = (128 ** -0.5) * 1.4426950408889634
LOG2E = 1.4426950408889634

def w2(a):
    a("; ===== W2: FFN + token attention + output projection, one team per XCD =====")
    st = Stager(a)
    st.lane_ids()
    L, N, G = st.L, st.N, st.G
    S_H = S_IDX
    a(f"s_sub_u32 {S(S_TEAM)}, {S(S_XCC)}, 4")
    if "nodefer" not in OPT:
        if "deferc0" in OPT:
            poll_wave0(a, SRD_DBG, "32", f"s_cmp_ge_u32 {S(S_T0)}, 128", 104, "defer", sleep=32)
        else:
            poll_wave0(a, SRD_DBG, "40", f"s_cmp_eq_u32 {S(S_T0)}, -1", 104, "defer", sleep=48)
    srd(a, SRD_A, 40, 0x400000)
    srd(a, SRD_B, 80, 1792 * 512 * 2)
    srd(a, SRD_C, 64, 512 * 1792 * 2)
    VO_C, VO_B = 24, 28
    st.dma_voffsets(VO_C, 1024, "C")
    st.dma_voffsets(VO_B, 3584, "B")
    TBC, FSC, TBB, FSB = 32, 33, 34, 35
    st.tr_base(TBC, FSC, "C")
    st.tr_base(TBB, FSB, "B")
    a(f"s_lshl_b32 {S(S_T0)}, {S(S_W)}, 5")
    a(f"v_xor_b32 {V(36)}, {S(S_T0)}, {V(FSB)}")
    a(f"v_add_u32 {V(36)}, {V(36)}, {V(TBB)}")
    S_FFN = 41
    a(f"s_cmp_lt_u32 {S(S_H)}, 28")
    a(f"s_cselect_b32 {S(S_FFN)}, 1, 0")
    S_HC = 42
    a(f"s_min_u32 {S(S_HC)}, {S(S_H)}, 27")
    chunks = []
    def own_wave(wp, body):
        Ls = a.newlabel("L_own")
        a(f"s_cmp_eq_u32 {S(S_W)}, {wp}")
        a(f"s_cbranch_scc0 {Ls}")
        body()
        a.label(Ls)
    for T in range(2):
        for wp in range(4):
            def consume(slot, T=T, wp=wp):
                def body():
                    for tau in range(8):
                        a(f"v_xor_b32 {V(37)}, {32*tau}, {V(FSC)}")
                        a(f"v_add_u32 {V(37)}, {V(37)}, {V(TBC)}")
                        a(f"v_add_u32 {V(37)}, {slot}, {V(37)}")
                        for uu in range(2):
                            for f in range(2):
                                a(f"ds_read_b64_tr_b16 {A((tau*4 + 2*T+uu)*4 + 2*f, 2)}, {V(37)} offset:{(32*uu + 16*f)*256}")
                        if tau & 1: a("s_waitcnt lgkmcnt(0)")
                own_wave(wp, body)
            chunks.append(dict(srd=SRD_A, voff=VO_C, consume=consume,
                               soff=[f"s_lshl_b32 {S(S_T1)}, {S(S_H)}, 17", f"s_add_u32 {S(S_T1)}, {S(S_T1)}, {T*65536 + wp*256}"]))
    for wp in range(4):
        def consume(slot, wp=wp):
            def body():
                for tau in range(8):
                    a(f"v_xor_b32 {V(37)}, {32*tau}, {V(FSC)}")
                    a(f"v_add_u32 {V(37)}, {V(37)}, {V(TBC)}")
                    a(f"v_add_u32 {V(37)}, {slot}, {V(37)}")
                    for uu in range(2):
                        for f in range(2):
                            a(f"ds_read_b64_tr_b16 {A(128 + (tau*2 + uu)*4 + 2*f, 2)}, {V(37)} offset:{(32*uu + 16*f)*256}")
                    if tau & 1: a("s_waitcnt lgkmcnt(0)")
            own_wave(wp, body)
        chunks.append(dict(srd=SRD_B, voff=VO_C, consume=consume,
                           soff=[f"s_lshl_b32 {S(S_T1)}, {S(S_HC)}, 16", f"s_add_u32 {S(S_T1)}, {S(S_T1)}, {wp*256}"]))
    for T in range(8):
        def consume(slot, T=T):
            a(f"v_add_u32 {V(37)}, {slot}, {V(36)}")
            for uu in range(2):
                for hh in range(2):
                    a(f"ds_read_b64_tr_b16 {A(192 + (2*T+uu)*4 + 2*hh, 2)}, {V(37)} offset:{(32*uu + 4*hh)*256}")
        chunks.append(dict(srd=SRD_C, voff=VO_B, consume=consume,
                           soff=[f"s_lshl_b32 {S(S_T1)}, {S(S_HC)}, 7", f"s_add_u32 {S(S_T1)}, {S(S_T1)}, {T*64*3584}"]))
    st.run(chunks)
    L16, XS, A_KW, A_TRK, G_PST, G_PLD, G_OUT = 0, 1, 2, 3, 4, 5, 6
    B1 = 8
    SEL = 12
    T1, T2, T3 = 103, 104, 105
    R_, C_ = 106, 107
    a(f"v_lshrrev_b32 {V(R_)}, 2, {V(N)}")
    a(f"v_and_b32 {V(C_)}, 3, {V(N)}")
    a(f"v_lshlrev_b32 {V(XS)}, 10, {V(N)}")
    a(f"v_lshl_add_u32 {V(XS)}, {V(G)}, 4, {V(XS)}")
    a(f"s_lshl_b32 {S(S_T0)}, {S(S_W)}, 5")
    a(f"v_add_u32 {V(T3)}, {S(S_T0)}, {V(N)}")
    a(f"v_lshlrev_b32 {V(A_KW)}, 5, {V(T3)}")
    a(f"v_add_u32 {V(T3)}, {V(G)}, {V(R_)}")
    a(f"v_and_b32 {V(T3)}, 3, {V(T3)}")
    a(f"v_lshl_add_u32 {V(A_KW)}, {V(T3)}, 3, {V(A_KW)}")
    a(f"v_add_u32 {V(A_KW)}, {KT_LDS}, {V(A_KW)}")
    a(f"v_lshl_add_u32 {V(T3)}, {V(G)}, 2, {V(R_)}")
    a(f"v_lshlrev_b32 {V(A_TRK)}, 5, {V(T3)}")
    a(f"v_add_u32 {V(T3)}, {V(C_)}, {V(G)}")
    a(f"v_and_b32 {V(T3)}, 3, {V(T3)}")
    a(f"v_lshl_add_u32 {V(A_TRK)}, {V(T3)}, 3, {V(A_TRK)}")
    a(f"v_add_u32 {V(A_TRK)}, {KT_LDS}, {V(A_TRK)}")
    a(f"v_lshlrev_b32 {V(G_PST)}, 15, {V(N)}")
    a(f"v_lshl_add_u32 {V(G_PST)}, {V(G)}, 4, {V(G_PST)}")
    a(f"v_lshlrev_b32 {V(G_PLD)}, 10, {V(G)}")
    a(f"v_lshl_add_u32 {V(G_PLD)}, {V(N)}, 4, {V(G_PLD)}")
    a(f"v_lshlrev_b32 {V(G_OUT)}, 6, {V(R_)}")
    a(f"v_lshl_add_u32 {V(G_OUT)}, {V(G)}, 5, {V(G_OUT)}")
    a(f"v_lshl_add_u32 {V(G_OUT)}, {V(C_)}, 3, {V(G_OUT)}")
    a(f"s_lshl_b32 {S(S_T0)}, {S(S_W)}, 8")
    a(f"v_add_u32 {V(G_OUT)}, {S(S_T0)}, {V(G_OUT)}")
    a(f"v_cmp_lt_u32 vcc, 1, {V(G)}")
    a(f"v_mov_b32 {V(T3)}, 0x7ff00000")
    a("s_nop 0")
    a(f"v_cndmask_b32 {V(G_OUT)}, {V(G_OUT)}, {V(T3)}, vcc")
    a(f"v_and_b32 {V(T1)}, 1, {V(N)}")
    a(f"v_lshlrev_b32 {V(T1)}, 4, {V(T1)}")
    a(f"v_mov_b32 {V(T2)}, 0x3f80")
    a(f"v_lshlrev_b32 {V(T2)}, {V(T1)}, {V(T2)}")
    a(f"v_bfe_u32 {V(T1)}, {V(N)}, 1, 2")
    for rr in range(4):
        a(f"v_cmp_eq_u32 vcc, {rr}, {V(T1)}")
        a(f"v_mov_b32 {V(SEL+rr)}, 0")
        a("s_nop 0")
        a(f"v_cndmask_b32 {V(SEL+rr)}, {V(SEL+rr)}, {V(T2)}, vcc")
    srd(a, SRD_C, 72, 1792 * 2)
    a(f"s_lshl_b32 {S(S_T0)}, {S(S_HC)}, 7")
    a(f"s_lshl_b32 {S(S_T1)}, {S(S_W)}, 5")
    a(f"s_add_u32 {S(S_T0)}, {S(S_T0)}, {S(S_T1)}")
    a(f"v_lshlrev_b32 {V(T1)}, 3, {V(G)}")
    a(f"buffer_load_dwordx2 {V(T2,2)}, {V(T1)}, {S(SRD_C,4)}, {S(S_T0)} offen")
    a("s_waitcnt vmcnt(0)")
    a(f"v_lshlrev_b32 {V(B1)}, 16, {V(T2)}")
    a(f"v_and_b32 {V(B1+1)}, 0xffff0000, {V(T2)}")
    a(f"v_lshlrev_b32 {V(B1+2)}, 16, {V(T3)}")
    a(f"v_and_b32 {V(B1+3)}, 0xffff0000, {V(T3)}")
    S_M0, S_M1 = 64, 72
    for r in range(4):
        a(f"v_lshl_add_u32 {V(T1)}, {V(G)}, 2, {r}")
        a(f"v_cmp_le_u32 {S(S_M1+2*r,2)}, {V(T1)}, {V(N)}")
    a("s_nop 3")
    a(f"s_cmp_ge_u32 {S(S_W)}, 2")
    for r in range(4):
        a(f"s_cselect_b64 {S(S_M0+2*r,2)}, -1, {S(S_M1+2*r,2)}")
        a(f"s_cselect_b64 {S(S_M1+2*r,2)}, {S(S_M1+2*r,2)}, 0")
    a(f"v_lshlrev_b32 {V(L16)}, 4, {V(L)}")
    a(f"v_and_b32 {V(7)}, 31, {V(L)}")
    a(f"v_lshlrev_b32 {V(7)}, 2, {V(7)}")
    srd(a, SRD_A, 0, 2048 * 512 * 2)
    srd(a, SRD_B, 88, 2048 * 512 * 2)
    S_C = 80
    a(f"s_mov_b32 {S(S_C)}, {f2u(C_SCALE):#x}")
    S_L2E = 81
    a(f"s_mov_b32 {S(S_L2E)}, {f2u(LOG2E):#x}")
    A_ACTW, A_OW = 16, 17
    a(f"s_lshr_b32 {S(S_T0)}, {S(S_W)}, 1")
    a(f"s_lshl_b32 {S(S_T0)}, {S(S_T0)}, 10")
    a(f"s_and_b32 {S(S_T1)}, {S(S_W)}, 1")
    a(f"s_lshl_b32 {S(S_T2)}, {S(S_T1)}, 3")
    a(f"s_add_u32 {S(S_T0)}, {S(S_T0)}, {S(S_T2)}")
    a(f"s_add_u32 {S(S_T0)}, {S(S_T0)}, {ACT_O}")
    a(f"v_add_u32 {V(A_ACTW)}, {S(S_T0)}, {V(L16)}")
    a(f"s_lshr_b32 {S(S_T0)}, {S(S_W)}, 1")
    a(f"s_lshl_b32 {S(S_T0)}, {S(S_T0)}, 12")
    a(f"s_lshl_b32 {S(S_T1)}, {S(S_T1)}, 11")
    a(f"s_add_u32 {S(S_T0)}, {S(S_T0)}, {S(S_T1)}")
    a(f"s_add_u32 {S(S_T0)}, {S(S_T0)}, {O_LDS}")
    a(f"v_add_u32 {V(A_OW)}, {S(S_T0)}, {V(L16)}")
    if "nodefer" in OPT:
        poll_wave0(a, SRD_DBG, "32", f"s_cmp_ge_u32 {S(S_T0)}, 128", T3, "c0b", sleep=16)
    a(f"s_mov_b32 {S(S_SEG)}, {S(S_TEAM)}")
    a(f"s_mov_b32 {S(S_J)}, 0")
    a("s_barrier")
    xn_dma(a, 0, XS, S_SEG)
    FA = 128
    XF = 32
    a.label("L_w2_loop")
    a("s_waitcnt vmcnt(0)")
    a("s_barrier")
    for r in range(FA, FA + 64, 2):
        a(f"v_mov_b64 {V(r,2)}, 0")
    Lnf = a.newlabel("L_w2_noffn")
    a(f"s_cmp_eq_u32 {S(S_FFN)}, 0")
    a(f"s_cbranch_scc1 {Lnf}")
    H = 48
    for r in range(H, H + 8, 2): a(f"v_mov_b64 {V(r,2)}, 0")
    def rdx(u):
        b = XF + 8 * (u & 1)
        for tt in range(2):
            a(f"ds_read_b128 {V(b+4*tt,4)}, {V(L16)} offset:{(tt*16+u)*1024}")
    rdx(0)
    for u in range(16):
        if u < 15:
            rdx(u + 1); a("s_waitcnt lgkmcnt(2)")
        else:
            a("s_waitcnt lgkmcnt(0)")
        b = XF + 8 * (u & 1)
        for tt in range(2):
            a(f"v_mfma_f32_16x16x32_bf16 {V(H+4*tt,4)}, {A(192+4*u,4)}, {V(b+4*tt,4)}, {V(H+4*tt,4)}")
    a("s_nop 7")
    U, NN, DD, T_ = 56, 57, 58, 59
    for tt in range(2):
        for r in range(4):
            h = H + 4 * tt + r
            a(f"v_add_f32 {V(h)}, {V(h)}, {V(B1+r)}")
            a(f"v_mul_f32 {V(U)}, {S(S_L2E)}, {V(h)}")
            a(f"v_exp_f32 {V(U)}, -|{V(U)}|")
            a(f"v_cmp_le_f32 vcc, 0, {V(h)}")
            a(f"v_add_f32 {V(T_)}, {V(U)}, {V(U)}")
            a(f"v_fma_f32 {V(NN)}, {V(U)}, {V(U)}, {V(T_)}")
            a(f"v_add_f32 {V(DD)}, 1.0, {V(T_)}")
            a(f"v_mul_f32 {V(T_)}, {V(T_)}, {V(U)}")
            a(f"v_cndmask_b32 {V(NN)}, {V(NN)}, {V(DD)}, vcc")
            a(f"v_cndmask_b32 {V(T_)}, 2.0, {V(T_)}, vcc")
            a(f"v_add_f32 {V(DD)}, {V(NN)}, {V(T_)}")
            a(f"v_rcp_f32 {V(DD)}, {V(DD)}")
            a(f"v_mul_f32 {V(NN)}, {V(NN)}, {V(h)}")
            a(f"v_mul_f32 {V(h)}, {V(NN)}, {V(DD)}")
        a(f"v_cvt_pk_bf16_f32 {V(H+4*tt)}, {V(H+4*tt)}, {V(H+4*tt+1)}")
        a(f"v_cvt_pk_bf16_f32 {V(H+4*tt+1)}, {V(H+4*tt+2)}, {V(H+4*tt+3)}")
        a(f"ds_write_b64 {V(A_ACTW)}, {V(H+4*tt,2)} offset:{tt*2048}")
    a.label(Lnf)
    a("s_waitcnt lgkmcnt(0)")
    a("s_barrier")
    a(f"s_add_u32 {S(S_T3)}, {S(S_SEG)}, {NTEAM}")
    a(f"s_min_u32 {S(44)}, {S(S_T3)}, 63")
    xn_dma(a, 0, XS, 44)
    Lnf = a.newlabel("L_w2_noffn2")
    a(f"s_cmp_eq_u32 {S(S_FFN)}, 0")
    a(f"s_cbranch_scc1 {Lnf}")
    for tt in range(2):
        for uu in range(2):
            a(f"ds_read_b128 {V(XF+4*(2*tt+uu),4)}, {V(L16)} offset:{ACT_O + (tt*2+uu)*1024}")
    a("s_waitcnt lgkmcnt(0)")
    for tt in range(2):
        for tau in range(8):
            for uu in range(2):
                acc = V(FA + (tt*8+tau)*4, 4)
                a(f"v_mfma_f32_16x16x32_bf16 {acc}, {A(128+(tau*2+uu)*4,4)}, {V(XF+4*(2*tt+uu),4)}, {acc}")
    a.label(Lnf)
    a(f"s_lshl_b32 {S(S_T1)}, {S(S_SEG)}, 5")
    a(f"s_add_u32 {S(S_T1)}, {S(S_T1)}, {S(S_H)}")
    a(f"s_mov_b32 {S(46)}, {S(S_T1)}")
    a(f"s_lshl_b32 {S(S_T1)}, {S(S_T1)}, 2")
    a(f"s_add_u32 {S(45)}, {S(S_T1)}, {FLAG_OFF}")
    def w0_polls(name, cond):
        Lw0 = a.newlabel("L_w2_w0")
        a(f"s_cmp_eq_u32 {S(S_W)}, 0")
        a(f"s_cbranch_scc0 {Lw0}")
        poll_word(a, SRD_WS, S(47), cond, T3, name, sleep=2)
        a.label(Lw0)
        a("s_barrier")
    a(f"s_mov_b32 {S(47)}, {S(45)}")
    w0_polls("kv", f"s_cmp_eq_u32 {S(S_T0)}, 1")
    a(f"s_add_u32 {S(47)}, {S(45)}, {QFL_OFF - FLAG_OFF}")
    w0_polls("q", f"s_cmp_eq_u32 {S(S_T0)}, 1")
    a(f"s_mov_b32 {S(47)}, {S(45)}")
    QF, KF0, KF1, VF, REC, VMR = 32, 48, 64, 80, 96, 98
    a(f"s_lshl_b32 {S(45)}, {S(46)}, 13")
    a(f"s_lshr_b32 {S(S_T0)}, {S(S_W)}, 1")
    a(f"s_lshl_b32 {S(S_T0)}, {S(S_T0)}, 12")
    a(f"s_add_u32 {S(S_T1)}, {S(45)}, {S(S_T0)}")
    a(f"s_add_u32 {S(S_T1)}, {S(S_T1)}, {QF_OFF}")
    for u in range(4):
        a(f"buffer_load_dwordx4 {V(QF+4*u,4)}, {V(L16)}, {S(SRD_WS,4)}, {S(S_T1)} offen offset:{u*1024} sc1")
    a(f"s_add_u32 {S(S_T1)}, {S(45)}, {KF_OFF}")
    for u in range(4):
        a(f"buffer_load_dwordx4 {V(KF0+4*u,4)}, {V(L16)}, {S(SRD_WS,4)}, {S(S_T1)} offen offset:{u*1024} sc1")
    a(f"s_add_u32 {S(S_T1)}, {S(S_T1)}, 4096")
    for u in range(4):
        a(f"buffer_load_dwordx4 {V(KF1+4*u,4)}, {V(L16)}, {S(SRD_WS,4)}, {S(S_T1)} offen offset:{u*1024} sc1")
    a(f"s_and_b32 {S(S_T0)}, {S(S_W)}, 1")
    a(f"s_lshl_b32 {S(S_T2)}, {S(S_T0)}, 12")
    a(f"s_add_u32 {S(S_T1)}, {S(45)}, {S(S_T2)}")
    a(f"s_add_u32 {S(S_T1)}, {S(S_T1)}, {VF_OFF}")
    for t in range(4):
        a(f"buffer_load_dwordx4 {V(VF+4*t,4)}, {V(L16)}, {S(SRD_WS,4)}, {S(S_T1)} offen offset:{t*1024} sc1")
    a(f"s_add_u32 {S(47)}, {S(47)}, {KVMF_OFF - FLAG_OFF}")
    w0_polls("kvm", f"s_cmp_lg_u32 {S(S_T0)}, 0")
    a(f"s_lshl_b32 {S(45)}, {S(46)}, 12")
    a(f"s_add_u32 {S(45)}, {S(45)}, {KVM_OFF}")
    a(f"s_lshl_b32 {S(S_T1)}, {S(S_W)}, 10")
    a(f"s_add_u32 {S(S_T1)}, {S(S_T1)}, {S(45)}")
    a(f"buffer_load_dwordx2 {V(REC,2)}, {V(L16)}, {S(SRD_WS,4)}, {S(S_T1)} offen sc1")
    a(f"s_and_b32 {S(S_T0)}, {S(S_W)}, 1")
    a(f"s_lshl_b32 {S(S_T1)}, {S(S_T0)}, 11")
    a(f"s_add_u32 {S(S_T1)}, {S(S_T1)}, {S(45)}")
    for k in range(2):
        a(f"buffer_load_dwordx2 {V(VMR+2*k,2)}, {V(L16)}, {S(SRD_WS,4)}, {S(S_T1)} offen offset:{k*1024+8} sc1")
    a("s_waitcnt vmcnt(2)")
    a(f"ds_write_b32 {V(A_KW)}, {V(REC)}")
    a(f"ds_write_b32 {V(A_KW)}, {V(REC+1)} offset:512")
    a("s_waitcnt vmcnt(0) lgkmcnt(0)")
    a("s_barrier")
    KM = 104
    for u in range(4):
        for f in range(2):
            a(f"ds_read_b64_tr_b16 {V(KM+4*u+2*f,2)}, {V(A_TRK)} offset:{u*1024 + f*512}")
    ST0, ST1, SM = 20, 24, 28
    for u in range(4):
        a(f"v_mfma_f32_16x16x32_bf16 {V(ST0,4)}, {V(KF0+4*u,4)}, {V(QF+4*u,4)}, {'0' if u == 0 else V(ST0,4)}")
        a(f"v_mfma_f32_16x16x32_bf16 {V(ST1,4)}, {V(KF1+4*u,4)}, {V(QF+4*u,4)}, {'0' if u == 0 else V(ST1,4)}")
    a("s_waitcnt lgkmcnt(0)")
    for u in range(4):
        a(f"v_mfma_f32_16x16x32_bf16 {V(SM,4)}, {V(KM+4*u,4)}, {V(QF+4*u,4)}, {'0' if u == 0 else V(SM,4)}")
    NEG, MX, MX2, LS, LS2 = 120, 121, 122, 123, 124
    a(f"v_mov_b32 {V(NEG)}, 0xf149f2ca")
    a("s_nop 6")
    for r in range(4):
        a(f"v_cndmask_b32 {V(ST0+r)}, {V(NEG)}, {V(ST0+r)}, {S(S_M0+2*r,2)}")
        a(f"v_cndmask_b32 {V(ST1+r)}, {V(NEG)}, {V(ST1+r)}, {S(S_M1+2*r,2)}")
    SV = [ST0, ST0+1, ST0+2, ST0+3, ST1, ST1+1, ST1+2, ST1+3, SM, SM+1]
    a(f"v_max3_f32 {V(MX)}, {V(SV[0])}, {V(SV[1])}, {V(SV[2])}")
    a(f"v_max3_f32 {V(MX2)}, {V(SV[3])}, {V(SV[4])}, {V(SV[5])}")
    a(f"v_max3_f32 {V(MX)}, {V(MX)}, {V(SV[6])}, {V(SV[7])}")
    a(f"v_max3_f32 {V(MX2)}, {V(MX2)}, {V(SV[8])}, {V(SV[9])}")
    a(f"v_max_f32 {V(MX)}, {V(MX)}, {V(MX2)}")
    for sw in ("v_permlane32_swap_b32", "v_permlane16_swap_b32"):
        a(f"v_mov_b32 {V(MX2)}, {V(MX)}")
        a("s_nop 1")
        a(f"{sw} {V(MX)}, {V(MX2)}")
        a(f"v_max_f32 {V(MX)}, {V(MX)}, {V(MX2)}")
    a(f"v_mul_f32 {V(MX)}, {S(S_C)}, {V(MX)}")
    for k in range(10):
        a(f"v_fma_f32 {V(SV[k])}, {V(SV[k])}, {S(S_C)}, -{V(MX)}")
    for k in range(10):
        a(f"v_exp_f32 {V(SV[k])}, {V(SV[k])}")
    PT, PM0, PM1 = 32, 36, 38
    a("s_nop 0")
    for k in range(4):
        a(f"v_cvt_pk_bf16_f32 {V(PT+k)}, {V(SV[2*k])}, {V(SV[2*k+1])}")
    a(f"v_cvt_pk_bf16_f32 {V(PM0)}, {V(SV[8])}, {V(SV[9])}")
    a(f"v_cvt_pk_bf16_f32 {V(PM1+1)}, {V(SV[8])}, {V(SV[9])}")
    a(f"v_mov_b32 {V(PM0+1)}, 0")
    a(f"v_mov_b32 {V(PM1)}, 0")
    OA = 48
    a("s_nop 1")
    for t in range(4):
        a(f"v_mfma_f32_16x16x32_bf16 {V(OA+4*t,4)}, {V(VF+4*t,4)}, {V(PT,4)}, 0")
    for t in range(4):
        a(f"v_mfma_f32_16x16x16_bf16 {V(OA+4*t,4)}, {V(VMR+2*(t>>1),2)}, {V(PM0 if t % 2 == 0 else PM1,2)}, {V(OA+4*t,4)}")
    a(f"v_add_f32 {V(LS)}, {V(SV[0])}, {V(SV[1])}")
    for k in range(2, 10):
        a(f"v_add_f32 {V(LS)}, {V(LS)}, {V(SV[k])}")
    for sw in ("v_permlane32_swap_b32", "v_permlane16_swap_b32"):
        a(f"v_mov_b32 {V(LS2)}, {V(LS)}")
        a("s_nop 1")
        a(f"{sw} {V(LS)}, {V(LS2)}")
        a(f"v_add_f32 {V(LS)}, {V(LS)}, {V(LS2)}")
    a(f"v_rcp_f32 {V(LS)}, {V(LS)}")
    a("s_nop 3")
    for k in range(16):
        a(f"v_mul_f32 {V(OA+k)}, {V(OA+k)}, {V(LS)}")
    for t in range(4):
        a(f"v_cvt_pk_bf16_f32 {V(OA+4*t)}, {V(OA+4*t)}, {V(OA+4*t+1)}")
        a(f"v_cvt_pk_bf16_f32 {V(OA+4*t+1)}, {V(OA+4*t+2)}, {V(OA+4*t+3)}")
        a(f"ds_write_b64 {V(A_OW)}, {V(OA+4*t,2)} offset:{(t>>1)*1024 + (t&1)*8}")
    a("s_waitcnt lgkmcnt(0)")
    a("s_barrier")
    OF = 64
    for tt in range(2):
        for u in range(4):
            a(f"ds_read_b128 {V(OF+4*(tt*4+u),4)}, {V(L16)} offset:{O_LDS + (tt*4+u)*1024}")
    a("s_waitcnt lgkmcnt(0)")
    for tt in range(2):
        for tau in range(8):
            for u in range(4):
                acc = V(FA + (tt*8+tau)*4, 4)
                a(f"v_mfma_f32_16x16x32_bf16 {acc}, {A((tau*4+u)*4,4)}, {V(OF+4*(tt*4+u),4)}, {acc}")
    a("s_nop 7")
    S_SLOT = 47
    a(f"s_and_b32 {S(S_T0)}, {S(S_J)}, 1")
    a(f"s_lshl_b32 {S(S_T0)}, {S(S_T0)}, 20")
    a(f"s_lshl_b32 {S(S_T1)}, {S(S_TEAM)}, 21")
    a(f"s_add_u32 {S(S_T0)}, {S(S_T0)}, {S(S_T1)}")
    a(f"s_add_u32 {S(S_SLOT)}, {S(S_T0)}, {W2P_OFF}")
    a(f"s_lshl_b32 {S(S_T0)}, {S(S_H)}, 10")
    a(f"s_lshl_b32 {S(S_T1)}, {S(S_W)}, 8")
    a(f"s_add_u32 {S(S_T0)}, {S(S_T0)}, {S(S_T1)}")
    a(f"s_add_u32 {S(S_T0)}, {S(S_T0)}, {S(S_SLOT)}")
    PKD = 32
    for tt in range(2):
        for tp in range(4):
            o = PKD + 4 * ((tt * 4 + tp) % 8)
            for k in range(2):
                acc = FA + (tt*8 + 2*tp + k) * 4
                a(f"v_cvt_pk_bf16_f32 {V(o+2*k)}, {V(acc)}, {V(acc+1)}")
                a(f"v_cvt_pk_bf16_f32 {V(o+2*k+1)}, {V(acc+2)}, {V(acc+3)}")
            a(f"buffer_store_dwordx4 {V(o,4)}, {V(G_PST)}, {S(SRD_WS,4)}, {S(S_T0)} offen offset:{tp*64} {PSTF}")
        if tt == 0: a(f"s_add_u32 {S(S_T0)}, {S(S_T0)}, {16*32768}")
    XR = 64
    a(f"s_lshl_b32 {S(S_T1)}, {S(S_SEG)}, 5")
    a(f"s_add_u32 {S(S_T1)}, {S(S_T1)}, {S(S_H)}")
    a(f"s_lshl_b32 {S(46)}, {S(S_T1)}, 10")
    a(f"buffer_load_dwordx2 {V(XR,2)}, {V(G_OUT)}, {S(SRD_A,4)}, {S(46)} offen")
    a("s_waitcnt vmcnt(0)")
    a("s_barrier")
    a(f"s_add_u32 {S(S_J)}, {S(S_J)}, 1")
    Lf = a.newlabel("L_w2_flag")
    a(f"s_lshl_b32 {S(45)}, {S(S_TEAM)}, 7")
    a(f"s_add_u32 {S(45)}, {S(45)}, {W2F_OFF}")
    a(f"s_cmp_eq_u32 {S(S_W)}, 0")
    a(f"s_cbranch_scc0 {Lf}")
    a(f"v_mov_b32 {V(T3)}, {S(S_J)}")
    a(f"s_lshl_b32 {S(S_T0)}, {S(S_H)}, 2")
    a(f"s_add_u32 {S(S_T0)}, {S(S_T0)}, {S(45)}")
    a(f"buffer_store_dword {V(T3)}, off, {S(SRD_WS,4)}, {S(S_T0)}")
    a.label(Lf)
    Lp = a.newlabel("L_w2_poll"); Ld = Lp + "_d"
    a(f"s_mov_b32 {S(S_CNT)}, 0")
    a.label(Lp)
    a(f"s_cmp_eq_u32 {S(S_FAIL)}, 1")
    a(f"s_cbranch_scc1 {Ld}")
    a(f"buffer_load_dword {V(T2)}, {V(7)}, {S(SRD_WS,4)}, {S(45)} offen sc1")
    a("s_waitcnt vmcnt(0)")
    a(f"v_cmp_gt_u32 vcc, {S(S_J)}, {V(T2)}")
    a(f"s_cbranch_vccz {Ld}")
    a("s_sleep 1")
    a(f"s_add_u32 {S(S_CNT)}, {S(S_CNT)}, 1")
    a(f"s_cmp_lt_u32 {S(S_CNT)}, {SPIN_MAX}")
    a(f"s_cbranch_scc1 {Lp}")
    a(f"s_mov_b32 {S(S_FAIL)}, 1")
    a.label(Ld)
    IN = 32
    a(f"s_lshl_b32 {S(S_T0)}, {S(S_H)}, 15")
    a(f"s_lshl_b32 {S(S_T1)}, {S(S_W)}, 8")
    a(f"s_add_u32 {S(S_T0)}, {S(S_T0)}, {S(S_T1)}")
    a(f"s_add_u32 {S(S_T0)}, {S(S_T0)}, {S(S_SLOT)}")
    for i in range(8):
        a(f"buffer_load_dwordx4 {V(IN+4*i,4)}, {V(G_PLD)}, {S(SRD_WS,4)}, {S(S_T0)} offen sc1")
        if i < 7: a(f"s_add_u32 {S(S_T0)}, {S(S_T0)}, 4096")
    RA = 68
    for i in range(8):
        a(f"s_waitcnt vmcnt({7-i})")
        a(f"v_mfma_f32_16x16x32_bf16 {V(RA,4)}, {V(SEL,4)}, {V(IN+4*i,4)}, {'0' if i == 0 else V(RA,4)}")
    a(f"v_lshlrev_b32 {V(72)}, 16, {V(XR)}")
    a(f"v_and_b32 {V(73)}, 0xffff0000, {V(XR)}")
    a(f"v_lshlrev_b32 {V(74)}, 16, {V(XR+1)}")
    a(f"v_and_b32 {V(75)}, 0xffff0000, {V(XR+1)}")
    a("s_nop 4")
    for r in range(4):
        a(f"v_add_f32 {V(RA+r)}, {V(RA+r)}, {V(72+r)}")
    a(f"v_cvt_pk_bf16_f32 {V(RA)}, {V(RA)}, {V(RA+1)}")
    a(f"v_cvt_pk_bf16_f32 {V(RA+1)}, {V(RA+2)}, {V(RA+3)}")
    a(f"buffer_store_dwordx2 {V(RA,2)}, {V(G_OUT)}, {S(SRD_B,4)}, {S(46)} offen {OSTF}")
    a(f"s_add_u32 {S(S_SEG)}, {S(S_SEG)}, {NTEAM}")
    a(f"s_cmp_lt_u32 {S(S_SEG)}, 64")
    a("s_cbranch_scc1 L_w2_loop")
    a("s_waitcnt vmcnt(0)")
```
